```python
import torch

def _softmax(x, axis=-1):
    return torch.softmax(x, dim=axis)
def _gelu(x):
    return torch.nn.functional.gelu(x, approximate="tanh")
def _silu(x):
    return torch.nn.functional.silu(x)
def _sigmoid(x):
    return torch.sigmoid(x)
def _layernorm(x, axis=-1, eps=1e-5):
    m = x.mean(dim=axis, keepdim=True)
    v = x.var(dim=axis, keepdim=True, unbiased=False)
    return (x - m) / torch.sqrt(v + eps)
def _scatter_add(tgt, idx, src, axis=0):
    return tgt.clone().index_add_(axis, idx, src)
def _segment_sum(src, seg, n):
    out = torch.zeros((n,) + src.shape[1:], dtype=src.dtype)
    return out.index_add_(0, seg, src)
def _pad(x, pw):
    flat = tuple(v for pair in reversed(pw) for v in pair)
    return torch.nn.functional.pad(x, flat)

kernel_name = 'recurrent_scan__mha_block_cached__moe_arch_mod__prompt'

def setup_inputs():

    _w = (lambda a: (lambda t: t.to(torch.bfloat16) if t.is_floating_point() else t)(torch.as_tensor(a)))
    def _A_setup():
        B, Sq, D = 1, 2048, 640
        H, Sk, Dh = 32, 2048, 128
        return {
            "x": _w((lambda *s: torch.randn(*s, dtype=torch.bfloat16) * 0.05)(B, Sq, D)),
            "k_cache": _w((lambda *s: torch.randn(*s, dtype=torch.bfloat16) * 1.6)(B, H, Sk, Dh)),
            "v_cache": _w((lambda *s: torch.randn(*s, dtype=torch.bfloat16) * 0.2)(B, H, Sk, Dh)),
            "wq": _w((lambda *s: torch.randn(*s, dtype=torch.bfloat16) * 1.6)(D, H * Dh) * (D ** -0.5)),
            "wo": _w((lambda *s: torch.randn(*s, dtype=torch.bfloat16) * 0.2)(H * Dh, D) * ((H * Dh) ** -0.5)),
        }
    _A_in = _A_setup()

    def _B_setup():
        B, S, D, F, C = 1, 2048, 640, 1728, 1
        return {
            "x": _w((lambda *s: torch.randn(*s, dtype=torch.bfloat16) * 0.05)(B, S, D)),
            "w_r": _w((lambda *s: torch.randn(*s, dtype=torch.bfloat16) * 0.2)(D)),
            "w_gate": _w((lambda *s: torch.randn(*s, dtype=torch.bfloat16) * 0.1)(D, F)),
            "w_up": _w((lambda *s: torch.randn(*s, dtype=torch.bfloat16) * 0.1)(D, F)),
            "w_down": _w((lambda *s: torch.randn(*s, dtype=torch.bfloat16) * 0.1)(F, D)),
        }
    _B_in = _B_setup()

    return {
        "A_x": _A_in["x"],
        "A_k_cache": _A_in["k_cache"],
        "A_v_cache": _A_in["v_cache"],
        "A_wq": _A_in["wq"],
        "A_wo": _A_in["wo"],
        "B_x": _B_in["x"],
        "B_w_r": _B_in["w_r"],
        "B_w_gate": _B_in["w_gate"],
        "B_w_up": _B_in["w_up"],
        "B_w_down": _B_in["w_down"],
    }

def reference(A_x, A_k_cache, A_v_cache, A_wq, A_wo, B_x, B_w_r, B_w_gate, B_w_up, B_w_down):
    def _A_ref(x, k_cache, v_cache, wq, wo):
        B, Sq, D = x.shape
        H, Dh = 32, 128
        q = (lambda x, *d: x.permute(*d))((x @ wq).reshape(B, Sq, H, Dh), 0, 2, 1, 3)
        scores = torch.einsum("bhqd,bhkd->bhqk", q, k_cache) * (Dh ** -0.5)
        p = _softmax(scores, axis=-1)
        o = torch.einsum("bhqk,bhkd->bhqd", p, v_cache)
        return (lambda x, *d: x.permute(*d))(o, 0, 2, 1, 3).reshape(B, Sq, H * Dh) @ wo

    def _B_ref(x, w_r, w_gate, w_up, w_down):
        B, S, D = x.shape
        C = 1
        r = x @ w_r
        idx = torch.argsort(-r, axis=-1)[:, :C]
        idx_e = (lambda x, n, axis: torch.repeat_interleave(x, n, dim=axis))(idx.reshape(B, C, 1), D, axis=2)
        x_sel = (lambda x, i, axis: torch.take_along_dim(x, i, dim=axis))(x, idx_e, axis=1)
        g = _silu(x_sel @ w_gate)
        u = x_sel @ w_up
        y = (g * u) @ w_down
        r_sel = _sigmoid((lambda x, i, axis: torch.take_along_dim(x, i, dim=axis))(r, idx, axis=1))
        y = y * r_sel.reshape(B, C, 1)
        b_off = (torch.arange(B) * S).reshape(B, 1)
        flat_idx = (idx + b_off).reshape(B * C)
        zero = (x * 0.0).reshape(B * S, D)
        upd = _scatter_add(zero, flat_idx, y.reshape(B * C, D), axis=0)
        return x + upd.reshape(B, S, D)

    x = A_x
    xn = _layernorm(x, axis=-1)
    s = _A_ref(xn, A_k_cache, A_v_cache, A_wq, A_wo)
    g = _silu(_B_ref(xn, B_w_r, B_w_gate, B_w_up, B_w_down))
    return x + s * g
```

```python
from core import *
from layout import *

def argmax_keys(A, k0, t, sdst):
    for i in range(5): A(f"v_max3_u32 {v(k0+i)}, {v(k0+i)}, {v(k0+5+2*i)}, {v(k0+6+2*i)}")
    A(f"v_max3_u32 {v(k0)}, {v(k0)}, {v(k0+1)}, {v(k0+15)}", f"v_max3_u32 {v(k0+2)}, {v(k0+2)}, {v(k0+3)}, {v(k0+4)}",
      f"v_max_u32 {v(k0)}, {v(k0)}, {v(k0+2)}")
    for r in (8, 4, 2, 1):
        A("s_nop 1", f"v_max_u32_dpp {v(k0)}, {v(k0)}, {v(k0)} row_ror:{r} row_mask:0xf bank_mask:0xf")
    xgroup(A, k0, t, "v_max_u32")
    A("s_nop 0", f"v_readfirstlane_b32 {s(sdst)}, {v(k0)}", "s_nop 0")

def xgroup(A, x, t, op):
    A(f"v_mov_b32 {v(t)}, {v(x)}", "s_nop 1", f"v_permlane16_swap_b32 {v(x)}, {v(t)}", "s_nop 1", f"{op} {v(x)}, {v(x)}, {v(t)}",
      f"v_mov_b32 {v(t)}, {v(x)}", "s_nop 1", f"v_permlane32_swap_b32 {v(x)}, {v(t)}", "s_nop 1", f"{op} {v(x)}, {v(x)}, {v(t)}")

def xgroup_multi(A, xs, ts, op):
    for sw in ("v_permlane16_swap_b32", "v_permlane32_swap_b32"):
        for x, t in zip(xs, ts): A(f"v_mov_b32 {v(t)}, {v(x)}")
        if len(xs) < 3: A("s_nop 1")
        for x, t in zip(xs, ts): A(f"{sw} {v(x)}, {v(t)}")
        if len(xs) < 3: A("s_nop 1")
        for x, t in zip(xs, ts): A(f"{op} {v(x)}, {v(x)}, {v(t)}")

class VM:
    def __init__(self): self.q = []
    def issue(self, tag): self.q.append(tag)
    def n_after(self, tags):
        idx = max(i for i, t in enumerate(self.q) if t in tags)
        return len(self.q) - 1 - idx

def stamp(A, slot, on):
    if on: A(f"s_memrealtime {s(80+2*slot,2)}")

def stamp_store(A, on, base_pair, kid, nslots, vt):
    if not on: return
    A("s_waitcnt lgkmcnt(0)")
    srd(A, 72, base_pair, STAMP_OFF + kid * 0x10000, 0x10000)
    A(f"s_lshl_b32 s76, s2, 6", f"v_mov_b32 {v(vt)}, s76", "s_mov_b64 exec, 1")
    for i in range(nslots):
        A(f"v_mov_b32 {v(vt+1)}, {s(80+2*i)}", f"buffer_store_dword {v(vt+1)}, {v(vt)}, s[72:75], 0 offen offset:{4*i}", "s_nop 1")
    A("s_mov_b64 exec, -1")
```

```python
import re

def rng(p, a, n=1):
    return f"{p}{a}" if n == 1 else f"{p}[{a}:{a+n-1}]"
def v(a, n=1): return rng("v", a, n)
def a(x, n=1): return rng("a", x, n)
def s(x, n=1): return rng("s", x, n)

class Asm:
    def __init__(self):
        self.L = []
    def __call__(self, *lines):
        for t in lines:
            for x in t.split("\n"):
                x = x.strip()
                if x: self.L.append(x)
    def text(self):
        return "\n".join(self.L)

REG = re.compile(r"\b([vas])(\d+)\b|\b([vas])\[(\d+):(\d+)\]")
def regs_of(op):
    out = set()
    for m in REG.finditer(op):
        if m.group(1): out.add((m.group(1), int(m.group(2))))
        else:
            for i in range(int(m.group(4)), int(m.group(5)) + 1): out.add((m.group(3), i))
    if re.search(r"\bvcc\b", op): out.add(("s", "vcc"))
    if re.search(r"\bm0\b", op): out.add(("s", "m0"))
    if re.search(r"\bexec\b", op): out.add(("s", "exec"))
    return out

TRANS = ("v_exp_f32", "v_log_f32", "v_rcp_f32", "v_rsq_f32", "v_sqrt_f32", "v_sin_f32", "v_cos_f32")

class I:
    def __init__(self, line):
        self.line = line
        body = line.split(";")[0].strip()
        p = body.split(None, 1)
        self.op = p[0]
        rest = p[1] if len(p) > 1 else ""
        ops = [x.strip() for x in re.split(r",(?![^\[]*\])", rest)] if rest else []
        self.ops = ops
        op = self.op
        self.mfma = op.startswith("v_mfma")
        self.valu = op.startswith("v_") and not self.mfma
        self.ds = op.startswith("ds_")
        self.vmem = op.startswith(("buffer_", "global_"))
        self.salu = op.startswith("s_")
        self.trans = op.startswith(TRANS)
        self.dpp = "_dpp" in op or "row_" in body or "quad_perm" in body
        self.w = set(); self.r = set(); self.c = set(); self.ab = set(); self.sdata = set()
        self.ws = 1
        if op == "s_nop": self.ws = int(ops[0]) + 1
        if self.mfma:
            self.w = regs_of(ops[0]); self.ab = regs_of(ops[1]) | regs_of(ops[2]); self.c = regs_of(ops[3])
            self.r = self.ab | self.c
            self.passes = 8 if "32x32" in op else 4
        elif self.valu:
            if op.startswith("v_cmp"):
                self.w = regs_of(ops[0]); self.r = set().union(*[regs_of(x) for x in ops[1:]])
            elif op.startswith("v_permlane"):
                self.w = regs_of(ops[0]) | regs_of(ops[1]); self.r = set(self.w)
            else:
                self.w = regs_of(ops[0]); self.r = set().union(set(), *[regs_of(x) for x in ops[1:]])
                if op.startswith(("v_fmac", "v_dot2c", "v_writelane")) or self.dpp: self.r |= self.w
                if op.startswith(("v_add_co", "v_addc_co", "v_sub_co")): self.w |= regs_of(ops[1])
        elif self.ds:
            if op.startswith(("ds_read", "ds_bpermute", "ds_swizzle")):
                self.w = regs_of(ops[0]); self.r = set().union(set(), *[regs_of(x) for x in ops[1:]])
            else:
                self.r = set().union(set(), *[regs_of(x) for x in ops])
        elif self.vmem:
            lds = body.endswith(" lds") or " lds " in body or "_lds_" in op
            self.lds = lds
            if "load" in op and not lds:
                self.w = regs_of(ops[0]); self.r = set().union(set(), *[regs_of(x) for x in ops[1:]])
            else:
                self.r = set().union(set(), *[regs_of(x) for x in ops])
                if lds: self.r.add(("s", "m0"))
                if "store" in op and ("x4" in op or "x3" in op):
                    self.sdata = regs_of(ops[0]) if op.startswith("buffer") else regs_of(ops[1])
        elif self.salu:
            if ops and not op.startswith(("s_cmp", "s_waitcnt", "s_nop", "s_branch", "s_cbranch", "s_barrier", "s_endpgm", "s_setprio", "s_sleep")):
                self.w = regs_of(ops[0]); self.r = set().union(set(), *[regs_of(x) for x in ops[1:]])
                if "saveexec" in op: self.w.add(("s", "exec"))
            else:
                self.r = set().union(set(), *[regs_of(x) for x in ops])

def isv(x): return x[0] in "va"

def need(p, c):
    n = 0
    pw_v = {x for x in p.w if isv(x)}
    pw_s = {x for x in p.w if x[0] == "s"}
    if p.valu:
        if c.mfma and pw_v & c.r: n = max(n, 2)
        if c.valu and c.dpp and pw_v & c.r: n = max(n, 2)
        if c.op.startswith("v_permlane") and pw_v & c.r: n = max(n, 2)
        if c.op.startswith(("v_readlane", "v_readfirstlane")) and pw_v & c.r: n = max(n, 1)
        if p.trans and c.valu and pw_v & c.r: n = max(n, 1)
        if p.trans and (c.ds or c.vmem) and pw_v & c.r: n = max(n, 1)
        if c.vmem and pw_s & c.r: n = max(n, 5)
        if c.valu and pw_s & c.r: n = max(n, 4 if c.op.startswith(("v_readlane", "v_writelane")) else 2)
        if c.salu and pw_s & c.r: n = max(n, 1)
    if p.mfma:
        lat = 8 if p.passes == 4 else 12
        if c.mfma:
            if p.w & c.ab: n = max(n, lat)
            if p.w & c.c and not (p.w == c.c and p.passes == c.passes and p.op == c.op): n = max(n, lat - 2)
            if p.w & c.w and not (p.w & c.c): n = max(n, lat - 2)
        elif (c.valu or c.ds or c.vmem) and p.w & (c.r | c.w): n = max(n, lat)
        if c.valu and p.c & c.w: n = max(n, 3 if p.passes == 4 else 7)
    if p.salu and ("s", "m0") in p.w and c.vmem and getattr(c, "lds", False): n = max(n, 1)
    if p.salu and ("s", "exec") in p.w and c.valu and c.dpp: n = max(n, 0)
    if p.sdata and (c.valu or c.mfma) and p.sdata & c.w: n = max(n, 2)
    if p.sdata and (c.ds or c.vmem) and p.sdata & c.w: n = max(n, 1)
    return n

def check_hazards(lines, tag=""):
    ins = [I(x) for x in lines if not (x.endswith(":") or x.startswith((".", ";")))]
    bad = 0
    for j, c in enumerate(ins):
        d = 0
        for i in range(j - 1, max(-1, j - 14), -1):
            p = ins[i]
            n = need(p, c)
            if n > d:
                bad += 1
                print(f"HAZARD {tag}: need {n} have {d}: [{p.line}] -> [{c.line}]")
            d += p.ws
            if d >= 12: break
    return bad

def kernel_text(name, body, vgpr, accum, sgpr=102):
    return f""".text
.globl {name}
.p2align 8
.type {name},@function
{name}:
{body}
.section .rodata,"a"
.p2align 6
.amdhsa_kernel {name}
  .amdhsa_next_free_vgpr {vgpr}
  .amdhsa_next_free_sgpr {sgpr}
  .amdhsa_accum_offset {accum}
  .amdhsa_group_segment_fixed_size 0
  .amdhsa_kernarg_size 104
  .amdhsa_user_sgpr_count 2
  .amdhsa_user_sgpr_kernarg_segment_ptr 1
  .amdhsa_system_sgpr_workgroup_id_x 1
.end_amdhsa_kernel
"""

def srd(A, d, base, off_lo, size):
    A(f"s_add_u32 {s(d)}, {s(base)}, {off_lo}", f"s_addc_u32 {s(d+1)}, {s(base+1)}, 0",
      f"s_mov_b32 {s(d+2)}, {size}", f"s_mov_b32 {s(d+3)}, 0x20000")
```

```python
from core import *
from layout import *

def allred32(A, x, t, op):
    for r in (8, 4, 2, 1):
        A("s_nop 1", f"{op}_dpp {v(x)}, {v(x)}, {v(x)} row_ror:{r} row_mask:0xf bank_mask:0xf")
    A(f"v_mov_b32 {v(t)}, {v(x)}", "s_nop 1", f"v_permlane16_swap_b32 {v(x)}, {v(t)}", "s_nop 1",
      f"{op} {v(x)}, {v(x)}, {v(t)}")

def rbf(A, d, x):
    A(f"v_cvt_pk_bf16_f32 {v(d)}, {v(x)}, {v(x)}", f"v_lshlrev_b32 {v(d)}, 16, {v(d)}")

def gen():
    A = Asm()
    A("s_cmp_ge_u32 s2, 256", "s_cbranch_scc1 K1_END")
    A("s_load_dwordx2 s[24:25], s[0:1], 0", "s_load_dwordx2 s[26:27], s[0:1], 48", "s_load_dwordx2 s[28:29], s[0:1], 96")
    A("s_lshl_b32 s3, s2, 3")
    A("v_lshrrev_b32 v3, 5, v0", "v_add_u32 v3, s3, v3")
    A("v_and_b32 v4, 31, v0")
    A("v_lshlrev_b32 v2, 3, v4")
    A("s_movk_i32 s16, 1280", "v_mad_u32_u24 v1, v3, s16, v2")
    A("s_waitcnt lgkmcnt(0)")
    srd(A, 4, 24, 0, 2048 * 1280)
    srd(A, 8, 26, 0, 1280)
    srd(A, 12, 28, 0, "0x400000")
    for i in range(5): A(f"buffer_load_dwordx2 {v(10+2*i,2)}, v1, s[4:7], 0 offen offset:{256*i}")
    for i in range(5): A(f"buffer_load_dwordx2 {v(20+2*i,2)}, v2, s[8:11], 0 offen offset:{256*i}")
    A("v_lshrrev_b32 v5, 4, v3", "s_movk_i32 s16, 20480", "v_mul_u32_u24 v5, s16, v5")
    A("v_lshrrev_b32 v6, 3, v4", "v_lshl_add_u32 v5, v6, 10, v5")
    A("v_bfe_u32 v6, v4, 1, 2", "v_lshl_add_u32 v5, v6, 8, v5")
    A("v_and_b32 v6, 15, v3", "v_lshl_add_u32 v5, v6, 4, v5")
    A("v_and_b32 v6, 1, v4", "v_lshl_add_u32 v5, v6, 3, v5")
    for i in range(1, 5): A(f"s_movk_i32 {s(16+i)}, {4096*i}")
    A("s_mov_b32 s21, 0xffff0000", "s_mov_b32 s22, 0x3acccccd")
    A("s_lshl_b32 s23, s2, 10", "v_lshl_add_u32 v7, v0, 2, s23", "v_mov_b32 v8, 0",
      "s_movk_i32 s23, 2560", "v_cmp_gt_u32 vcc, s23, v7", f"s_mov_b32 s30, {Y_OFF}",
      "s_and_saveexec_b64 s[32:33], vcc", "s_cbranch_execz K1_NOZ",
      "buffer_store_dword v8, v7, s[12:15], s30 offen", "K1_NOZ:", "s_mov_b64 exec, s[32:33]")
    A("s_waitcnt vmcnt(5)")
    for i in range(10):
        A(f"v_lshlrev_b32 {v(30+2*i)}, 16, {v(10+i)}", f"v_and_b32 {v(31+2*i)}, s21, {v(10+i)}")
    for i in range(10): A(f"v_add_f32 {v(50+i)}, {v(30+2*i)}, {v(31+2*i)}")
    for i in range(5): A(f"v_add_f32 {v(50+i)}, {v(50+i)}, {v(55+i)}")
    A("v_add_f32 v50, v50, v51", "v_add_f32 v52, v52, v53", "v_add_f32 v50, v50, v54", "v_add_f32 v50, v50, v52")
    allred32(A, 50, 51, "v_add_f32")
    A("v_mul_f32 v50, s22, v50")
    for i in range(20): A(f"v_sub_f32 {v(60+i)}, {v(30+i)}, v50")
    for i in range(4): A(f"v_mul_f32 {v(52+i)}, {v(60+i)}, {v(60+i)}")
    for i in range(4, 20): A(f"v_fmac_f32 {v(52+i%4)}, {v(60+i)}, {v(60+i)}")
    A("v_add_f32 v52, v52, v53", "v_add_f32 v54, v54, v55", "v_add_f32 v52, v52, v54")
    allred32(A, 52, 51, "v_add_f32")
    A("v_mul_f32 v52, s22, v52")
    rbf(A, 50, 50)
    rbf(A, 52, 52)
    A("v_add_f32 v52, 0x3727c5ac, v52")
    rbf(A, 52, 52)
    A("v_sqrt_f32 v52, v52", "s_nop 0")
    rbf(A, 52, 52)
    A("v_rcp_f32 v52, v52")
    for i in range(20): A(f"v_sub_f32 {v(30+i)}, {v(30+i)}, v50")
    for i in range(10): A(f"v_cvt_pk_bf16_f32 {v(10+i)}, {v(30+2*i)}, {v(31+2*i)}")
    for i in range(10):
        A(f"v_lshlrev_b32 {v(30+2*i)}, 16, {v(10+i)}", f"v_and_b32 {v(31+2*i)}, s21, {v(10+i)}")
    for i in range(20): A(f"v_mul_f32 {v(30+i)}, {v(30+i)}, v52")
    for i in range(10): A(f"v_cvt_pk_bf16_f32 {v(10+i)}, {v(30+2*i)}, {v(31+2*i)}")
    for i in range(5):
        A(f"buffer_store_dwordx2 {v(10+2*i,2)}, v5, s[12:15], {s(16+i) if i else '0'} offen")
    A("s_waitcnt vmcnt(5)")
    for i in range(10):
        A(f"v_lshlrev_b32 {v(30+2*i)}, 16, {v(10+i)}", f"v_and_b32 {v(31+2*i)}, s21, {v(10+i)}")
        A(f"v_lshlrev_b32 {v(60+2*i)}, 16, {v(20+i)}", f"v_and_b32 {v(61+2*i)}, s21, {v(20+i)}")
    for i in range(4): A(f"v_mul_f32 {v(52+i)}, {v(30+i)}, {v(60+i)}")
    for i in range(4, 20): A(f"v_fmac_f32 {v(52+i%4)}, {v(30+i)}, {v(60+i)}")
    A("v_add_f32 v52, v52, v53", "v_add_f32 v54, v54, v55", "v_add_f32 v52, v52, v54")
    allred32(A, 52, 51, "v_add_f32")
    A("v_cvt_pk_bf16_f32 v52, v52, v52")
    A("v_ashrrev_i32 v53, 31, v52", "v_and_b32 v53, 0x7fff, v53", "v_or_b32 v53, 0x8000, v53",
      "v_and_b32 v52, 0xffff, v52", "v_xor_b32 v52, v52, v53",
      "v_sub_u32 v53, 2047, v3", "v_lshl_or_b32 v52, v52, 11, v53")
    A("v_mov_b32 v53, v52", "s_nop 1", "v_permlane32_swap_b32 v52, v53", "s_nop 1", "v_max_u32 v52, v52, v53")
    A("v_lshrrev_b32 v6, 1, v3", "v_lshlrev_b32 v6, 2, v6", f"s_mov_b32 s30, {KEY_OFF}",
      "buffer_store_dword v52, v6, s[12:15], s30 offen")
    A("K1_END:", "s_endpgm")
    return A
```

```python
from core import *
from layout import *
from common import *

MF = "v_mfma_f32_16x16x32_bf16"
VK, VV, VW = 1, 2, 3
RK, RV, RW, RX = 4, 8, 16, 20
T0 = 24
Q = 32
ACC = 96
S = 96
P = 128
NM = 144
L = 160
TMP = 168
F = 224
KF, VF = 128, 192
VBASE = 65536
FG3, FD, FEX, FH, FVOTE = 131072, 141312, 161792, 162304, 162432
LDS = 163840
NFFN = 108
QSCALE = 0x3e0293ee
LMAX = 0x5d800000

def qf(q, t): return Q + 16 * q + 4 * t
def acc(q, T): return ACC + 32 * q + 4 * T
def kf(kt, t): return KF + 16 * kt + 4 * t
def vf(h, dt): return VF + 32 * h + 4 * dt
def of(dt, q): return 16 * dt + 4 * q
def xst(kt, q, sx): return 128 + 32 * ((kt + 2) % 4) + 8 * q + 4 * sx
def wslot(kt): return (kt + 2) % 4

def k_read(slot, kt, t): return f"ds_read_b128 {a(kf(kt,t),4)}, {v(RK+t)} offset:{slot*16384 + kt*1024}"
def v_read(slot, h, dt, p): return f"ds_read_b64_tr_b16 {a(vf(h,dt)+2*p,2)}, {v(RV+dt)} offset:{slot*16384 + (2*h+p)*1024}"
def k_dma(i): return f"buffer_load_dwordx4 {v(VK)}, s[4:7], s34 offen offset:{1024*i} lds"
def v_dma(i): return f"buffer_load_dwordx4 {v(VV)}, s[8:11], s35 offen offset:{1024*i} lds"
def k_m0(slot): return f"s_add_u32 m0, s33, {slot*16384}"
def v_m0(slot): return f"s_add_u32 m0, s33, {VBASE + slot*16384}"

class Stream:
    def __init__(self):
        self.mf = []; self.sc = []; self.mem = []; self.va = []
    def add(self, m):
        self.mf.append(m); self.sc.append([]); self.mem.append([]); self.va.append([])
    def emit(self, A, state=None, lag=6):
        pend = list(state) if state else []
        n = len(self.mf)
        out = []
        for i in range(n):
            out.append(self.mf[i])
            pre = list(self.sc[i])
            nxt = I(self.mf[(i + 1) % n]).ab
            hit = [k for k, (rg, t) in enumerate(pend) if rg & nxt]
            if hit:
                k = max(hit)
                while k + 1 < len(pend) and i - pend[k + 1][1] >= lag: k += 1
                left = len(pend) - 1 - k
                assert left <= 15
                pre.insert(0, f"s_waitcnt lgkmcnt({left})")
                pend = pend[k + 1:]
            out += pre
            for m in self.mem[i]:
                out.append(m)
                if m.startswith("ds_read"): pend.append((I(m).w, i))
            out += self.va[i]
        if A is not None: A(*out)
        return [(rg, t - n) for rg, t in pend]

def ffn_s0(A):
    A(f"s_cmp_ge_u32 s2, {NFFN}", "s_cbranch_scc1 K2_F0")
    A(f"v_lshlrev_b32 {v(T0)}, 4, v0", f"s_mov_b32 s40, {KEY_OFF}")
    for i in range(4): A(f"buffer_load_dwordx4 {v(F+4*i,4)}, {v(T0)}, s[24:27], s40 offen offset:{1024*i}")
    A("s_mul_i32 s41, s28, 10240", "s_add_u32 s41, s41, 32768", "s_cmp_eq_u32 s28, 3", f"s_cselect_b32 s41, {FG3}, s41")
    A("s_mul_i32 s42, s28, 160", f"v_lshrrev_b32 {v(T0)}, 1, v0", f"v_add_u32 {v(T0)}, s42, {v(T0)}", "s_movk_i32 s42, 3456",
      f"v_mul_u32_u24 {v(T0)}, s42, {v(T0)}", f"v_and_b32 {v(T0+1)}, 1, v0", f"v_lshl_add_u32 {v(T0)}, {v(T0+1)}, 4, {v(T0)}")
    for mat in range(2):
        srd(A, 52, 44 + 2 * mat, 0, 640 * 3456)
        A("s_lshl_b32 s42, s2, 5")
        for i in range(5):
            A(f"s_add_u32 m0, s41, {mat*5120 + i*1024}")
            A("s_nop 0" if i == 0 else f"s_add_u32 s42, s42, {32*3456}")
            A(f"buffer_load_dwordx4 {v(T0)}, s[52:55], s42 offen lds")
    srd(A, 52, 48, 0, 1728 * 1280)
    A("s_mul_i32 s42, s2, 20480", "s_mul_i32 s43, s28, 320", "s_add_u32 s42, s42, s43",
      "s_mul_i32 s56, s28, 5120", f"s_add_u32 s56, s56, {FD}", "s_movk_i32 s57, 3277", "s_movk_i32 s58, 1280")
    for i in range(5):
        A(f"v_add_u32 {v(T0)}, {64*i}, v0", f"v_mul_u32_u24 {v(T0+1)}, s57, {v(T0)}", f"v_lshrrev_b32 {v(T0+1)}, 16, {v(T0+1)}",
          f"v_mul_u32_u24 {v(T0+2)}, 20, {v(T0+1)}", f"v_sub_u32 {v(T0+2)}, {v(T0)}, {v(T0+2)}", f"v_lshlrev_b32 {v(T0+2)}, 4, {v(T0+2)}",
          f"s_add_u32 m0, s56, {1024*i}", f"v_mad_u32_u24 {v(T0)}, {v(T0+1)}, s58, {v(T0+2)}",
          f"buffer_load_dwordx4 {v(T0)}, s[52:55], s42 offen lds")
    A("K2_F0:")

def ffn_s1(A, nafter):
    A(f"s_cmp_ge_u32 s2, {NFFN}", "s_cbranch_scc1 K2_F1")
    A(f"s_waitcnt vmcnt({nafter})")
    argmax_keys(A, F, T0, 40)
    A("s_and_b32 s40, s40, 2047", "s_sub_u32 s40, 2047, s40", "s_lshr_b32 s42, s40, 4", "s_mul_i32 s42, s42, 20480",
      "s_and_b32 s40, s40, 15", "s_lshl_b32 s40, s40, 4", "s_add_u32 s42, s42, s40", "s_mul_i32 s40, s28, 5120", "s_add_u32 s42, s42, s40",
      f"v_lshrrev_b32 {v(T0)}, 4, v0", f"v_lshlrev_b32 {v(T0)}, 8, {v(T0)}")
    for i in range(4): A(f"buffer_load_dwordx4 {a(32+4*i,4)}, {v(T0)}, s[24:27], s42 offen offset:{1024*i}")
    A("s_add_u32 s42, s42, 4096", f"buffer_load_dwordx4 {a(48,4)}, {v(T0)}, s[24:27], s42 offen")
    A("K2_F1:")

def ffn_s2(A, nafter):
    A(f"s_cmp_ge_u32 s2, {NFFN}", "s_cbranch_scc1 K2_F2")
    A(f"v_lshrrev_b32 {v(T0)}, 4, v0", f"v_bfe_u32 {v(T0+1)}, v0, 2, 2", f"v_lshl_add_u32 {v(T0)}, {v(T0)}, 3, {v(T0+1)}",
      f"v_and_b32 {v(T0+1)}, 3, v0", f"v_lshlrev_b32 {v(T0+1)}, 3, {v(T0+1)}", f"v_lshl_add_u32 {v(T0)}, {v(T0)}, 5, {v(T0+1)}",
      f"v_add_u32 {v(T0)}, s41, {v(T0)}")
    A(f"s_waitcnt vmcnt({nafter})")
    for mat in range(2):
        for i in range(5):
            for p in range(2):
                A(f"ds_read_b64_tr_b16 {a(64+20*mat+4*i+2*p,2)}, {v(T0)} offset:{mat*5120 + i*1024 + p*128}")
        if mat == 0: A(f"v_and_b32 {v(T0+1)}, 15, v0", f"v_lshlrev_b32 {v(T0+1)}, 4, {v(T0+1)}")
    A("s_lshl_b32 s40, s28, 2", f"s_add_u32 s40, s40, {FEX}", f"v_add_u32 {v(T0+1)}, s40, {v(T0+1)}")
    for mat in range(2):
        A(f"s_waitcnt lgkmcnt({10*(1-mat)})")
        for i in range(5):
            A(f"{MF} {v(F+4*mat,4)}, {a(32+4*i,4)}, {a(64+20*mat+4*i,4)}, {v(F+4*mat,4) if i else 0}")
    A("s_nop 2", f"ds_write_b32 {v(T0+1)}, {v(F)}", "s_nop 3", f"ds_write_b32 {v(T0+1)}, {v(F+4)} offset:256", "s_waitcnt lgkmcnt(0)")
    A("K2_F2:")

def ffn_s3(A):
    A(f"s_cmp_ge_u32 s2, {NFFN}", "s_cbranch_scc1 K2_F3")
    t = T0
    A(f"v_and_b32 {v(t+3)}, 15, v0", f"v_lshlrev_b32 {v(t)}, 4, {v(t+3)}", f"v_add_u32 {v(t)}, {FEX}, {v(t)}",
      f"ds_read_b128 {v(F,4)}, {v(t)}", f"ds_read_b128 {v(F+4,4)}, {v(t)} offset:256")
    A(f"v_lshrrev_b32 {v(t+1)}, 2, v0", f"v_mul_u32_u24 {v(t+1)}, 320, {v(t+1)}", f"v_and_b32 {v(t+2)}, 3, v0",
      f"v_lshl_add_u32 {v(t+1)}, {v(t+2)}, 3, {v(t+1)}", f"v_add_u32 {v(t+1)}, s56, {v(t+1)}")
    for nt in range(10): A(f"ds_read_b64_tr_b16 {a(64+2*nt,2)}, {v(t+1)} offset:{nt*32}")
    A("s_waitcnt lgkmcnt(10)")
    for m in range(2):
        b = F + 4 * m
        A(f"v_add_f32 {v(b)}, {v(b)}, {v(b+1)}", f"v_add_f32 {v(b+2)}, {v(b+2)}, {v(b+3)}", f"v_add_f32 {v(b)}, {v(b)}, {v(b+2)}")
    A(f"v_cvt_pk_bf16_f32 {v(F)}, {v(F)}, {v(F+4)}", f"v_and_b32 {v(F+4)}, 0xffff0000, {v(F)}", f"v_lshlrev_b32 {v(F)}, 16, {v(F)}",
      f"v_mul_f32 {v(F+1)}, 0xbfb8aa3b, {v(F)}", f"v_exp_f32 {v(F+1)}, {v(F+1)}", "s_nop 0", f"v_add_f32 {v(F+1)}, 1.0, {v(F+1)}",
      f"v_rcp_f32 {v(F+1)}, {v(F+1)}", "s_nop 0", f"v_mul_f32 {v(F)}, {v(F)}, {v(F+1)}",
      f"v_cvt_pk_bf16_f32 {v(F)}, {v(F)}, {v(F)}", f"v_lshlrev_b32 {v(F)}, 16, {v(F)}", f"v_mul_f32 {v(F)}, {v(F)}, {v(F+4)}",
      f"v_cvt_pk_bf16_f32 {v(F)}, {v(F)}, {v(F)}")
    A("s_lshl_b32 s40, s28, 5", f"s_add_u32 s40, s40, {FH}", f"v_lshl_add_u32 {v(t)}, {v(t+3)}, 1, s40", f"ds_write_b16 {v(t)}, {v(F)}",
      f"v_lshrrev_b32 {v(t)}, 4, v0", f"v_lshl_add_u32 {v(t)}, {v(t)}, 3, s40", "s_waitcnt lgkmcnt(0)",
      f"ds_read_b64 {v(F,2)}, {v(t)}", "s_mul_i32 s40, s28, 640", f"s_add_u32 s40, s40, {Y_OFF}", f"v_lshlrev_b32 {v(t+3)}, 2, {v(t+3)}", "s_waitcnt lgkmcnt(0)")
    for nt in range(10): A(f"v_mfma_f32_16x16x16_bf16 {a(84+4*nt,4)}, {v(F,2)}, {a(64+2*nt,2)}, 0")
    A("s_mov_b64 exec, 0xffff")
    for nt in range(10):
        if nt >= 8: A("s_nop 1")
        A(f"buffer_atomic_add_f32 {a(84+4*nt)}, {v(t+3)}, s[24:27], s40 offen offset:{64*nt}")
    A("s_mov_b64 exec, -1", "s_nop 1")
    A("K2_F3:")

def negm_from_max(A, ms):
    xgroup_multi(A, ms, [T0 + i for i in range(4)], "v_max_f32")
    for q in range(4):
        for r in range(4): A(f"v_sub_f32 {v(NM+4*q+r)}, 0, {v(ms[q])}")

def main_loop():
    st = Stream()
    for tile in range(4):
        base = len(st.mf)
        for q in range(4):
            n = q
            qn, qp = (q + 1) % 4, (q - 1) % 4
            sb = S + 16 * ((n + 1) % 2)
            w0 = len(st.mf)
            for kt in range(4):
                for t in range(4):
                    c = v(NM + 4 * qn, 4) if t == 0 else v(sb + 4 * kt, 4)
                    st.add(f"{MF} {v(sb+4*kt,4)}, {a(kf(kt,t),4)}, {v(qf(qn,t),4)}, {c}")
            pb = P + 8 * ((n - 1) % 2)
            for dt in range(8):
                for h in range(2):
                    st.add(f"{MF} {a(of(dt,qp),4)}, {a(vf(h,dt),4)}, {v(pb+4*h,4)}, {a(of(dt,qp),4)}")
            sc = S + 16 * (n % 2); pc = P + 8 * (n % 2)
            for i in range(16):
                st.va[w0 + 2*i].append(f"v_exp_f32 {v(sc+i)}, {v(sc+i)}")
                l = L + 2 * q + (i & 1)
                st.va[w0 + 2*i + 1].append(f"v_add_f32 {v(l)}, {v(l)}, {v(sc+i)}")
                if i & 1: st.va[w0 + 2*i + 1].append(f"v_cvt_pk_bf16_f32 {v(pc + i//2)}, {v(sc+i-1)}, {v(sc+i)}")
        st.sc[base + 15] += ["s_waitcnt vmcnt(16)"]
        st.sc[base + 16] += ["s_barrier"]
        g = base + 17
        for dt in range(8):
            for h in range(2):
                for p in range(2):
                    st.mem[g].append(v_read(tile, h, dt, p)); g += 1
        g = base + 65
        for kt in range(4):
            for t in range(4):
                st.mem[g].append(k_read((tile + 1) % 4, kt, t)); g += 2
        st.sc[base + 50] += ["s_cmp_lt_u32 s35, 0x80000"]
        st.sc[base + 51] += ["s_cselect_b32 s10, 0x80000, 0"]
        st.sc[base + 52] += [v_m0((tile + 3) % 4)]
        gv = [53, 57, 61, 101]; gk = [105, 109, 113, 117]
        for i in range(4): st.mem[base + gv[i]].append(v_dma(i))
        st.sc[base + 98] += ["s_cmp_lt_u32 s34, 0x80000"]
        st.sc[base + 99] += ["s_cselect_b32 s6, 0x80000, 0"]
        st.sc[base + 102] += [k_m0(tile)]
        st.sc[base + 103] += ["s_add_u32 s35, s35, 16384"]
        for i in range(4): st.mem[base + gk[i]].append(k_dma(i))
        st.sc[base + 118] += ["s_add_u32 s34, s34, 16384"]
    return st

def gen(stamps=False):
    A = Asm()
    A("s_cmp_ge_u32 s2, 256", "s_cbranch_scc1 K2_END")
    stamp(A, 0, stamps)
    A("s_load_dwordx4 s[36:39], s[0:1], 8", "s_load_dwordx2 s[60:61], s[0:1], 24", "s_load_dwordx4 s[44:47], s[0:1], 56",
      "s_load_dwordx2 s[48:49], s[0:1], 72", "s_load_dwordx2 s[50:51], s[0:1], 96")
    t = T0
    A(f"v_lshrrev_b32 {v(t)}, 6, v0", "v_and_b32 v0, 63, v0", f"v_readfirstlane_b32 s28, {v(t)}")
    A("s_and_b32 s29, s2, 7", "s_lshl_b32 s29, s29, 2", "s_lshr_b32 s30, s2, 3", "s_and_b32 s31, s30, 3", "s_add_u32 s29, s29, s31",
      "s_lshr_b32 s30, s30, 2", "s_lshl_b32 s30, s30, 4", "s_lshl_b32 s31, s28, 2", "s_add_u32 s30, s30, s31")
    A("s_lshl_b32 s33, s28, 12")
    A(f"v_lshrrev_b32 {v(t)}, 4, v0", f"v_and_b32 {v(t+1)}, 15, v0", "s_lshl_b32 s31, s28, 4", f"v_add_u32 {v(t+2)}, s31, {v(t)}")
    A(f"v_lshlrev_b32 {v(t+3)}, 2, {v(t)}", f"v_xor_b32 {v(t+3)}, {v(t+3)}, {v(t+1)}", f"v_lshlrev_b32 {v(t+3)}, 4, {v(t+3)}",
      f"v_lshl_add_u32 {v(VW)}, {v(t+2)}, 13, {v(t+3)}")
    for q in range(4): A(f"v_lshlrev_b32 {v(RX+q)}, 4, v0" if q == 0 else f"v_add_u32 {v(RX+q)}, {20480*q}, {v(RX)}")
    A("s_waitcnt lgkmcnt(0)")
    A("s_lshl_b32 s31, s29, 8"); srd(A, 12, 60, "s31", 639 * 8192 + 256)
    A("s_mul_i32 s31, s30, 20480"); srd(A, 16, 50, "s31", 4 * 20480)
    vm = VM()
    def wq_dma(kt):
        out = [f"s_add_u32 m0, s33, {VBASE + wslot(kt)*16384}"]
        for i in range(4):
            out += [f"s_mov_b32 s32, {kt*524288 + i*31744}", f"buffer_load_dwordx4 {v(VW)}, s[12:15], s32 offen offset:{1024*i} lds"]
        return out
    def xn_ld(kt, q, sx): return f"buffer_load_dwordx4 {a(xst(kt,q,sx),4)}, {v(RX+q)}, s[16:19], s62 offen offset:{1024*sx}"
    for kt in range(4):
        A(*wq_dma(kt))
        for i in range(4): vm.issue(("w", kt))
        if kt < 3:
            A(f"s_movk_i32 s62, {kt*2048}")
            for q in range(4):
                for sx in range(2): A(xn_ld(kt, q, sx)); vm.issue(("x", kt))
    A("s_lshl_b32 s31, s29, 19"); srd(A, 4, 36, "s31", "0x80000"); srd(A, 8, 38, "s31", "0x80000")
    A("s_lshl_b32 s31, s30, 17", "s_lshl_b32 s32, s29, 12", "s_add_u32 s31, s31, s32", f"s_add_u32 s31, s31, {OF_OFF}")
    srd(A, 20, 50, "s31", 3 * 131072 + 4096)
    srd(A, 24, 50, 0, "0x400000")
    A("s_lshl_b32 s31, s28, 2", f"v_or_b32 {v(t+3)}, s31, {v(t)}", f"v_xor_b32 {v(t+3)}, {v(t+3)}, {v(t+1)}", f"v_lshlrev_b32 {v(t+3)}, 4, {v(t+3)}",
      f"v_lshl_add_u32 {v(VK)}, {v(t+2)}, 8, {v(t+3)}")
    A("s_and_b32 s31, s31, 4", f"v_or_b32 {v(t+3)}, s31, {v(t)}", f"v_lshlrev_b32 {v(t+3)}, 1, {v(t+3)}", f"v_xor_b32 {v(t+3)}, {v(t+3)}, {v(t+1)}",
      f"v_lshlrev_b32 {v(t+3)}, 4, {v(t+3)}", f"v_lshl_add_u32 {v(VV)}, {v(t+2)}, 8, {v(t+3)}")
    A(f"v_and_b32 {v(t+2)}, 3, v0", f"v_bfe_u32 {v(t+3)}, v0, 2, 2")
    A(f"v_lshlrev_b32 {v(t+4)}, 8, {v(t+2)}", f"v_lshl_add_u32 {v(t+4)}, {v(t+3)}, 12, {v(t+4)}")
    for k in range(4):
        A(f"v_or_b32 {v(t+5)}, {4*k}, {v(t)}", f"v_xor_b32 {v(t+5)}, {v(t+5)}, {v(t+1)}", f"v_lshl_add_u32 {v(RK+k)}, {v(t+5)}, 4, {v(t+4)}")
    A(f"v_lshl_add_u32 {v(t+4)}, {v(t)}, 4, {v(t+3)}", f"v_lshlrev_b32 {v(t+4)}, 8, {v(t+4)}", f"v_lshl_add_u32 {v(t+4)}, {v(t+2)}, 3, {v(t+4)}",
      f"v_add_u32 {v(t+4)}, {VBASE}, {v(t+4)}", f"v_and_b32 {v(t+5)}, 1, {v(t)}", f"v_lshl_or_b32 {v(t+5)}, {v(t+5)}, 2, {v(t+3)}")
    for k in range(8): A(f"v_xor_b32 {v(t+6)}, {k}, {v(t+5)}", f"v_lshl_add_u32 {v(RV+k)}, {v(t+6)}, 5, {v(t+4)}")
    A(f"v_lshl_add_u32 {v(t+4)}, {v(t)}, 3, {v(t+3)}", f"v_lshlrev_b32 {v(t+4)}, 8, {v(t+4)}", f"v_lshl_add_u32 {v(t+4)}, {v(t+2)}, 4, {v(t+4)}",
      f"v_add_u32 {v(t+4)}, {VBASE}, {v(t+4)}")
    for k in range(4): A(f"v_xor_b32 {v(t+6)}, {k}, {v(t+3)}", f"v_lshl_add_u32 {v(RW+k)}, {v(t+6)}, 6, {v(t+4)}")
    A(f"v_mov_b32 {v(t+6)}, {FVOTE}", f"v_mov_b32 {v(t+7)}, 0", f"ds_write_b32 {v(t+6)}, {v(t+7)}")
    A("s_mov_b32 s63, 0", "s_mov_b32 s34, 0", "s_mov_b32 s35, 0")
    ffn_s0(A)
    nkey = len(vm.q)
    def w_read(G, sx, p):
        kt, T = divmod(G, 8)
        return f"ds_read_b64_tr_b16 {a(8*(G%4)+4*sx+2*p,2)}, {v(RW+T//2)} offset:{wslot(kt)*16384 + sx*8192 + p*1024 + 8*(T&1)}"
    A(f"s_waitcnt vmcnt({vm.n_after([('w',0),('x',0)])}) lgkmcnt(0)", "s_barrier")
    stamp(A, 1, stamps)
    for G in range(2):
        for sx in range(2):
            for p in range(2): A(w_read(G, sx, p))
    A("s_waitcnt lgkmcnt(4)")
    state = [(I(w_read(1, sx, p)).w, -8) for sx in range(2) for p in range(2)]
    nx = None
    for kt in range(10):
        st = Stream()
        for T in range(8):
            for q in range(4):
                for sx in range(2):
                    c = 0 if (kt == 0 and sx == 0) else v(acc(q, T), 4)
                    st.add(f"{MF} {v(acc(q,T),4)}, {a(8*((kt*8+T)%4)+4*sx,4)}, {a(xst(kt,q,sx),4)}, {c}")
        for T in range(8):
            G = kt * 8 + T + 2
            if G < 80:
                k = 0
                for sx in range(2):
                    for p in range(2):
                        st.mem[8*T + 1 + k].append(w_read(G, sx, p)); k += 1
        if kt + 3 < 10:
            st.sc[4].append(f"s_movk_i32 s62, {(kt+3)*2048}")
            k = 0
            for q in range(4):
                for sx in range(2):
                    st.mem[5 + 8*(k//2) + (k & 1)].append(xn_ld(kt + 3, q, sx)); vm.issue(("x", kt + 3)); k += 1
        m = kt + 1
        need = [("w", m)] if m < 10 else []
        if m == 9: need.append(("k", 0))
        if need: st.sc[46].append(f"s_waitcnt vmcnt({vm.n_after(need)})")
        st.sc[47].append("s_barrier")
        def put(lines, g):
            for x in lines:
                if x.startswith("s_"): st.sc[g].append(x)
                else:
                    st.mem[g + 1].append(x); g += 2
            return g
        g = 48
        if 2 <= m <= 7:
            g = put(wq_dma(m + 2), g)
            for i in range(4): vm.issue(("w", m + 2))
        if 8 <= m <= 10:
            g = put([v_m0(m - 8)] + [v_dma(i) for i in range(4)], g)
            st.sc[g].append("s_add_u32 s35, s35, 16384")
            for i in range(4): vm.issue(("v", m - 8))
        kk = {5: 0, 6: 1, 9: 2, 10: 3}.get(m)
        if kk is not None:
            g = put([k_m0(kk)] + [k_dma(i) for i in range(4)], g)
            st.va[63].append("s_add_u32 s34, s34, 16384")
            for i in range(4): vm.issue(("k", kk))
        if m < 10: st.va[63].append(f"s_waitcnt vmcnt({vm.n_after([('x', m)])})")
        if kt == 9:
            k = 0
            for ktt in range(4):
                for tt in range(4):
                    st.mem[5 + 8*(k//3) + (k % 3)].append(k_read(0, ktt, tt)); k += 1
        if kt in (7, 8):
            for i in range(48): st.va[i + 8 if i < 38 else i + 14].append(f"v_accvgpr_write_b32 {a(32 + 48*(kt-7) + i)}, 0")
        state = st.emit(A, state)
        if kt == 1:
            ffn_s1(A, len(vm.q) - nkey + 15); nx = len(vm.q)
        if kt == 3: ffn_s2(A, len(vm.q) - nx)
        if kt == 4: ffn_s3(A)
    stamp(A, 2, stamps)
    A(f"s_mov_b32 s40, {QSCALE}", "s_nop 1")
    for q in range(4):
        for i in range(32): A(f"v_mul_f32 {v(ACC+32*q+i)}, s40, {v(ACC+32*q+i)}")
        for i in range(16): A(f"v_cvt_pk_bf16_f32 {v(Q+16*q+i)}, {v(ACC+32*q+2*i)}, {v(ACC+32*q+2*i+1)}")
    A("s_waitcnt lgkmcnt(0)")
    for q in range(4):
        for tt in range(4):
            A(f"{MF} {v(TMP+4*q,4)}, {a(kf(0,tt),4)}, {v(qf(q,tt),4)}, {v(TMP+4*q,4) if tt else 0}")
            for i in range(2): A(f"v_accvgpr_write_b32 {a(8*q + 2*tt + i)}, 0")
    for i in range(8): A(f"v_mov_b32 {v(L+i)}, 0")
    for i in range(8): A(f"v_mov_b32 {v(P+8+i)}, 0")
    for q in range(4):
        A(f"v_max3_f32 {v(TMP+4*q)}, {v(TMP+4*q)}, {v(TMP+4*q+1)}, {v(TMP+4*q+2)}", f"v_max_f32 {v(TMP+4*q)}, {v(TMP+4*q)}, {v(TMP+4*q+3)}")
    negm_from_max(A, [TMP + 4*q for q in range(4)])
    A("K2_ATT:", "s_nop 1")
    for kt in range(4):
        for tt in range(4):
            A(f"{MF} {v(S+4*kt,4)}, {a(kf(kt,tt),4)}, {v(qf(0,tt),4)}, {v(S+4*kt,4) if tt else v(NM,4)}")
    A("s_mov_b32 s64, 8")
    stamp(A, 3, stamps)
    st = main_loop()
    state = st.emit(None, [])
    A(".p2align 5", "K2_LOOP:")
    b0 = len(A.L)
    state2 = st.emit(A, state)
    assert [(x, y) for x, y in state] == [(x, y) for x, y in state2]
    A("s_sub_u32 s64, s64, 1", "s_cmp_lg_u32 s64, 0", "s_cbranch_scc1 K2_LOOP")
    body = A.L[b0:]
    stamp(A, 4, stamps)
    for dt in range(8):
        for h in range(2):
            A(f"{MF} {a(of(dt,3),4)}, {a(vf(h,dt),4)}, {v(P+8+4*h,4)}, {a(of(dt,3),4)}")
            if dt < 2: A(f"v_add_f32 {v(L+2*(2*dt+h))}, {v(L+2*(2*dt+h))}, {v(L+2*(2*dt+h)+1)}")
    ls = [L + 2*q for q in range(4)]
    xgroup_multi(A, ls, [T0 + i for i in range(4)], "v_add_f32")
    A(f"v_add_f32 {v(T0+1)}, {v(ls[0])}, {v(ls[1])}", f"v_add_f32 {v(T0+2)}, {v(ls[2])}, {v(ls[3])}", f"v_add_f32 {v(T0+1)}, {v(T0+1)}, {v(T0+2)}",
      f"s_mov_b32 s40, {LMAX}", f"v_cmp_nge_f32 vcc, s40, {v(T0+1)}", f"v_mov_b32 {v(T0+2)}, {FVOTE}", f"v_mov_b32 {v(T0+3)}, 1")
    for q in range(4): A(f"v_rcp_f32 {v(ls[q])}, {v(ls[q])}")
    A("s_and_saveexec_b64 s[40:41], vcc", f"ds_write_b32 {v(T0+2)}, {v(T0+3)}", "s_mov_b64 exec, s[40:41]")
    A(f"v_lshlrev_b32 {v(T0)}, 4, v0")
    W = TMP
    for q in range(4):
        A(f"s_mov_b32 s40, {q*131072}")
        for e in range(4):
            w = W + 12 * (e & 1)
            for b in range(2):
                for r in range(4): A(f"v_accvgpr_read_b32 {v(w+4*b+r)}, {a(of(2*e+b,q)+r)}")
            for i in range(8): A(f"v_mul_f32 {v(w+i)}, {v(ls[q])}, {v(w+i)}")
            for i in range(4): A(f"v_cvt_pk_bf16_f32 {v(w+8+i)}, {v(w+2*i)}, {v(w+2*i+1)}")
            A(f"buffer_store_dwordx4 {v(w+8,4)}, {v(T0)}, s[20:23], s40 offen offset:{1024*e}")
    A("s_waitcnt lgkmcnt(0)", "s_barrier", f"ds_read_b32 {v(T0+3)}, {v(T0+2)}", "s_waitcnt lgkmcnt(0)", f"v_readfirstlane_b32 s40, {v(T0+3)}", "s_nop 0",
      "s_andn2_b32 s40, s40, s63", "s_cmp_lg_u32 s40, 0", "s_cbranch_scc1 K2_REDO")
    stamp(A, 5, stamps)
    stamp_store(A, stamps, 50, 1, 6, T0)
    A("K2_END:", "s_endpgm")
    A("K2_REDO:", "s_mov_b32 s63, 1", "s_mov_b32 s34, 0", "s_mov_b32 s6, 0x80000", "s_mov_b32 s10, 0x80000", "s_waitcnt vmcnt(0)")
    M = TMP + 16
    for q in range(4): A(f"v_mov_b32 {v(M+q)}, 0xff800000")
    A("K2_MAXL:", "s_barrier", k_m0(0), "s_nop 0")
    for i in range(4): A(k_dma(i))
    A("s_add_u32 s34, s34, 16384", "s_waitcnt vmcnt(0)", "s_barrier")
    for kt in range(4):
        for tt in range(4): A(k_read(0, kt, tt))
        if kt == 1: A("s_waitcnt lgkmcnt(0)")
    A("s_waitcnt lgkmcnt(0)")
    for q in range(4):
        for kt in range(4):
            for tt in range(4): A(f"{MF} {v(TMP+4*kt,4)}, {a(kf(kt,tt),4)}, {v(qf(q,tt),4)}, {v(TMP+4*kt,4) if tt else 0}")
        A("s_nop 7")
        for i in range(8): A(f"v_max3_f32 {v(M+q)}, {v(M+q)}, {v(TMP+2*i)}, {v(TMP+2*i+1)}")
    A("s_cmp_lt_u32 s34, 0x80000", "s_cbranch_scc1 K2_MAXL")
    negm_from_max(A, [M + q for q in range(4)])
    for i in range(128): A(f"v_accvgpr_write_b32 {a(i)}, 0")
    for i in range(8): A(f"v_mov_b32 {v(L+i)}, 0")
    for i in range(8): A(f"v_mov_b32 {v(P+8+i)}, 0")
    A("s_mov_b32 s34, 0", "s_mov_b32 s35, 0", "s_barrier")
    for j in range(4):
        if j > 0:
            A(v_m0(j - 1), "s_nop 0")
            for i in range(4): A(v_dma(i))
            A("s_add_u32 s35, s35, 16384")
        A(k_m0(j), "s_nop 0")
        for i in range(4): A(k_dma(i))
        A("s_add_u32 s34, s34, 16384")
    A("s_waitcnt vmcnt(24)", "s_barrier")
    for kt in range(4):
        for tt in range(4): A(k_read(0, kt, tt))
        if kt == 1: A("s_waitcnt lgkmcnt(0)")
    A("s_waitcnt lgkmcnt(0)", "s_branch K2_ATT")
    return A, body
```

```python
from core import *
from layout import *
from common import *

D = 4
ACC = 64
BF = 144
AF = 0
RING = 5120
EXCH = 4 * D * RING
LDS = EXCH + 4 * 15360

def acc(i, nt): return ACC + 20 * i + 4 * nt
def bf(st, i): return BF + 16 * st + 4 * i
def af(buf, nt): return AF + 20 * buf + 4 * nt

def gen(stamps=False):
    A = Asm()
    A("s_cmp_ge_u32 s2, 256", "s_cbranch_scc1 K3_END")
    stamp(A, 0, stamps)
    A("s_load_dwordx2 s[36:37], s[0:1], 0", "s_load_dwordx2 s[38:39], s[0:1], 32",
      "s_load_dwordx2 s[40:41], s[0:1], 80", "s_load_dwordx2 s[42:43], s[0:1], 96")
    A("v_lshrrev_b32 v1, 6, v0", "v_and_b32 v0, 63, v0", "v_readfirstlane_b32 s28, v1")
    A("s_and_b32 s29, s2, 7", "s_lshr_b32 s30, s2, 3", "s_and_b32 s31, s30, 3", "s_lshr_b32 s30, s30, 2")
    A("s_lshl_b32 s29, s29, 2", "s_add_u32 s29, s29, s31")
    A("v_lshlrev_b32 v1, 4, v0")
    for i in range(4):
        A(f"s_add_u32 s31, s28, {i}", "s_and_b32 s31, s31, 3", "s_lshl_b32 s31, s31, 17", f"v_add_u32 {v(2+i)}, s31, v1")
    A("s_movk_i32 s31, 6554", "s_movk_i32 s32, 1280")
    for i in range(5):
        A(f"v_add_u32 v20, {64*i}, v0", "v_mul_u32_u24 v21, s31, v20", "v_lshrrev_b32 v21, 16, v21",
          "v_mul_u32_u24 v22, 10, v21", "v_sub_u32 v22, v20, v22", "v_lshlrev_b32 v22, 4, v22",
          f"v_mad_u32_u24 {v(6+i)}, v21, s32, v22")
        if 0 < i < 4: A(f"v_subrev_u32 {v(6+i)}, {1024*i}, {v(6+i)}")
    A("v_lshrrev_b32 v20, 2, v0", "v_mul_u32_u24 v20, 160, v20", "v_and_b32 v21, 3, v0", "v_lshl_add_u32 v11, v21, 3, v20",
      f"s_mul_i32 s33, s28, {D*RING}", "v_add_u32 v11, s33, v11")
    A("s_waitcnt lgkmcnt(0)")
    A("s_lshl_b32 s31, s29, 19", f"s_add_u32 s31, s31, {OF_OFF}")
    srd(A, 4, 42, "s31", 4 * 131072)
    A("s_mul_i32 s31, s30, 160", f"s_mul_i32 s32, s28, {1024*1280}", "s_add_u32 s31, s31, s32")
    srd(A, 8, 38, "s31", 1023 * 1280 + 160)
    srd(A, 12, 36, 0, 2048 * 1280)
    srd(A, 16, 40, 0, 2048 * 1280)
    srd(A, 20, 42, 0, "0x400000")
    vm = VM()
    A(f"s_mov_b32 s31, {KEY_OFF}")
    for i in range(4):
        A(f"buffer_load_dwordx4 {v(208+4*i,4)}, v1, s[20:23], s31 offen offset:{1024*i}"); vm.issue("key")
    A("v_and_b32 v20, 15, v0", "v_lshrrev_b32 v21, 4, v0")
    A("s_lshl_b32 s34, s29, 6", "s_lshl_b32 s35, s28, 4", "s_add_u32 s34, s34, s35", "v_add_u32 v12, s34, v20")
    A("s_movk_i32 s32, 1280", "s_mul_i32 s35, s30, 160", "v_mul_u32_u24 v13, s32, v12", "v_lshl_add_u32 v13, v21, 3, v13", "v_add_u32 v13, s35, v13")
    for nt in range(5):
        A(f"buffer_load_dwordx2 {v(224+2*nt,2)}, v13, s[12:15], 0 offen offset:{32*nt}"); vm.issue("x")
    A("s_lshr_b32 s35, s34, 4", "s_mul_i32 s35, s35, 20480", "v_lshlrev_b32 v22, 4, v20", "v_and_b32 v23, 1, v21",
      "v_lshl_add_u32 v22, v23, 3, v22", "v_lshrrev_b32 v23, 1, v21", "s_mul_i32 s44, s30, 10")
    for nt in range(5):
        A(f"s_add_u32 s45, s44, {2*nt}", "v_add_u32 v24, s45, v23", "v_lshl_add_u32 v24, v24, 8, v22",
          f"buffer_load_dwordx2 {v(234+2*nt,2)}, v24, s[20:23], s35 offen"); vm.issue("xn")
    A("v_lshlrev_b32 v24, 4, v21", "s_mul_i32 s45, s30, 320", f"s_add_u32 s45, s45, {Y_OFF}")
    for nt in range(5):
        A(f"buffer_load_dwordx4 {v(40+4*nt,4)}, v24, s[20:23], s45 offen offset:{64*nt}"); vm.issue("y")
    A("s_lshl_b32 s46, s28, 15", "s_mov_b32 s47, 0")
    def dma(st, i):
        if i == 4: return [f"buffer_load_dwordx4 {v(6+i)}, s[8:11], s47 offen lds"]
        return [f"buffer_load_dwordx4 {v(6+i)}, s[8:11], s47 offen offset:{1024*i} lds"]
    for st in range(D):
        A(f"s_add_u32 m0, s33, {st*RING}", "s_nop 0")
        for i in range(4): A(*dma(st, i)); vm.issue(("w", st))
        A(f"s_add_u32 m0, s33, {st*RING+4096}", "s_nop 0"); A(*dma(st, 4)); vm.issue(("w", st))
        for i in range(4):
            A(f"buffer_load_dwordx4 {v(bf(st,i),4)}, {v(2+i)}, s[4:7], s46 offen"); vm.issue(("b", st))
        A("s_add_u32 s46, s46, 1024", "s_add_u32 s47, s47, 40960")
    A(f"s_waitcnt vmcnt({vm.n_after(['key'])})")
    argmax_keys(A, 208, 25, 48)
    A("s_and_b32 s49, s48, 2047", "s_sub_u32 s49, 2047, s49", "s_lshr_b32 s48, s48, 11",
      "s_lshr_b32 s50, s48, 15", "s_cmp_eq_u32 s50, 1", "s_mov_b32 s50, 0xffff", "s_cselect_b32 s50, 0x8000, s50", "s_xor_b32 s48, s48, s50", "s_lshl_b32 s48, s48, 16")
    A("s_mov_b32 s51, 0xbfb8aa3b", "s_mov_b32 s52, 0xffff0000")
    A("v_mov_b32 v25, s48", "v_mul_f32 v25, s51, v25", "v_exp_f32 v25, v25", "s_nop 0", "v_add_f32 v25, 1.0, v25", "v_rcp_f32 v25, v25", "s_nop 0",
      "v_cvt_pk_bf16_f32 v25, v25, v25", "v_lshlrev_b32 v25, 16, v25", "v_cmp_eq_u32 vcc, s49, v12", "s_nop 1", "v_cndmask_b32 v25, 0, v25, vcc")
    A(f"s_waitcnt vmcnt({vm.n_after(['y'])})")
    G = 40
    def rb2(x, y):
        A(f"v_cvt_pk_bf16_f32 {v(x)}, {v(x)}, {v(y)}", f"v_and_b32 {v(y)}, s52, {v(x)}", f"v_lshlrev_b32 {v(x)}, 16, {v(x)}")
    for i in range(10): rb2(G+2*i, G+2*i+1)
    for i in range(20): A(f"v_mul_f32 {v(G+i)}, {v(G+i)}, v25")
    for i in range(10): rb2(G+2*i, G+2*i+1)
    for i in range(20): A(f"v_cndmask_b32 {v(G+i)}, 0, {v(G+i)}, vcc")
    for i in range(10):
        A(f"v_lshlrev_b32 v26, 16, {v(234+i)}", f"v_and_b32 v27, s52, {v(234+i)}",
          f"v_add_f32 {v(G+2*i)}, {v(G+2*i)}, v26", f"v_add_f32 {v(G+2*i+1)}, {v(G+2*i+1)}, v27")
    for i in range(10): rb2(G+2*i, G+2*i+1)
    T = 208
    for h in range(2):
        for i in range(10): A(f"v_mul_f32 {v(T+i)}, s51, {v(G+10*h+i)}")
        for i in range(10): A(f"v_exp_f32 {v(T+i)}, {v(T+i)}")
        for i in range(10): A(f"v_add_f32 {v(T+i)}, 1.0, {v(T+i)}")
        for i in range(10): A(f"v_rcp_f32 {v(T+i)}, {v(T+i)}")
        for i in range(10): A(f"v_mul_f32 {v(G+10*h+i)}, {v(G+10*h+i)}, {v(T+i)}")
    for i in range(10): rb2(G+2*i, G+2*i+1)
    for i in range(80): A(f"v_mov_b32 {v(ACC+i)}, 0")
    for i in range(1, 4):
        A(f"s_add_u32 s31, s28, {i}", "s_and_b32 s31, s31, 3", "s_mul_i32 s31, s31, 15360", f"s_add_u32 s31, s31, {EXCH + (i-1)*5120}", f"v_add_u32 {v(13+i+4)}, s31, v1")
    A("s_mul_i32 s31, s28, 15360", f"s_add_u32 s31, s31, {EXCH}", "v_add_u32 v21, s31, v1")
    stamp(A, 1, stamps)
    def rd(buf, st, nt, p): return f"ds_read_b64_tr_b16 {a(af(buf,nt)+2*p,2)}, v11 offset:{st*RING + p*2560 + nt*32}"
    A(f"s_waitcnt vmcnt({vm.n_after([('w',0)])})")
    for nt in range(5):
        for p in range(2): A(rd(0, 0, nt, p))
    A("s_mov_b32 s53, 8")
    A("K3_LOOP:")
    body0 = len(A.L)
    for st in range(D):
        buf = st & 1
        A(f"s_waitcnt vmcnt({4 + (D-2)*9}) lgkmcnt(0)")
        if st == 0:
            A("s_cmp_eq_u32 s53, 1", "s_cselect_b32 s6, 0, s6", "s_cselect_b32 s10, 0, s10")
        fill = [[] for _ in range(20)]
        k = 0
        for nt in range(5):
            for p in range(2):
                fill[k].append(rd(buf ^ 1, (st + 1) % D, nt, p)); k += 1
        fill[9].append(f"s_add_u32 m0, s33, {st*RING}")
        for i in range(4): fill[10 + i] += dma(st, i)
        fill[13].append(f"s_add_u32 m0, s33, {st*RING+4096}")
        fill[14] += ["s_nop 0"] + dma(st, 4)
        for i in range(3): fill[15 + i].append(f"buffer_load_dwordx4 {v(bf(st,i),4)}, {v(2+i)}, s[4:7], s46 offen")
        fill[19] += [f"buffer_load_dwordx4 {v(bf(st,3),4)}, v5, s[4:7], s46 offen", "s_add_u32 s46, s46, 1024", "s_add_u32 s47, s47, 40960"]
        k = 0
        for i in range(4):
            for nt in range(5):
                A(f"v_mfma_f32_16x16x32_bf16 {v(acc(i,nt),4)}, {a(af(buf,nt),4)}, {v(bf(st,i),4)}, {v(acc(i,nt),4)}")
                A(*fill[k]); k += 1
    A("s_sub_u32 s53, s53, 1", "s_cmp_lg_u32 s53, 0", "s_cbranch_scc1 K3_LOOP")
    body = A.L[body0:]
    stamp(A, 2, stamps)
    A("s_nop 4")
    for i in range(1, 4):
        for nt in range(5): A(f"ds_write_b128 {v(17+i)}, {v(acc(i,nt),4)} offset:{nt*1024}")
    A("s_waitcnt lgkmcnt(0)", "s_barrier")
    for i in range(1, 4):
        for nt in range(5): A(f"ds_read_b128 {v(acc(i,nt),4)}, v21 offset:{(i-1)*5120 + nt*1024}")
    for i in range(1, 4):
        A(f"s_waitcnt lgkmcnt({5*(3-i)})")
        for j in range(20): A(f"v_add_f32 {v(ACC+j)}, {v(ACC+j)}, {v(ACC+20*i+j)}")
    for i in range(10): rb2(ACC+2*i, ACC+2*i+1)
    for i in range(20): A(f"v_mul_f32 {v(ACC+i)}, {v(ACC+i)}, {v(G+i)}")
    for i in range(10): rb2(ACC+2*i, ACC+2*i+1)
    for i in range(10):
        A(f"v_lshlrev_b32 v26, 16, {v(224+i)}", f"v_and_b32 v27, s52, {v(224+i)}",
          f"v_add_f32 v26, v26, {v(ACC+2*i)}", f"v_add_f32 v27, v27, {v(ACC+2*i+1)}", f"v_cvt_pk_bf16_f32 {v(224+i)}, v26, v27")
    for nt in range(5): A(f"buffer_store_dwordx2 {v(224+2*nt,2)}, v13, s[16:19], 0 offen offset:{32*nt}")
    stamp(A, 3, stamps)
    stamp_store(A, stamps, 42, 2, 4, 26)
    A("K3_END:", "s_endpgm")
    return A, body
```

```python
import sys
import core, k1, k2, k3
stamps = "--stamps" in sys.argv
out = [x for x in sys.argv[1:] if not x.startswith("--")][0]
ref = open("recurrent_scan__mha_block_cached__moe_arch_mod__prompt.s.ref").read().split("\n")
head = [l for l in ref if l.startswith(";") and "@launch" not in l and "Override launch" not in l and "grid=ceil" not in l and not l.startswith(";   ;")]
head = head[:head.index([l for l in head if "d_ws" in l][0]) + 1]
A1 = k1.gen(); A2, b2 = k2.gen(stamps); A3, b3 = k3.gen(stamps)
bad = core.check_hazards(A1.L, "k1") + core.check_hazards(A2.L, "k2") + core.check_hazards(b2 + b2, "k2loop") + core.check_hazards(A3.L, "k3") + core.check_hazards(b3 + b3, "k3loop")
t = "\n".join(head) + "\n"
t += "; @launch kernel=ln_kernel grid=(256,1,1) block=(256,1,1) lds=0\n"
t += f"; @launch kernel=attn_kernel grid=(256,1,1) block=(256,1,1) lds={k2.LDS}\n"
t += f"; @launch kernel=oproj_kernel grid=(256,1,1) block=(256,1,1) lds={k3.LDS}\n"
t += '.amdgcn_target "amdgcn-amd-amdhsa--gfx950"\n'
t += core.kernel_text("ln_kernel", A1.text(), 80, 80, 40)
t += core.kernel_text("attn_kernel", A2.text(), 512, 256)
t += core.kernel_text("oproj_kernel", A3.text(), 304, 256)
open(out, "w").write(t)
print("hazards", bad, "lines", len(A1.L), len(A2.L), len(A3.L), "bytes", len(t))
```

```python
from core import *
from layout import *

def argmax_keys(A, k0, t, sdst):
    for i in range(5): A(f"v_max3_u32 {v(k0+i)}, {v(k0+i)}, {v(k0+5+2*i)}, {v(k0+6+2*i)}")
    A(f"v_max3_u32 {v(k0)}, {v(k0)}, {v(k0+1)}, {v(k0+15)}", f"v_max3_u32 {v(k0+2)}, {v(k0+2)}, {v(k0+3)}, {v(k0+4)}",
      f"v_max_u32 {v(k0)}, {v(k0)}, {v(k0+2)}")
    for r in (8, 4, 2, 1):
        A("s_nop 1", f"v_max_u32_dpp {v(k0)}, {v(k0)}, {v(k0)} row_ror:{r} row_mask:0xf bank_mask:0xf")
    xgroup(A, k0, t, "v_max_u32")
    A("s_nop 0", f"v_readfirstlane_b32 {s(sdst)}, {v(k0)}", "s_nop 0")

def xgroup(A, x, t, op):
    A(f"v_mov_b32 {v(t)}, {v(x)}", "s_nop 1", f"v_permlane16_swap_b32 {v(x)}, {v(t)}", "s_nop 1", f"{op} {v(x)}, {v(x)}, {v(t)}",
      f"v_mov_b32 {v(t)}, {v(x)}", "s_nop 1", f"v_permlane32_swap_b32 {v(x)}, {v(t)}", "s_nop 1", f"{op} {v(x)}, {v(x)}, {v(t)}")

def xgroup_multi(A, xs, ts, op):
    for sw in ("v_permlane16_swap_b32", "v_permlane32_swap_b32"):
        for x, t in zip(xs, ts): A(f"v_mov_b32 {v(t)}, {v(x)}")
        if len(xs) < 3: A("s_nop 1")
        for x, t in zip(xs, ts): A(f"{sw} {v(x)}, {v(t)}")
        if len(xs) < 3: A("s_nop 1")
        for x, t in zip(xs, ts): A(f"{op} {v(x)}, {v(x)}, {v(t)}")

class VM:
    def __init__(self): self.q = []
    def issue(self, tag): self.q.append(tag)
    def n_after(self, tags):
        idx = max(i for i, t in enumerate(self.q) if t in tags)
        return len(self.q) - 1 - idx

def stamp(A, slot, on):
    if on: A(f"s_memrealtime {s(80+2*slot,2)}")

def cstamp(A, k, on):
    if on: A(f"s_memtime {s(66+2*k,2)}")

def stamp_store(A, on, base_pair, kid, nslots, vt):
    if not on: return
    A("s_waitcnt lgkmcnt(0)")
    srd(A, 72, base_pair, STAMP_OFF + kid * 0x10000, 0x10000)
    A(f"s_lshl_b32 s76, s2, 6", f"v_mov_b32 {v(vt)}, s76", "s_mov_b64 exec, 1")
    for i in range(nslots):
        A(f"v_mov_b32 {v(vt+1)}, {s(80+2*i)}", f"buffer_store_dword {v(vt+1)}, {v(vt)}, s[72:75], 0 offen offset:{4*i}", "s_nop 1")
    A("s_sub_u32 s66, s68, s66", f"v_mov_b32 {v(vt+1)}, s66", f"buffer_store_dword {v(vt+1)}, {v(vt)}, s[72:75], 0 offen offset:60")
    A("s_mov_b64 exec, -1")
```

```python
import os
from core import *
from layout import *
from common import argmax_keys, xgroup_multi

MF = "v_mfma_f32_16x16x32_bf16"
NAME = "recurrent_scan__mha_block_cached__moe_arch_mod__prompt_kernel"
PX, PK, PV, PWQ, PWO, PWR, PG, PU, PD, POUT, PDBG, PWS = 36, 38, 40, 42, 44, 48, 50, 52, 54, 56, 58, 60
SK, SV, SW, SX, SO, SWS, SDB, ST = "s[4:7]", "s[8:11]", "s[12:15]", "s[16:19]", "s[20:23]", "s[24:27]", "s[64:67]", "s[68:71]"
VK, VV, VW = 1, 2, 3
RK, RV, RW = 4, 8, 16
VX, RX = 20, 22
ONES = 26
L16 = 30
Q, ACC = 32, 96
S, P, NM, L = 96, 128, 144, 160
J = 168
T0 = 240
CSA, CSR, STT = 224, 232, 244
KF, VF = 128, 192
VBASE, SPARE = 65536, 131072
XA, XB = SPARE, 32768
FEX, FH, FVOTE, FCS = SPARE + 20480, SPARE + 20992, SPARE + 21120, SPARE + 21504
LDS = 163840
NFFN, NPACK = 108, 128
QSCALE = 0x3e0293ee
LMAX = 0x5d800000
NLOG2E = 0xbfb8aa3b
DBG_F, DBG_C = 128, 132

def qf(q, t): return Q + 16 * q + 4 * t
def acc(q, T): return ACC + 32 * q + 4 * T
def kf(kt, t): return KF + 16 * kt + 4 * t
def vf(h, dt): return VF + 32 * h + 4 * dt
def of(dt, q): return 16 * dt + 4 * q
def xb(kt, q, sx): return 192 + 32 * (kt & 1) + 8 * q + 4 * sx
def wslot(kt): return (kt + 2) % 4
KVPOL = os.environ.get("KVPOL", "")
NT = os.environ.get("NT", "")
XNT = os.environ.get("XNT", "")
WSC = os.environ.get("WSC", "sc1")
OSC = os.environ.get("OSC", "sc1")
def k_read(slot, kt, t): return f"ds_read_b128 {a(kf(kt,t),4)}, {v(RK+t)} offset:{slot*16384 + kt*1024}"
def v_read(slot, h, dt, p): return f"ds_read_b64_tr_b16 {a(vf(h,dt)+2*p,2)}, {v(RV+dt)} offset:{slot*16384 + (2*h+p)*1024}"
def k_dma(i): return f"buffer_load_dwordx4 {v(VK)}, {SK}, s34 offen offset:{1024*i} {KVPOL} lds"
def v_dma(i): return f"buffer_load_dwordx4 {v(VV)}, {SV}, s35 offen offset:{1024*i} {KVPOL} lds"
def k_m0(slot): return f"s_add_u32 m0, s33, {slot*16384}"
def v_m0(slot): return f"s_add_u32 m0, s33, {VBASE + slot*16384}"

class VM:
    def __init__(self, older=0):
        self.q = [None] * older; self.done = 0
    def issue(self, tag): self.q.append(tag)
    def n_after(self, tags):
        return len(self.q) - 1 - max(i for i, t in enumerate(self.q) if t in tags)
    def wait(self, tags):
        n = self.n_after(tags)
        if len(self.q) - self.done <= n: return []
        self.done = len(self.q) - n
        return [f"s_waitcnt vmcnt({n})"]
    def room(self):
        if len(self.q) - self.done < 62: return []
        self.done = len(self.q) - 56
        return ["s_waitcnt vmcnt(56)"]

class Stream:
    def __init__(self):
        self.mf = []; self.sc = []; self.mem = []; self.va = []; self.force = {}
    def add(self, m):
        self.mf.append(m); self.sc.append([]); self.mem.append([]); self.va.append([])
        return len(self.mf) - 1
    def emit(self, A, state=None, lag=6, nxt0=None):
        pend = list(state) if state else []
        n = len(self.mf); out = []
        for i in range(n):
            out.append(self.mf[i])
            pre = list(self.sc[i])
            nxt = I(self.mf[i + 1]).ab if i + 1 < n else (I(self.mf[0]).ab if nxt0 is None else nxt0)
            nxt = nxt | self.force.get(i, set())
            hit = [k for k, (rg, t) in enumerate(pend) if rg & nxt]
            if hit:
                k = max(hit)
                while k + 1 < len(pend) and i - pend[k + 1][1] >= lag: k += 1
                left = len(pend) - 1 - k
                assert left <= 15
                pre.insert(0, f"s_waitcnt lgkmcnt({left})")
                pend = pend[k + 1:]
            out += pre
            for m in self.mem[i]:
                out.append(m)
                if m.startswith("ds_read"): pend.append((I(m).w, i))
            out += self.va[i]
        if A is not None: A(*out)
        return [(rg, t - n) for rg, t in pend]

def stamp(A, k, on):
    A(*stampl(k, on))

def stampl(k, on):
    return [f"s_memrealtime {s(80+2*on.index(k),2)}"] if on and k in on else []

def allred32(A, x, t, op):
    for r in (8, 4, 2, 1):
        A("s_nop 1", f"{op}_dpp {v(x)}, {v(x)}, {v(x)} row_ror:{r} row_mask:0xf bank_mask:0xf")
    A(f"v_mov_b32 {v(t)}, {v(x)}", "s_nop 1", f"v_permlane16_swap_b32 {v(x)}, {v(t)}", "s_nop 1", f"{op} {v(x)}, {v(x)}, {v(t)}")

def rbf(A, x):
    A(f"v_cvt_pk_bf16_f32 {v(x)}, {v(x)}, {v(x)}", f"v_lshlrev_b32 {v(x)}, 16, {v(x)}")

def w0_only(label, lines):
    return ["s_cmp_lg_u32 s28, 0", f"s_cbranch_scc1 {label}"] + lines + [f"{label}:"]

def signal(off):
    return ["s_mov_b64 exec, 1", f"v_mov_b32 {v(T0+14)}, 1", f"v_mov_b32 {v(T0+15)}, {off}",
            f"buffer_atomic_add {v(T0+14)}, {v(T0+15)}, {SDB}, 0 offen sc1", "s_mov_b64 exec, -1"]

def spin(label, reload_, val, expect, mask=None):
    m = [f"s_and_b64 vcc, vcc, {mask}"] if mask else []
    return [f"s_mov_b32 s32, {os.environ.get('SPINCAP', '0x100000')}", f"{label}:", f"v_cmp_ne_u32 vcc, {expect}, {val}", "s_sub_u32 s32, s32, 1", f"s_cbranch_scc1 {label}_OK"] + m + \
           [f"s_cbranch_vccz {label}_OK", "s_sleep 1", reload_, "s_waitcnt vmcnt(0)", f"s_branch {label}", f"{label}_OK:"]

ROW, PP, LXA, LWA, LSA = 32, 33, 34, 35, 36
LX, LW, LF, LS, LD = 40, 50, 60, 80, 90

def ln_loads(A, vm):
    for i in range(5): A(f"buffer_load_dwordx2 {v(LX+2*i,2)}, {v(LXA)}, {SX}, 0 offen offset:{256*i}"); vm.issue("lx")
    for i in range(5): A(f"buffer_load_dwordx2 {v(LW+2*i,2)}, {v(LWA)}, {ST}, 0 offen offset:{256*i}"); vm.issue("lw")

def ln_compute(A, vm, stamps):
    t = 37
    A(f"v_lshrrev_b32 {v(LSA)}, 4, {v(ROW)}", "s_movk_i32 s31, 20480", f"v_mul_u32_u24 {v(LSA)}, s31, {v(LSA)}",
      f"v_lshrrev_b32 {v(t)}, 1, {v(PP)}", f"v_lshl_add_u32 {v(LSA)}, {v(t)}, 8, {v(LSA)}",
      f"v_and_b32 {v(t)}, 15, {v(ROW)}", f"v_lshl_add_u32 {v(LSA)}, {v(t)}, 4, {v(LSA)}",
      f"v_and_b32 {v(t)}, 1, {v(PP)}", f"v_lshl_add_u32 {v(LSA)}, {v(t)}, 3, {v(LSA)}")
    A("s_mov_b32 s72, 0xffff0000", "s_mov_b32 s73, 0x3acccccd")
    def unpack(d, x):
        for i in range(10): A(f"v_lshlrev_b32 {v(d+2*i)}, 16, {v(x+i)}", f"v_and_b32 {v(d+2*i+1)}, s72, {v(x+i)}")
    def dot(x, y, r):
        for i in range(4): A(f"v_mul_f32 {v(r+i)}, {v(x+i)}, {v(y+i)}")
        for i in range(4, 20): A(f"v_fmac_f32 {v(r+i%4)}, {v(x+i)}, {v(y+i)}")
        A(f"v_add_f32 {v(r)}, {v(r)}, {v(r+1)}", f"v_add_f32 {v(r+2)}, {v(r+2)}, {v(r+3)}", f"v_add_f32 {v(r)}, {v(r)}, {v(r+2)}")
        allred32(A, r, r + 1, "v_add_f32")
    A(*vm.wait(["lx"]))
    stamp(A, "lx", stamps)
    unpack(LF, LX)
    for i in range(10): A(f"v_add_f32 {v(LS+i)}, {v(LF+2*i)}, {v(LF+2*i+1)}")
    for i in range(5): A(f"v_add_f32 {v(LS+i)}, {v(LS+i)}, {v(LS+5+i)}")
    A(f"v_add_f32 {v(LS)}, {v(LS)}, {v(LS+1)}", f"v_add_f32 {v(LS+2)}, {v(LS+2)}, {v(LS+3)}", f"v_add_f32 {v(LS)}, {v(LS)}, {v(LS+4)}", f"v_add_f32 {v(LS)}, {v(LS)}, {v(LS+2)}")
    allred32(A, LS, LS + 1, "v_add_f32")
    M, R = LS, LS + 2
    A(f"v_mul_f32 {v(M)}, s73, {v(M)}")
    for i in range(20): A(f"v_sub_f32 {v(LD+i)}, {v(LF+i)}, {v(M)}")
    dot(LD, LD, R)
    A(f"v_mul_f32 {v(R)}, s73, {v(R)}")
    rbf(A, M); rbf(A, R)
    A(f"v_add_f32 {v(R)}, 0x3727c5ac, {v(R)}"); rbf(A, R)
    A(f"v_sqrt_f32 {v(R)}, {v(R)}", "s_nop 0"); rbf(A, R)
    A(f"v_rcp_f32 {v(R)}, {v(R)}")
    for i in range(20): A(f"v_sub_f32 {v(LF+i)}, {v(LF+i)}, {v(M)}")
    A(f"v_mul_f32 {v(LS+6)}, {QSCALE}, {v(R)}", f"v_mul_f32 {v(LS+7)}, {v(M)}, {v(LS+6)}", f"v_sub_f32 {v(LS+7)}, 0, {v(LS+7)}",
      f"v_lshlrev_b32 {v(t)}, 3, {v(ROW)}", f"s_mov_b32 s31, {STAT_OFF}",
      f"buffer_store_dwordx2 {v(LS+6,2)}, {v(t)}, {SWS}, s31 offen sc1"); vm.issue("ls")
    for i in range(10): A(f"v_cvt_pk_bf16_f32 {v(LX+i)}, {v(LF+2*i)}, {v(LF+2*i+1)}")
    unpack(LF, LX)
    for i in range(20): A(f"v_mul_f32 {v(LF+i)}, {v(LF+i)}, {v(R)}")
    for i in range(10): A(f"v_cvt_pk_bf16_f32 {v(LX+i)}, {v(LF+2*i)}, {v(LF+2*i+1)}")
    for i in range(5):
        A(f"s_movk_i32 s31, {4096*i}", f"buffer_store_dwordx2 {v(LX+2*i,2)}, {v(LSA)}, {SWS}, s31 offen sc1"); vm.issue("ls")
    A(*vm.wait(["lw"]))
    unpack(LF, LX); unpack(LD, LW)
    dot(LF, LD, R)
    k, u = R, R + 1
    A(f"v_cvt_pk_bf16_f32 {v(k)}, {v(k)}, {v(k)}", f"v_ashrrev_i32 {v(u)}, 31, {v(k)}", f"v_and_b32 {v(u)}, 0x7fff, {v(u)}", f"v_or_b32 {v(u)}, 0x8000, {v(u)}",
      f"v_and_b32 {v(k)}, 0xffff, {v(k)}", f"v_xor_b32 {v(k)}, {v(k)}, {v(u)}", f"v_sub_u32 {v(u)}, 2047, {v(ROW)}", f"v_lshl_or_b32 {v(k)}, {v(k)}, 11, {v(u)}",
      f"v_mov_b32 {v(u)}, {v(k)}", f"v_lshrrev_b32 {v(t)}, 1, {v(ROW)}", f"v_lshlrev_b32 {v(t)}, 2, {v(t)}", f"v_permlane32_swap_b32 {v(k)}, {v(u)}",
      f"s_mov_b32 s31, {KEY_OFF}", "s_nop 0", f"v_max_u32 {v(k)}, {v(k)}, {v(u)}", f"buffer_store_dword {v(k)}, {v(t)}, {SWS}, s31 offen sc1"); vm.issue("ls")
    A(f"v_mov_b32 {v(u)}, 0", f"v_mov_b32 {v(t)}, s74", f"buffer_store_dword {v(u)}, {v(t)}, {SWS}, 0 offen sc1"); vm.issue("ls")
    A("s_lshl_b32 s31, s2, 2", "s_add_u32 s31, s31, s28", "s_lshl_b32 s31, s31, 8", "s_cmp_lt_u32 s31, 2560", f"s_mov_b32 s32, {WSLO}", f"s_cselect_b32 s32, {Y_OFF}, s32",
      "s_add_u32 s31, s31, s32", f"v_lshlrev_b32 {v(t)}, 2, v0", f"buffer_store_dword {v(u)}, {v(t)}, {SWS}, s31 offen sc1"); vm.issue("ls")

def main_loop():
    st = Stream()
    for tile in range(4):
        base = len(st.mf)
        for q in range(4):
            qn, qp = (q + 1) % 4, (q - 1) % 4
            sb = S + 16 * ((q + 1) % 2)
            w0 = len(st.mf)
            for kt in range(4):
                for t in range(4):
                    c = v(NM + 4 * qn, 4) if t == 0 else v(sb + 4 * kt, 4)
                    st.add(f"{MF} {v(sb+4*kt,4)}, {a(kf(kt,t),4)}, {v(qf(qn,t),4)}, {c}")
            pb = P + 8 * ((q - 1) % 2)
            for dt in range(8):
                for h in range(2):
                    st.add(f"{MF} {a(of(dt,qp),4)}, {a(vf(h,dt),4)}, {v(pb+4*h,4)}, {a(of(dt,qp),4)}")
            sc = S + 16 * (q % 2); pc = P + 8 * (q % 2)
            for i in range(16):
                st.va[w0 + 2*i].append(f"v_exp_f32 {v(sc+i)}, {v(sc+i)}")
                l = L + 2 * q + (i & 1)
                st.va[w0 + 2*i + 1].append(f"v_add_f32 {v(l)}, {v(l)}, {v(sc+i)}")
                if i & 1: st.va[w0 + 2*i + 1].append(f"v_cvt_pk_bf16_f32 {v(pc + i//2)}, {v(sc+i-1)}, {v(sc+i)}")
        st.sc[base + 15] += ["s_waitcnt vmcnt(16)"]
        st.sc[base + 16] += ["s_barrier"]
        g = base + 17
        for dt in range(8):
            for h in range(2):
                for p in range(2):
                    st.mem[g].append(v_read(tile, h, dt, p)); g += 1
        g = base + 65
        for kt in range(4):
            for t in range(4):
                st.mem[g].append(k_read((tile + 1) % 4, kt, t)); g += 2
        st.sc[base + 50] += ["s_cmp_lt_u32 s35, 0x80000"]
        st.sc[base + 51] += ["s_cselect_b32 s10, 0x80000, 0"]
        st.sc[base + 52] += [v_m0((tile + 3) % 4)]
        gv = [53, 57, 61, 101]; gk = [105, 109, 113, 117]
        for i in range(4): st.mem[base + gv[i]].append(v_dma(i))
        st.sc[base + 98] += ["s_cmp_lt_u32 s34, 0x80000"]
        st.sc[base + 99] += ["s_cselect_b32 s6, 0x80000, 0"]
        st.sc[base + 102] += [k_m0(tile)]
        st.sc[base + 103] += ["s_add_u32 s35, s35, 16384"]
        for i in range(4): st.mem[base + gk[i]].append(k_dma(i))
        st.sc[base + 118] += ["s_add_u32 s34, s34, 16384"]
    return st

def negm_from_max(A, ms):
    xgroup_multi(A, ms, [T0 + i for i in range(4)], "v_max_f32")
    for q in range(4):
        for r in range(4): A(f"v_sub_f32 {v(NM+4*q+r)}, 0, {v(ms[q])}")

def div_rows(A, d, i, per, magic, stride, t):
    A(f"v_add_u32 {v(t)}, {64*i}, v0", f"v_mul_u32_u24 {v(t+1)}, {magic}, {v(t)}", f"v_lshrrev_b32 {v(t+1)}, 16, {v(t+1)}",
      f"v_mul_u32_u24 {v(t+2)}, {per}, {v(t+1)}", f"v_sub_u32 {v(t+2)}, {v(t)}, {v(t+2)}", f"v_lshlrev_b32 {v(t+2)}, 4, {v(t+2)}",
      f"v_mul_u32_u24 {v(t+1)}, {stride}, {v(t+1)}", f"v_add_u32 {v(d)}, {v(t+1)}, {v(t+2)}")

def side_jobs(A):
    t = T0
    XS, WF, GA = J, J + 20, J + 40
    DBGV, EXPV = J + 64, J + 65
    dbg_load = f"buffer_load_dword {v(DBGV)}, {v(EXPV+1)}, {SDB}, 0 offen sc1"
    def gu_dma(ptr):
        srd(A, 68, ptr, 0, 640 * 3456)
        A("s_lshl_b32 s72, s76, 5")
        for i in range(5):
            A(f"s_add_u32 m0, s75, {i*1024}", "s_nop 0" if i == 0 else f"s_add_u32 s72, s72, {32*3456}",
              f"buffer_load_dwordx4 {v(J+60)}, {ST}, s72 offen {NT} lds")
    def gu_mfma(m):
        for i in range(5):
            for p in range(2): A(f"ds_read_b64_tr_b16 {v(WF+4*i+2*p,2)}, {v(J+61)} offset:{i*1024 + p*128}")
        A("s_waitcnt lgkmcnt(0)")
        for i in range(5): A(f"{MF} {v(GA+4*m,4)}, {v(XS+4*i,4)}, {v(WF+4*i,4)}, {v(GA+4*m,4) if i else 0}")
    def pk_dma():
        for i in range(5):
            A(f"s_add_u32 m0, s75, {i*1024}", "s_nop 0", f"buffer_load_dwordx4 {v(J+i)}, {ST}, s76 offen {NT} lds")
    def pk_store():
        for nt in range(5):
            for p in range(2): A(f"ds_read_b64_tr_b16 {v(WF+4*nt+2*p,2)}, {v(J+5)} offset:{p*2560 + nt*32}")
        A("s_waitcnt lgkmcnt(0)")
        for nt in range(5):
            A(f"buffer_store_dwordx4 {v(WF+4*nt,4)}, {v(L16)}, {SW}, s77 offen offset:{1024*(nt%4)} sc1")
            if nt == 3: A("s_add_u32 s77, s77, 4096")
        A("s_add_u32 s77, s77, 1024")
    A("SIDE:", f"s_cmp_lt_u32 s2, {NFFN}", "s_cbranch_scc0 SIDE_P")
    for it in range(7): A(f"s_cmp_eq_u32 s62, {7-it}", f"s_cbranch_scc1 FFN{it}")
    A("FFN0:", "s_mul_i32 s75, s28, 5120", f"s_add_u32 s75, s75, {SPARE}",
      "s_and_b32 s76, s2, 7", "s_mul_i32 s76, s76, 14", "s_lshr_b32 s72, s2, 3", "s_add_u32 s76, s76, s72",
      "s_cmp_ge_u32 s76, 70", "s_cselect_b32 s72, 1, 0", "s_cmp_ge_u32 s76, 84", "s_addc_u32 s72, s72, 0", "s_cmp_ge_u32 s76, 98", "s_addc_u32 s72, s72, 0", "s_sub_u32 s76, s76, s72",
      f"v_lshlrev_b32 {v(EXPV+1)}, 2, v0", dbg_load,
      "s_mul_i32 s72, s28, 160", f"v_lshrrev_b32 {v(t)}, 1, v0", f"v_add_u32 {v(t)}, s72, {v(t)}", f"v_mul_u32_u24 {v(t)}, 3456, {v(t)}",
      f"v_and_b32 {v(t+1)}, 1, v0", f"v_lshl_add_u32 {v(J+60)}, {v(t+1)}, 4, {v(t)}",
      f"v_lshrrev_b32 {v(t)}, 4, v0", f"v_bfe_u32 {v(t+1)}, v0, 2, 2", f"v_lshl_add_u32 {v(t)}, {v(t)}, 3, {v(t+1)}",
      f"v_and_b32 {v(t+1)}, 3, v0", f"v_lshlrev_b32 {v(t+1)}, 3, {v(t+1)}", f"v_lshl_add_u32 {v(t)}, {v(t)}, 5, {v(t+1)}", f"v_add_u32 {v(J+61)}, s75, {v(t)}")
    gu_dma(PG)
    A("s_branch LOOP")
    A("FFN1:", "s_waitcnt vmcnt(32)", "s_mov_b64 s[72:73], 0xff")
    A(*spin("FFN1S", dbg_load, v(DBGV), "32", "s[72:73]"))
    A(f"s_mov_b32 s72, {KEY_OFF}")
    for i in range(4): A(f"buffer_load_dwordx4 {v(WF+4*i,4)}, {v(L16)}, {SWS}, s72 offen offset:{1024*i} sc1")
    A("s_branch LOOP")
    A("FFN2:", "s_waitcnt vmcnt(32)")
    argmax_keys(A, WF, t, 72)
    A("s_and_b32 s72, s72, 2047", "s_sub_u32 s72, 2047, s72", "s_lshr_b32 s73, s72, 4", "s_mul_i32 s73, s73, 20480",
      "s_and_b32 s72, s72, 15", "s_lshl_b32 s72, s72, 4", "s_add_u32 s73, s73, s72", "s_mul_i32 s72, s28, 5120", "s_add_u32 s73, s73, s72",
      f"v_lshrrev_b32 {v(t)}, 4, v0", f"v_lshlrev_b32 {v(t)}, 8, {v(t)}")
    for i in range(4): A(f"buffer_load_dwordx4 {v(XS+4*i,4)}, {v(t)}, {SWS}, s73 offen offset:{1024*i} sc1")
    A("s_add_u32 s73, s73, 4096", f"buffer_load_dwordx4 {v(XS+16,4)}, {v(t)}, {SWS}, s73 offen sc1", "s_branch LOOP")
    A("FFN3:", "s_waitcnt vmcnt(32)")
    gu_mfma(0); gu_dma(PU)
    A("s_branch LOOP")
    A("FFN4:", "s_waitcnt vmcnt(32)")
    gu_mfma(1)
    srd(A, 68, PD, 0, 1728 * 1280)
    A("s_mul_i32 s72, s76, 20480", "s_mul_i32 s73, s28, 320", "s_add_u32 s72, s72, s73")
    for i in range(5):
        div_rows(A, t + 3, i, 20, 3277, 1280, t)
        A(f"s_add_u32 m0, s75, {1024*i}", "s_nop 0", f"buffer_load_dwordx4 {v(t+3)}, {ST}, s72 offen {NT} lds")
    A(f"v_and_b32 {v(t+1)}, 15, v0", f"v_lshlrev_b32 {v(t+1)}, 4, {v(t+1)}", "s_lshl_b32 s72, s28, 2", f"s_add_u32 s72, s72, {FEX}", f"v_add_u32 {v(t+1)}, s72, {v(t+1)}",
      f"ds_write_b32 {v(t+1)}, {v(GA)}", f"ds_write_b32 {v(t+1)}, {v(GA+4)} offset:256", "s_waitcnt lgkmcnt(0)")
    A(*w0_only("FFN4W", [dbg_load]))
    A("s_branch LOOP")
    A("FFN5:", "s_waitcnt vmcnt(32)")
    G = GA
    A(f"v_and_b32 {v(t+3)}, 15, v0", f"v_lshlrev_b32 {v(t)}, 4, {v(t+3)}", f"v_add_u32 {v(t)}, {FEX}, {v(t)}",
      f"ds_read_b128 {v(G,4)}, {v(t)}", f"ds_read_b128 {v(G+4,4)}, {v(t)} offset:256",
      f"v_lshrrev_b32 {v(t+1)}, 2, v0", f"v_mul_u32_u24 {v(t+1)}, 320, {v(t+1)}", f"v_and_b32 {v(t+2)}, 3, v0",
      f"v_lshl_add_u32 {v(t+1)}, {v(t+2)}, 3, {v(t+1)}", f"v_add_u32 {v(t+1)}, s75, {v(t+1)}")
    for nt in range(10): A(f"ds_read_b64_tr_b16 {v(WF+2*nt,2)}, {v(t+1)} offset:{nt*32}")
    A("s_waitcnt lgkmcnt(10)")
    for m in range(2):
        b = G + 4 * m
        A(f"v_add_f32 {v(b)}, {v(b)}, {v(b+1)}", f"v_add_f32 {v(b+2)}, {v(b+2)}, {v(b+3)}", f"v_add_f32 {v(b)}, {v(b)}, {v(b+2)}")
    A(f"v_cvt_pk_bf16_f32 {v(G)}, {v(G)}, {v(G+4)}", f"v_and_b32 {v(G+4)}, 0xffff0000, {v(G)}", f"v_lshlrev_b32 {v(G)}, 16, {v(G)}",
      f"v_mul_f32 {v(G+1)}, {NLOG2E}, {v(G)}", f"v_exp_f32 {v(G+1)}, {v(G+1)}", "s_nop 0", f"v_add_f32 {v(G+1)}, 1.0, {v(G+1)}",
      f"v_rcp_f32 {v(G+1)}, {v(G+1)}", "s_nop 0", f"v_mul_f32 {v(G)}, {v(G)}, {v(G+1)}",
      f"v_cvt_pk_bf16_f32 {v(G)}, {v(G)}, {v(G)}", f"v_lshlrev_b32 {v(G)}, 16, {v(G)}", f"v_mul_f32 {v(G)}, {v(G)}, {v(G+4)}",
      f"v_cvt_pk_bf16_f32 {v(G)}, {v(G)}, {v(G)}")
    A("s_lshl_b32 s72, s28, 5", f"s_add_u32 s72, s72, {FH}", f"v_lshl_add_u32 {v(t)}, {v(t+3)}, 1, s72", f"ds_write_b16 {v(t)}, {v(G)}",
      f"v_lshrrev_b32 {v(t)}, 4, v0", f"v_lshl_add_u32 {v(t)}, {v(t)}, 3, s72", "s_waitcnt lgkmcnt(0)",
      f"ds_read_b64 {v(G,2)}, {v(t)}", "s_mul_i32 s72, s28, 640", f"s_add_u32 s72, s72, {Y_OFF}", f"v_lshlrev_b32 {v(t+3)}, 2, {v(t+3)}", "s_waitcnt lgkmcnt(0)")
    outs = [XS + 4*i for i in range(5)] + [J + 44 + 4*i for i in range(5)]
    for nt in range(10): A(f"v_mfma_f32_16x16x16_bf16 {v(outs[nt],4)}, {v(G,2)}, {v(WF+2*nt,2)}, 0")
    A("s_mov_b64 exec, 0xffff")
    for nt in range(10):
        if nt >= 8: A("s_nop 1")
        A(f"buffer_atomic_add_f32 {v(outs[nt])}, {v(t+3)}, {SWS}, s72 offen offset:{64*nt}")
    A("s_mov_b64 exec, -1", "s_branch CHK")
    A("FFN6:"); A(*w0_only("FFN6W", signal(DBG_C))); A("s_branch LOOP")
    A("SIDE_P:", "s_cmp_eq_u32 s62, 3", "s_cbranch_scc1 POLL", "s_cmp_eq_u32 s62, 2", "s_cbranch_scc1 CHK0")
    for it in range(1, 4): A(f"s_cmp_eq_u32 s62, {7-it}", f"s_cbranch_scc1 PK{it}")
    A("PK0:", "s_mul_i32 s75, s28, 5120", f"s_add_u32 s75, s75, {SPARE}")
    for i in range(5): div_rows(A, J + i, i, 10, 6554, 1280, t)
    A(f"v_lshrrev_b32 {v(t)}, 2, v0", f"v_mul_u32_u24 {v(t)}, 160, {v(t)}", f"v_and_b32 {v(t+1)}, 3, v0", f"v_lshl_add_u32 {v(t)}, {v(t+1)}, 3, {v(t)}",
      f"v_add_u32 {v(J+5)}, s75, {v(t)}")
    srd(A, 68, PWO, 0, 4096 * 1280)
    srd(A, 12, PWS, WOF_OFF, WOF_SIZE)
    A(f"s_sub_u32 s72, s2, {NFFN}", "s_lshr_b32 s73, s72, 1", "s_and_b32 s72, s72, 1", "s_lshl_b32 s72, s72, 2", "s_add_u32 s72, s72, s28",
      f"s_mul_i32 s76, s73, {64*1280}", "s_mul_i32 s77, s72, 160", "s_add_u32 s76, s76, s77",
      f"s_mul_i32 s77, s72, {128*5120}", f"s_mul_i32 s73, s73, {2*5120}", "s_add_u32 s77, s77, s73")
    pk_dma(); A("s_branch LOOP")
    A("PK1:", "s_waitcnt vmcnt(32)"); pk_store(); A(f"s_add_u32 s76, s76, {32*1280}"); pk_dma(); A("s_branch LOOP")
    A("PK2:", "s_waitcnt vmcnt(32)"); pk_store(); A("s_branch LOOP")
    A("PK3:"); A(*w0_only("PK3W", signal(DBG_F))); A("s_branch LOOP")
    A("POLL:", f"v_lshlrev_b32 {v(EXPV+1)}, 2, v0"); A(*w0_only("POLLW", [dbg_load])); A("s_branch LOOP")
    A("CHK0:", "s_waitcnt vmcnt(32)")
    A("CHK:", "s_cmp_lg_u32 s28, 0", "s_cbranch_scc1 LOOP", f"v_mov_b32 {v(EXPV)}, {NPACK}", f"v_cmp_gt_u32 vcc, 8, v0", "s_mov_b32 s72, 0xff", "s_mov_b32 s73, 1",
      f"v_cndmask_b32 {v(EXPV)}, {v(EXPV)}, 32, vcc")
    A(*spin("CHKS", dbg_load, v(DBGV), v(EXPV), "s[72:73]"))
    A("s_branch LOOP")

OACC, OB, OT = 32, 112, 192
NB = 5
EXCH = 0
def oacc(i, nt): return OACC + 20 * i + 4 * nt
def aslot(k): return (128 + 20 * (k - 6)) if k >= 6 else 20 * k

def oproj_setup_early(A):
    A("s_and_b32 s72, s2, 7", "s_lshr_b32 s73, s2, 3", "s_lshr_b32 s78, s72, 1", "s_lshl_b32 s78, s78, 3", "s_and_b32 s79, s73, 7", "s_add_u32 s78, s78, s79",
      "s_and_b32 s72, s72, 1", "s_lshl_b32 s72, s72, 2", "s_lshr_b32 s79, s73, 3", "s_add_u32 s79, s79, s72",
      f"s_mul_i32 s72, s79, {128*5120}", f"s_mul_i32 s73, s28, {32*5120}", "s_add_u32 s72, s72, s73", f"s_add_u32 s72, s72, {WOF_OFF}")
    srd(A, 12, PWS, "s72", 32 * 5120)

def a_loads(k, slot):
    out = [f"s_mov_b32 s31, {k*5120}", f"s_mov_b32 s32, {k*5120+4096}"]
    for nt in range(5):
        out.append(f"buffer_load_dwordx4 {a(aslot(slot)+4*nt,4)}, {v(L16)}, {SW}, {'s32' if nt == 4 else 's31'} offen offset:{1024*(nt%4)} {WSC}")
    return out

def put(A, vm, lines, tag):
    for x in lines:
        if x.startswith(("buffer_", "global_")):
            A(*vm.room()); A(x); vm.issue(tag)
        else: A(x)

def oproj(A, vm, stamps):
    t = T0
    VB, RA, VROW, VXO, WX = 2, 6, 7, 8, 9
    RE, VY, VN, VF_ = 12, 13, 14, 19
    XR, XNR, G = OT, OT + 10, OT + 20
    A("s_mul_i32 s33, s28, 40960")
    for k in range(12, 20):
        A(f"s_add_u32 m0, s33, {(k-12)*5120}", f"s_mov_b32 s31, {k*5120}")
        put(A, vm, [f"buffer_load_dwordx4 {v(L16)}, {SW}, s31 offen offset:{1024*i} {WSC} lds" for i in range(4)], ("l", k))
        A(f"s_add_u32 m0, s33, {(k-12)*5120+4096}", f"s_mov_b32 s31, {k*5120+4096}")
        put(A, vm, [f"buffer_load_dwordx4 {v(L16)}, {SW}, s31 offen {WSC} lds"], ("l", k))
        if k == 12:
            A("s_lshl_b32 s72, s78, 7", "s_lshl_b32 s73, s28, 5", "s_add_u32 s72, s72, s73", f"s_add_u32 s72, s72, {FLAG_OFF}",
              f"v_and_b32 {v(VF_)}, 7, v0", f"v_lshl_add_u32 {v(VF_)}, {v(VF_)}, 2, s72", f"s_mov_b32 s72, {KEY_OFF}")
            put(A, vm, [f"buffer_load_dwordx4 {v(OT+4*i,4)}, {v(L16)}, {SWS}, s72 offen offset:{1024*i} sc1" for i in range(4)], "key")
            for i in range(4):
                A(f"s_add_u32 s72, s28, {i}", "s_and_b32 s72, s72, 3", "s_lshl_b32 s72, s72, 10", f"v_add_u32 {v(VB+i)}, s72, {v(L16)}")
            A(f"v_add_u32 {v(RA)}, s33, {v(L16)}")
            A("s_lshl_b32 s72, s78, 12", "s_lshl_b32 s73, s28, 22", "s_add_u32 s72, s72, s73", f"s_add_u32 s72, s72, {OF_OFF}")
            srd(A, 20, PWS, "s72", 31 * 131072 + 4096)
            srd(A, 4, POUT, 0, 2048 * 1280)
        if k == 13:
            A(f"v_and_b32 {v(t)}, 15, v0", f"v_lshrrev_b32 {v(t+1)}, 4, v0", "s_lshl_b32 s74, s78, 6", "s_lshl_b32 s72, s28, 4", "s_add_u32 s74, s74, s72",
              f"v_add_u32 {v(VROW)}, s74, {v(t)}", "s_mul_i32 s72, s79, 160", f"v_mul_u32_u24 {v(VXO)}, 1280, {v(VROW)}",
              f"v_lshl_add_u32 {v(VXO)}, {v(t+1)}, 3, {v(VXO)}", f"v_add_u32 {v(VXO)}, s72, {v(VXO)}",
              "s_lshr_b32 s72, s74, 4", "s_mul_i32 s72, s72, 20480", "s_mul_i32 s73, s79, 2560", "s_add_u32 s72, s72, s73",
              f"v_lshlrev_b32 {v(t+2)}, 4, {v(t)}", f"v_and_b32 {v(t+3)}, 1, {v(t+1)}", f"v_lshl_add_u32 {v(t+2)}, {v(t+3)}, 3, {v(t+2)}",
              f"v_lshrrev_b32 {v(t+3)}, 1, {v(t+1)}", f"v_lshl_add_u32 {v(t+2)}, {v(t+3)}, 8, {v(t+2)}", f"v_add_u32 {v(VN)}, s72, {v(t+2)}",
              "s_mul_i32 s72, s79, 320", f"s_add_u32 s72, s72, {Y_OFF}", f"v_lshl_add_u32 {v(VY)}, {v(t+1)}, 4, s72")
            for i in range(1, 4):
                A(f"s_add_u32 s72, s28, {i}", "s_and_b32 s72, s72, 3", "s_mul_i32 s72, s72, 15360", f"s_add_u32 s72, s72, {EXCH + (i-1)*5120}", f"v_add_u32 {v(WX+i-1)}, s72, {v(L16)}")
            A("s_mul_i32 s72, s28, 15360", f"v_add_u32 {v(RE)}, s72, {v(L16)}")
        if k == 16:
            put(A, vm, [f"buffer_load_dword {v(t+8)}, {v(VF_)}, {SWS}, 0 offen sc1"], "flag")
    A(*vm.wait(["key"]))
    argmax_keys(A, OT, t, 76)
    A("s_and_b32 s77, s76, 2047", "s_sub_u32 s77, 2047, s77", "s_lshr_b32 s76, s76, 11",
      "s_lshr_b32 s72, s76, 15", "s_cmp_eq_u32 s72, 1", "s_mov_b32 s72, 0xffff", "s_cselect_b32 s72, 0x8000, s72", "s_xor_b32 s76, s76, s72", "s_lshl_b32 s76, s76, 16",
      "s_sub_u32 s75, s77, s74", f"v_mov_b32 {v(t+10)}, {DBG_C}", f"s_mov_b32 s100, {NLOG2E}", "s_mov_b32 s101, 0xffff0000")
    A(*vm.wait(["flag"]))
    A(*spin("OFLAG", f"buffer_load_dword {v(t+8)}, {v(VF_)}, {SWS}, 0 offen sc1", v(t+8), "1"))
    stamp(A, "flag", stamps)
    def b_load(k, i): return f"buffer_load_dwordx4 {v(OB+16*(k%NB)+4*i,4)}, {v(VB+i)}, {SO}, s34 offen {OSC}"
    for k in range(NB - 1):
        A(f"s_mov_b32 s34, {k*131072}")
        put(A, vm, [b_load(k, i) for i in range(4)], ("b", k))
    def asrc(k):
        if k < 12: return lambda nt: a(aslot(k) + 4*nt, 4)
        if k < 20: return lambda nt: v(OT + 20*(k & 1) + 4*nt, 4)
        return lambda nt: a(aslot(k - 20) + 4*nt, 4)
    refill = []
    for i in range(12):
        for nt in range(5): refill.append((i, nt))
    va = gate_ops(XNR, G, VROW)
    state = []
    cpoll = f"buffer_load_dword {v(t+9)}, {v(t+10)}, {SDB}, 0 offen sc1"
    for k in range(32):
        st = Stream()
        for i in range(4):
            for nt in range(5):
                c = v(oacc(i, nt), 4) if k else 0
                st.add(f"{MF} {v(oacc(i,nt),4)}, {asrc(k)(nt)}, {v(OB+16*(k%NB)+4*i,4)}, {c}")
        need = [("b", k)] + ([("a", k)] if k < 12 or k >= 20 else [])
        A(*vm.wait(need))
        if 11 <= k < 19:
            st.sc[0] += vm.wait([("l", k + 1)])
            for nt in range(5): st.mem[1 + nt].append(f"ds_read_b128 {v(OT+20*((k+1)&1)+4*nt,4)}, {v(RA)} offset:{(k+1-12)*5120 + nt*1024}")
        if k == 24: st.sc[0].append(f"s_waitcnt vmcnt({len(vm.q) - ny})")
        ops = []
        def mem(g, x, tag): ops.append((g, x, tag))
        kb = k + NB - 1
        if kb < 32:
            st.sc[5].append(f"s_mov_b32 s34, {kb*131072}")
            for i in range(4): mem(6 + 2*i, b_load(kb, i), ("b", kb))
        n = 3 if k % 4 == 1 else 2
        g = 14
        while n and refill and refill[0][0] < k:
            i, nt = refill.pop(0)
            st.sc[g - 1].append(f"s_mov_b32 s31, {(20+i)*5120 + 1024*nt}")
            mem(g, f"buffer_load_dwordx4 {a(aslot(i)+4*nt,4)}, {v(L16)}, {SW}, s31 offen {WSC}", ("a", 20 + i)); g += 2; n -= 1
        if k == 2: st.va[19] += ["s_cmp_lt_u32 s75, 16", "s_cbranch_scc0 OC1", cpoll, "OC1:"]
        if k == 20:
            for nt in range(5):
                mem(1 + 2*nt, f"buffer_load_dwordx2 {v(XNR+2*nt,2)}, {v(VN)}, {SWS}, 0 offen offset:{512*nt} sc1", "xn")
            st.va[19] += [f"v_mov_b32 {v(G+i)}, 0" for i in range(20)]
            st.va[19] += ["s_cmp_lt_u32 s75, 16", "s_cbranch_scc0 OC2"] + spin("OCS", cpoll, v(t+9), "s72") + \
                         [f"buffer_load_dwordx4 {v(G+4*nt,4)}, {v(VY)}, {SWS}, 0 offen offset:{64*nt} sc1" for nt in range(5)] + ["OC2:"]
            st.va[18].append(f"s_movk_i32 s72, {NFFN}")
        if k == 21:
            for nt in range(5): mem(1 + 2*nt, f"buffer_load_dwordx2 {v(XR+2*nt,2)}, {v(VXO)}, {SX}, 0 offen offset:{32*nt}", "x")
        if k == 22: st.sc[19].append("s_barrier")
        for g, x, tag in sorted(ops, key=lambda o: o[0]):
            st.sc[g] += vm.room(); st.mem[g].append(x); vm.issue(tag)
        if k == 20: ny = len(vm.q)
        if k >= 24:
            for g in range(1, 20):
                for _ in range(2):
                    if va:
                        x = va.pop(0); st.va[g].append(x)
                        if x.startswith(TRANS): break
        nx0 = regs_of(" ".join(asrc(k + 1)(nt) for nt in range(5))) if k < 31 else set()
        stamp(A, f"g{k}", stamps)
        state = st.emit(A, state, nxt0=nx0)
    assert not refill
    A(*va)
    stamp(A, "gend", stamps)
    for i in range(1, 4):
        for nt in range(5): A(f"ds_write_b128 {v(WX+i-1)}, {v(oacc(i,nt),4)} offset:{nt*1024}")
    A("s_waitcnt lgkmcnt(0)", "s_barrier")
    for i in range(1, 4):
        for nt in range(5): A(f"ds_read_b128 {v(oacc(i,nt),4)}, {v(RE)} offset:{(i-1)*5120 + nt*1024}")
    for i in range(1, 4):
        A(f"s_waitcnt lgkmcnt({5*(3-i)})")
        for j in range(10): A(f"v_pk_add_f32 {v(OACC+2*j,2)}, {v(OACC+2*j,2)}, {v(OACC+20*i+2*j,2)}")
    for i in range(10): A(*rb2(OACC+2*i))
    for i in range(10): A(f"v_pk_mul_f32 {v(OACC+2*i,2)}, {v(OACC+2*i,2)}, {v(G+2*i,2)}")
    for i in range(10): A(*rb2(OACC+2*i))
    A(*vm.wait(["x"]))
    for i in range(10):
        A(f"v_lshlrev_b32 {v(t)}, 16, {v(XR+i)}", f"v_and_b32 {v(t+1)}, s101, {v(XR+i)}",
          f"v_pk_add_f32 {v(t,2)}, {v(t,2)}, {v(OACC+2*i,2)}", f"v_cvt_pk_bf16_f32 {v(XR+i)}, {v(t)}, {v(t+1)}")
        if i & 1: A(f"buffer_store_dwordx2 {v(XR+i-1,2)}, {v(VXO)}, {SK}, 0 offen offset:{16*(i-1)}")

def rb2(x):
    return [f"v_cvt_pk_bf16_f32 {v(x)}, {v(x)}, {v(x+1)}", f"v_and_b32 {v(x+1)}, s101, {v(x)}", f"v_lshlrev_b32 {v(x)}, 16, {v(x)}"]

def gate_ops(XNR, G, VROW):
    t = T0; o = []
    r = t + 11
    o += [f"v_mov_b32 {v(r)}, s76", f"v_mul_f32 {v(r)}, s100, {v(r)}", f"v_exp_f32 {v(r)}, {v(r)}", f"v_cmp_eq_u32 vcc, s77, {v(VROW)}", f"v_add_f32 {v(r)}, 1.0, {v(r)}",
          f"v_rcp_f32 {v(r)}, {v(r)}", f"v_mov_b32 {v(r+1)}, 0", f"v_cvt_pk_bf16_f32 {v(r)}, {v(r)}, {v(r)}", f"v_lshlrev_b32 {v(r)}, 16, {v(r)}"]
    for i in range(10): o += rb2(G + 2*i)
    for i in range(20): o.append(f"v_mul_f32 {v(G+i)}, {v(G+i)}, {v(r)}")
    for i in range(10): o += rb2(G + 2*i)
    for i in range(20): o.append(f"v_cndmask_b32 {v(G+i)}, 0, {v(G+i)}, vcc")
    for i in range(10):
        o += [f"v_lshlrev_b32 {v(t)}, 16, {v(XNR+i)}", f"v_and_b32 {v(t+1)}, s101, {v(XNR+i)}",
              f"v_add_f32 {v(G+2*i)}, {v(G+2*i)}, {v(t)}", f"v_add_f32 {v(G+2*i+1)}, {v(G+2*i+1)}, {v(t+1)}"]
    for i in range(10): o += rb2(G + 2*i)
    for h in range(4):
        for i in range(5): o.append(f"v_mul_f32 {v(t+i)}, s100, {v(G+5*h+i)}")
        for i in range(5): o.append(f"v_exp_f32 {v(t+i)}, {v(t+i)}")
        for i in range(5): o.append(f"v_add_f32 {v(t+i)}, 1.0, {v(t+i)}")
        for i in range(5): o.append(f"v_rcp_f32 {v(t+i)}, {v(t+i)}")
        for i in range(5): o.append(f"v_mul_f32 {v(G+5*h+i)}, {v(G+5*h+i)}, {v(t+i)}")
    for i in range(10): o += rb2(G + 2*i)
    return o

def gen(stamps=False):
    A = Asm()
    t = T0
    A("s_cmp_ge_u32 s2, 256", "s_cbranch_scc1 END")
    stamp(A, "start", stamps)
    A("s_load_dwordx16 s[36:51], s[0:1], 0", "s_load_dwordx8 s[52:59], s[0:1], 64", "s_load_dwordx2 s[60:61], s[0:1], 96")
    A(f"v_lshrrev_b32 {v(t)}, 6, v0", f"v_lshrrev_b32 {v(ROW)}, 5, v0", f"v_readfirstlane_b32 s28, {v(t)}", f"v_and_b32 {v(PP)}, 31, v0", f"v_lshlrev_b32 {v(t+8)}, 7, v0")
    A("s_and_b32 s29, s2, 7", "s_lshl_b32 s29, s29, 2", "s_lshr_b32 s30, s2, 3", "s_and_b32 s31, s30, 3", "s_add_u32 s29, s29, s31", "s_lshr_b32 s63, s30, 2",
      "s_lshl_b32 s31, s63, 8", "s_lshl_b32 s32, s29, 3", "s_add_u32 s31, s31, s32", f"v_add_u32 {v(ROW)}, s31, {v(ROW)}",
      f"v_lshlrev_b32 {v(LWA)}, 3, {v(PP)}", f"v_mul_u32_u24 {v(LXA)}, 1280, {v(ROW)}", f"v_add_u32 {v(LXA)}, {v(LXA)}, {v(LWA)}",
      "v_and_b32 v0, 63, v0", f"v_lshlrev_b32 {v(L16)}, 4, v0",
      "s_lshl_b32 s30, s63, 4", "s_lshl_b32 s31, s28, 2", "s_add_u32 s30, s30, s31", "s_lshl_b32 s33, s28, 12")
    vm = VM()
    A(f"v_lshrrev_b32 {v(t)}, 3, v0", f"v_and_b32 {v(t+1)}, 7, v0", f"v_lshrrev_b32 {v(t+2)}, 4, v0", "s_lshl_b32 s31, s30, 4", f"v_add_u32 {v(t)}, s31, {v(t)}",
      f"v_mul_u32_u24 {v(t)}, 1280, {v(t)}", f"v_xor_b32 {v(t+3)}, {v(t+1)}, {v(t+2)}", f"v_lshl_add_u32 {v(VX)}, {v(t+3)}, 4, {v(t)}",
      f"v_xor_b32 {v(t+3)}, 4, {v(t+3)}", f"v_lshl_add_u32 {v(VX+1)}, {v(t+3)}, 4, {v(t)}", f"v_add_u32 {v(VX+1)}, {8*1280-1024}, {v(VX+1)}")
    A(f"v_and_b32 {v(t+1)}, 15, v0", "s_lshl_b32 s31, s28, 4", f"v_add_u32 {v(t+4)}, s31, {v(t+2)}",
      f"v_lshlrev_b32 {v(t+3)}, 2, {v(t+2)}", f"v_xor_b32 {v(t+3)}, {v(t+3)}, {v(t+1)}", f"v_lshlrev_b32 {v(t+3)}, 4, {v(t+3)}", f"v_lshl_add_u32 {v(VW)}, {v(t+4)}, 13, {v(t+3)}")
    A("s_waitcnt lgkmcnt(0)")
    srd(A, 16, PX, 0, 2048 * 1280); srd(A, 68, PWR, 0, 1280)
    stamp(A, "karg", stamps)
    ln_loads(A, vm)
    A("s_lshl_b32 s31, s29, 8"); srd(A, 12, PWQ, "s31", 639 * 8192 + 256)
    A("s_lshl_b32 s75, s28, 13")
    def x_dma(kt):
        out = []
        for pr in range(4):
            out += [f"s_add_u32 m0, s75, {(XA, XB)[kt & 1] + 2048*pr}", f"s_mov_b32 s62, {kt*128 + 20480*pr}",
                    f"buffer_load_dwordx4 {v(VX)}, {SX}, s62 offen {XNT} lds", f"buffer_load_dwordx4 {v(VX+1)}, {SX}, s62 offen offset:1024 {XNT} lds"]
        return out
    def wq_dma(kt):
        out = [f"s_add_u32 m0, s33, {VBASE + wslot(kt)*16384}"]
        for i in range(4):
            out += [f"s_mov_b32 s32, {kt*524288 + i*31744}", f"buffer_load_dwordx4 {v(VW)}, {SW}, s32 offen offset:{1024*i} {NT} lds"]
        return out
    put(A, vm, wq_dma(0), ("w", 0)); put(A, vm, x_dma(0), ("x", 0))
    A("s_getpc_b64 s[72:73]", "CODE0:", f"v_mov_b32 {v(t+11)}, s73")
    for i in range(2):
        A(f"v_add_u32 {v(t+9)}, {32768*i}, {v(t+8)}", f"v_min_u32 {v(t+9)}, (CODE1 - CODE0), {v(t+9)}",
          f"v_add_co_u32 {v(t+12)}, vcc, s72, {v(t+9)}", "s_nop 1", f"v_addc_co_u32 {v(t+13)}, vcc, 0, {v(t+11)}, vcc",
          f"global_load_dword v31, {v(t+12,2)}, off"); vm.issue("code")
    put(A, vm, wq_dma(1), ("w", 1)); put(A, vm, x_dma(1), ("x", 1)); put(A, vm, wq_dma(2), ("w", 2)); put(A, vm, wq_dma(3), ("w", 3))
    A("s_lshl_b32 s31, s29, 19"); srd(A, 4, PK, "s31", "0x80000"); srd(A, 8, PV, "s31", "0x80000")
    A("s_lshl_b32 s31, s30, 10", "s_lshl_b32 s32, s29, 19", "s_add_u32 s31, s31, s32", f"s_add_u32 s31, s31, {OF_OFF}")
    srd(A, 20, PWS, "s31", 3 * 131072 + 4096)
    srd(A, 24, PWS, 0, WSLO); srd(A, 64, PDBG, 0, 256)
    A("s_lshl_b32 s74, s30, 5", "s_lshl_b32 s31, s29, 2", "s_add_u32 s74, s74, s31", f"s_add_u32 s74, s74, {FLAG_OFF}")
    A("s_lshl_b32 s31, s28, 2", f"v_or_b32 {v(t+3)}, s31, {v(t+2)}", f"v_xor_b32 {v(t+3)}, {v(t+3)}, {v(t+1)}", f"v_lshlrev_b32 {v(t+3)}, 4, {v(t+3)}",
      f"v_lshl_add_u32 {v(VK)}, {v(t+4)}, 8, {v(t+3)}")
    A("s_and_b32 s31, s31, 4", f"v_or_b32 {v(t+3)}, s31, {v(t+2)}", f"v_lshlrev_b32 {v(t+3)}, 1, {v(t+3)}", f"v_xor_b32 {v(t+3)}, {v(t+3)}, {v(t+1)}",
      f"v_lshlrev_b32 {v(t+3)}, 4, {v(t+3)}", f"v_lshl_add_u32 {v(VV)}, {v(t+4)}, 8, {v(t+3)}")
    g_, i_, c_, r_ = t + 2, t + 1, t + 5, t + 6
    A(f"v_and_b32 {v(c_)}, 3, v0", f"v_bfe_u32 {v(r_)}, v0, 2, 2")
    A(f"v_lshlrev_b32 {v(t+4)}, 8, {v(c_)}", f"v_lshl_add_u32 {v(t+4)}, {v(r_)}, 12, {v(t+4)}")
    for k in range(4):
        A(f"s_add_u32 s31, s28, {k}", "s_and_b32 s31, s31, 3", f"s_lshl_b32 {s(76+k)}, s31, 2",
          f"v_or_b32 {v(t+3)}, {s(76+k)}, {v(g_)}", f"v_xor_b32 {v(t+3)}, {v(t+3)}, {v(i_)}", f"v_lshl_add_u32 {v(RK+k)}, {v(t+3)}, 4, {v(t+4)}")
    A(f"v_lshl_add_u32 {v(t+4)}, {v(g_)}, 3, {v(r_)}", f"v_lshlrev_b32 {v(t+4)}, 8, {v(t+4)}", f"v_lshl_add_u32 {v(t+4)}, {v(c_)}, 4, {v(t+4)}",
      f"v_add_u32 {v(t+4)}, {VBASE}, {v(t+4)}", f"v_lshlrev_b32 {v(t+7)}, 2, {v(r_)}")
    for k in range(4): A(f"v_xor_b32 {v(t+3)}, {s(76+k)}, {v(t+7)}", f"v_lshl_add_u32 {v(RW+k)}, {v(t+3)}, 4, {v(t+4)}")
    A(f"v_lshl_add_u32 {v(t+4)}, {v(g_)}, 4, {v(r_)}", f"v_lshlrev_b32 {v(t+4)}, 8, {v(t+4)}", f"v_lshl_add_u32 {v(t+4)}, {v(c_)}, 3, {v(t+4)}",
      f"v_add_u32 {v(t+4)}, {VBASE}, {v(t+4)}", f"v_and_b32 {v(t+7)}, 1, {v(g_)}", f"v_lshl_or_b32 {v(t+7)}, {v(t+7)}, 2, {v(r_)}")
    for k in range(8): A(f"v_xor_b32 {v(t+3)}, {k}, {v(t+7)}", f"v_lshl_add_u32 {v(RV+k)}, {v(t+3)}, 5, {v(t+4)}")
    A(f"v_lshrrev_b32 {v(t+3)}, 1, {v(i_)}", f"v_xor_b32 {v(t+3)}, {v(t+3)}, {v(g_)}", f"v_lshlrev_b32 {v(t+4)}, 7, {v(i_)}", f"v_add_u32 {v(t+4)}, s75, {v(t+4)}",
      f"v_lshl_add_u32 {v(t+4)}, {v(t+3)}, 4, {v(t+4)}", f"v_add_u32 {v(RX)}, {XA}, {v(t+4)}", f"v_add_u32 {v(RX+2)}, {XB}, {v(t+4)}",
      f"v_xor_b32 {v(RX+1)}, 64, {v(RX)}", f"v_xor_b32 {v(RX+3)}, 64, {v(RX+2)}")
    for i in range(4): A(f"v_mov_b32 {v(ONES+i)}, 0x3f803f80")
    A("s_mov_b32 s34, 0", "s_mov_b32 s35, 0")
    stamp(A, "setup", stamps)
    ln_compute(A, vm, stamps)
    stamp(A, "lnend", stamps)
    def w_read(G, sx, p):
        kt, T = divmod(G, 8)
        return f"ds_read_b64_tr_b16 {a(8*(G%4)+4*sx+2*p,2)}, {v(RW+T//2)} offset:{wslot(kt)*16384 + sx*8192 + p*1024 + 8*(T&1)}"
    def x_read(kt, q, sx): return f"ds_read_b128 {a(xb(kt,q,sx),4)}, {v(RX+2*(kt&1)+sx)} offset:{2048*q}"
    A(*vm.wait([("w", 0), ("x", 0)])); A("s_barrier")
    stamp(A, "q0", stamps)
    for sx in range(2):
        for p in range(2): A(w_read(0, sx, p))
    for q in range(4):
        for sx in range(2): A(x_read(0, q, sx))
    for sx in range(2):
        for p in range(2): A(w_read(1, sx, p))
    A("s_waitcnt lgkmcnt(4)")
    state = [(I(w_read(1, sx, p)).w, -8) for sx in range(2) for p in range(2)]
    apoll = f"buffer_load_dword {v(t+12)}, {v(t+13)}, {SDB}, 0 offen sc1"
    for kt in range(10):
        st = Stream(); pos = {}
        for T in range(8):
            af = 8 * ((kt * 8 + T) % 4)
            for q in range(4):
                for sx in range(2):
                    c = 0 if (kt == 0 and sx == 0) else v(acc(q, T), 4)
                    pos[T, 2*q + sx] = st.add(f"{MF} {v(acc(q,T),4)}, {a(af+4*sx,4)}, {a(xb(kt,q,sx),4)}, {c}")
            if T < 2:
                for sx in range(2):
                    c = 0 if (kt == 0 and sx == 0) else v(CSA + 4*T, 4)
                    pos[T, 8 + sx] = st.add(f"{MF} {v(CSA+4*T,4)}, {a(af+4*sx,4)}, {v(ONES,4)}, {c}")
        last = len(st.mf) - 1
        for T in range(8):
            G = kt * 8 + T + 2
            if G < 80:
                for k in range(4): st.mem[pos[T, 1 + k]].append(w_read(G, k >> 1, k & 1))
        def place(lines, slots, tag):
            it = iter(slots); g = next(it)
            for x in lines:
                if x.startswith("s_"): st.sc[g - 1 if g and not st.mem[g - 1] else g].append(x)
                else:
                    if st.sc[g] and st.sc[g][-1].split(",")[0].endswith("m0"): st.sc[g].append("s_nop 0")
                    st.mem[g].append(x); vm.issue(tag); g = next(it, last)
        if kt == 0: place(x_dma(2), [pos[0, 0], pos[1, 0], pos[1, 8], pos[1, 9], pos[2, 0], pos[2, 5], pos[2, 6], pos[2, 7]], ("x", 2))
        if kt < 9:
            st.sc[pos[0, 4]] += vm.wait([("x", kt + 1)]) if kt else [f"s_waitcnt vmcnt({vm.n_after([('x', 1)]) - 7})"]
            sl = [pos[0, k] for k in range(5, 10)] + [pos[1, k] for k in range(5, 8)]
            xr = set()
            for k in range(8):
                x = x_read(kt + 1, k >> 1, k & 1); st.mem[sl[k]].append(x); xr |= I(x).w
            st.force[pos[3, 3]] = xr
        if kt + 3 < 10: place(x_dma(kt + 3), [pos[T, k] for T in (3, 4, 5) for k in (5, 6, 7)][:8], ("x", kt + 3))
        m = kt + 1
        need = ([("w", m)] if m < 10 else []) + ([("k", 0)] if m == 9 else []) + (["ls"] if m == 2 else [])
        gb = pos[5, 7]
        if m == 8:
            st.va[gb] += w0_only("APOLLW", [f"s_waitcnt vmcnt({len(vm.q) - napoll})"] + spin("APOLL", apoll, v(t+12), "32"))
        if need: st.va[gb] += vm.wait(need)
        st.va[gb].append("s_barrier")
        if m == 2: st.va[gb] += w0_only("ASIGW", ["s_lshl_b32 s72, s63, 2"] + signal("s72"))
        if m == 6:
            st.va[gb] += w0_only("APOL0W", ["s_lshl_b32 s72, s63, 2", f"v_mov_b32 {v(t+13)}, s72", apoll]); napoll = len(vm.q)
        sl = [pos[6, 0], pos[6, 5], pos[6, 6], pos[6, 7], pos[7, 0], pos[7, 5], pos[7, 6], pos[7, 7]]
        if 2 <= m <= 7: place(wq_dma(m + 2), sl[0:4], ("w", m + 2))
        if m >= 8:
            place([v_m0(m - 8)] + [v_dma(i) for i in range(4)], sl[0:4], ("v", m - 8))
            st.va[sl[3]].append("s_add_u32 s35, s35, 16384")
        kk = {5: 0, 6: 1, 9: 2, 10: 3}.get(m)
        if kk is not None:
            place([k_m0(kk)] + [k_dma(i) for i in range(4)], sl[4:8], ("k", kk))
            st.va[last].append("s_add_u32 s34, s34, 16384")
        if m == 8:
            st.va[pos[6, 4]] += [f"v_and_b32 {v(t+12)}, 15, v0", f"v_lshlrev_b32 {v(t+12)}, 3, {v(t+12)}"]
            st.sc[pos[7, 0]] += ["s_lshl_b32 s72, s30, 7", f"s_add_u32 s72, s72, {STAT_OFF}"]
            for q in range(4):
                st.mem[sl[4 + q]].append(f"buffer_load_dwordx2 {v(STT+2*q,2)}, {v(t+12)}, {SWS}, s72 offen offset:{128*q} sc1"); vm.issue("st")
        if kt == 9:
            sl = [pos[T, k] for T in range(6) for k in (5, 6, 7)]
            for k in range(16): st.mem[sl[k]].append(k_read(0, k >> 2, k & 3))
        if kt in (1, 2):
            for i in range(48): st.va[pos[i // 6, 1 + i % 6]].append(f"v_accvgpr_write_b32 {a(32 + 48*(kt-1) + i)}, 0")
        if kt: stamp(A, f"q{kt}", stamps)
        state = st.emit(A, state, nxt0=regs_of(a(0, 4)) | regs_of(a(xb(kt + 1, 0, 0), 4)))
    stamp(A, "q10", stamps)
    A(f"v_lshrrev_b32 {v(t+12)}, 4, v0", f"v_lshlrev_b32 {v(t+12)}, 4, {v(t+12)}", "s_lshl_b32 s72, s28, 7", f"s_add_u32 s72, s72, {FCS}",
      f"v_add_u32 {v(t+13)}, s72, {v(t+12)}", f"v_mov_b32 {v(t+14)}, {FVOTE}", f"v_mov_b32 {v(t+15)}, 0",
      f"ds_write_b128 {v(t+13)}, {v(CSA,4)}", f"ds_write_b128 {v(t+13)}, {v(CSA+4,4)} offset:64", f"ds_write_b32 {v(t+14)}, {v(t+15)}")
    for k in range(4): A(f"s_lshl_b32 s72, {s(76+k)}, 5", f"s_add_u32 s72, s72, {FCS}", f"v_add_u32 {v(ONES+k)}, s72, {v(t+12)}")
    A(*vm.wait(["st"])); A("s_waitcnt lgkmcnt(0)", "s_barrier")
    def cs_read(T): return f"ds_read_b128 {v(CSR+4*(T%3),4)}, {v(ONES+T//2)} offset:{64*(T&1)}"
    A(cs_read(0), cs_read(1))
    for T in range(8):
        if T + 2 < 8: A(cs_read(T + 2))
        A(f"s_waitcnt lgkmcnt({min(2, 7-T)})")
        c = CSR + 4 * (T % 3)
        for q in range(4):
            for h in range(2): A(f"v_pk_mul_f32 {v(t+12+2*h,2)}, {v(c+2*h,2)}, {v(STT+2*q,2)} op_sel:[0,1] op_sel_hi:[1,1]")
            for h in range(2): A(f"v_pk_fma_f32 {v(acc(q,T)+2*h,2)}, {v(acc(q,T)+2*h,2)}, {v(STT+2*q,2)}, {v(t+12+2*h,2)} op_sel_hi:[1,0,1]")
        for q in range(4):
            for h in range(2): A(f"v_cvt_pk_bf16_f32 {v(Q+16*q+2*T+h)}, {v(acc(q,T)+2*h)}, {v(acc(q,T)+2*h+1)}")
    TMP = J
    for q in range(4):
        for tt in range(4):
            A(f"{MF} {v(TMP+4*q,4)}, {a(kf(0,tt),4)}, {v(qf(q,tt),4)}, {v(TMP+4*q,4) if tt else 0}")
            for i in range(2): A(f"v_accvgpr_write_b32 {a(8*q + 2*tt + i)}, 0")
    for i in range(8): A(f"v_mov_b32 {v(L+i)}, 0")
    for i in range(8): A(f"v_mov_b32 {v(P+8+i)}, 0")
    for q in range(4):
        A(f"v_max3_f32 {v(TMP+4*q)}, {v(TMP+4*q)}, {v(TMP+4*q+1)}, {v(TMP+4*q+2)}", f"v_max_f32 {v(TMP+4*q)}, {v(TMP+4*q)}, {v(TMP+4*q+3)}")
    negm_from_max(A, [TMP + 4*q for q in range(4)])
    A(f"s_cmp_lt_u32 s2, {NFFN + NPACK}", "s_cselect_b32 s79, 0xfc, 12", f"s_cmp_lt_u32 s2, {NFFN}", "s_cselect_b32 s79, 0xfe, s79", "s_mov_b32 s63, 0")
    A("ATT:", "s_nop 1")
    for kt in range(4):
        for tt in range(4):
            A(f"{MF} {v(S+4*kt,4)}, {a(kf(kt,tt),4)}, {v(qf(0,tt),4)}, {v(S+4*kt,4) if tt else v(NM,4)}")
    A("s_mov_b32 s62, 8")
    stamp(A, "att", stamps)
    if stamps: A("s_memtime s[96:97]")
    st = main_loop()
    state = st.emit(None, [])
    A(".p2align 5", "LOOP:")
    b0 = len(A.L)
    assert state == st.emit(A, state)
    A("s_sub_u32 s62, s62, 1", "s_cmp_eq_u32 s62, 0", "s_cbranch_scc1 LOOPX", "s_bitcmp1_b32 s79, s62", "s_cbranch_scc0 LOOP", "s_branch SIDE", "LOOPX:")
    body = A.L[b0:]
    stamp(A, "loopx", stamps)
    if stamps: A("s_memtime s[98:99]")
    vm = VM(24)
    tail = []
    for dt in range(8):
        for h in range(2): tail.append(f"{MF} {a(of(dt,3),4)}, {a(vf(h,dt),4)}, {v(P+8+4*h,4)}, {a(of(dt,3),4)}")
    B = Asm(); oproj_setup_early(B)
    for i, m in enumerate(tail):
        A(m)
        if i < 4: A(f"v_add_f32 {v(L+2*i)}, {v(L+2*i)}, {v(L+2*i+1)}")
        A(*B.L[2*i:2*i+2])
    A(*B.L[32:])
    for k in range(6, 9): put(A, vm, a_loads(k, k), ("a", k))
    ls = [L + 2*q for q in range(4)]
    xgroup_multi(A, ls, [t + i for i in range(4)], "v_add_f32")
    A(f"v_add_f32 {v(t+1)}, {v(ls[0])}, {v(ls[1])}", f"v_add_f32 {v(t+2)}, {v(ls[2])}, {v(ls[3])}", f"v_add_f32 {v(t+1)}, {v(t+1)}, {v(t+2)}",
      f"s_mov_b32 s72, {LMAX}", f"v_cmp_nge_f32 vcc, s72, {v(t+1)}", f"v_mov_b32 {v(t+2)}, {FVOTE}", f"v_mov_b32 {v(t+3)}, 1")
    for q in range(4): A(f"v_rcp_f32 {v(ls[q])}, {v(ls[q])}")
    A("s_and_saveexec_b64 s[72:73], vcc", f"ds_write_b32 {v(t+2)}, {v(t+3)}", "s_mov_b64 exec, s[72:73]")
    for k in range(9, 12): put(A, vm, a_loads(k, k), ("a", k))
    for e in range(4):
        A(f"s_mov_b32 s72, {e*131072}")
        for q in range(4):
            w = TMP + 12 * (q & 1)
            for b in range(2):
                for r in range(4): A(f"v_accvgpr_read_b32 {v(w+4*b+r)}, {a(of(2*e+b,q)+r)}")
            for i in range(4): A(f"v_pk_mul_f32 {v(w+2*i,2)}, {v(w+2*i,2)}, {v(ls[q],2)} op_sel_hi:[1,0]")
            for i in range(4): A(f"v_cvt_pk_bf16_f32 {v(w+8+i)}, {v(w+2*i)}, {v(w+2*i+1)}")
            put(A, vm, [f"buffer_store_dwordx4 {v(w+8,4)}, {v(L16)}, {SO}, s72 offen offset:{1024*q} sc1"], "o")
    stamp(A, "ost", stamps)
    A("s_waitcnt lgkmcnt(0)", "s_barrier", f"ds_read_b32 {v(t+3)}, {v(t+2)}")
    for k in range(6): put(A, vm, a_loads(k, k), ("a", k))
    A("s_waitcnt lgkmcnt(0)", f"v_readfirstlane_b32 s72, {v(t+3)}", f"v_mov_b32 {v(t+4)}, 1", f"v_mov_b32 {v(t+5)}, s74",
      "s_andn2_b32 s72, s72, s63", "s_cmp_lg_u32 s72, 0", "s_cbranch_scc1 REDO", "s_barrier")
    stamp(A, "vote", stamps)
    A(*vm.wait(["o"]))
    stamp(A, "drain", stamps)
    A("s_mov_b64 exec, 1"); put(A, vm, [f"buffer_store_dword {v(t+4)}, {v(t+5)}, {SWS}, 0 offen sc1"], "f"); A("s_mov_b64 exec, -1")
    oproj(A, vm, stamps)
    if stamps:
        A("s_memrealtime s[62:63]", "s_waitcnt lgkmcnt(0)", "s_sub_u32 s96, s98, s96")
        srd(A, 68, PWS, STAMP_OFF, 0x10000)
        A("s_lshl_b32 s72, s2, 2", "s_add_u32 s72, s72, s28", "s_lshl_b32 s72, s72, 6", f"v_mov_b32 {v(t)}, s72", "s_mov_b64 exec, 1")
        for i, r in enumerate([80 + 2*k for k in range(8)] + [62, 96]):
            A(f"v_mov_b32 {v(t+1)}, {s(r)}", f"buffer_store_dword {v(t+1)}, {v(t)}, {ST}, 0 offen offset:{4*i}", "s_nop 1")
    A("END:", "s_endpgm")
    side_jobs(A)
    A("REDO:", "s_mov_b32 s63, 1", "s_mov_b32 s79, 0", "s_mov_b32 s34, 0", "s_mov_b32 s6, 0x80000", "s_mov_b32 s10, 0x80000", "s_waitcnt vmcnt(0)")
    M = TMP + 16
    for q in range(4): A(f"v_mov_b32 {v(M+q)}, 0xff800000")
    A("MAXL:", "s_barrier", k_m0(0), "s_nop 0")
    for i in range(4): A(k_dma(i))
    A("s_add_u32 s34, s34, 16384", "s_waitcnt vmcnt(0)", "s_barrier")
    for kt in range(4):
        for tt in range(4): A(k_read(0, kt, tt))
        if kt == 1: A("s_waitcnt lgkmcnt(0)")
    A("s_waitcnt lgkmcnt(0)")
    for q in range(4):
        for kt in range(4):
            for tt in range(4): A(f"{MF} {v(TMP+4*kt,4)}, {a(kf(kt,tt),4)}, {v(qf(q,tt),4)}, {v(TMP+4*kt,4) if tt else 0}")
        A("s_nop 7")
        for i in range(8): A(f"v_max3_f32 {v(M+q)}, {v(M+q)}, {v(TMP+2*i)}, {v(TMP+2*i+1)}")
    A("s_cmp_lt_u32 s34, 0x80000", "s_cbranch_scc1 MAXL")
    negm_from_max(A, [M + q for q in range(4)])
    for i in range(128): A(f"v_accvgpr_write_b32 {a(i)}, 0")
    for i in range(8): A(f"v_mov_b32 {v(L+i)}, 0")
    for i in range(8): A(f"v_mov_b32 {v(P+8+i)}, 0")
    A("s_mov_b32 s34, 0", "s_mov_b32 s35, 0", "s_barrier")
    for j in range(4):
        if j > 0:
            A(v_m0(j - 1), "s_nop 0")
            for i in range(4): A(v_dma(i))
            A("s_add_u32 s35, s35, 16384")
        A(k_m0(j), "s_nop 0")
        for i in range(4): A(k_dma(i))
        A("s_add_u32 s34, s34, 16384")
    A("s_waitcnt vmcnt(24)", "s_barrier")
    for kt in range(4):
        for tt in range(4): A(k_read(0, kt, tt))
        if kt == 1: A("s_waitcnt lgkmcnt(0)")
    A("s_waitcnt lgkmcnt(0)", "CODE1:", "s_branch ATT")
    return A, body
```

```python
XN_OFF = 0
XN_SIZE = 2048 * 1280
KEY_OFF = 0x300000
Y_OFF = 0x320000
STAT_OFF = 0x304000
FLAG_OFF = Y_OFF + 40960
FF_OFF = FLAG_OFF + 16384
ZERO_SIZE = 61440
WSLO = 0x400000
OF_OFF = 0x400000
OF_SIZE = 2048 * 8192
WOF_OFF = 0x1400000
WOF_SIZE = 4096 * 1280
STAMP_OFF = 0x2000000
```

```python
import sys
import core, fused
stamps = [x for x in sys.argv if x.startswith("--stamps")]
stamps = (stamps[0].split("=")[1] if "=" in stamps[0] else "start,q0,q10,att,loopx,vote,flag,gend").split(",") if stamps else None
out = [x for x in sys.argv[1:] if not x.startswith("--")][0]
ref = open("recurrent_scan__mha_block_cached__moe_arch_mod__prompt.s.ref").read().split("\n")
head = [l for l in ref if l.startswith(";   offset") or l.startswith("; Kernarg")]
A, body = fused.gen(stamps)
bad = core.check_hazards(A.L, "k") + core.check_hazards(body + body, "loop")
t = "\n".join(head) + "\n"
if "--list" in sys.argv: t += f"; @launch kernel={fused.NAME} grid=(256,1,1) block=(256,1,1) lds={fused.LDS}\n"
else: t += f"; @launch grid=(256,1,1) block=(256,1,1) lds={fused.LDS}\n"
t += '.amdgcn_target "amdgcn-amd-amdhsa--gfx950"\n'
t += core.kernel_text(fused.NAME, A.text(), 512, 256)
open(out, "w").write(t)
print("hazards", bad, "lines", len(A.L), "bytes", len(t))
```

```python
import os
from core import *
from layout import *
from common import argmax_keys, xgroup_multi

MF = "v_mfma_f32_16x16x32_bf16"
NAME = "recurrent_scan__mha_block_cached__moe_arch_mod__prompt_kernel"
PX, PK, PV, PWQ, PWO, PWR, PG, PU, PD, POUT, PDBG, PWS = 36, 38, 40, 42, 44, 48, 50, 52, 54, 56, 58, 60
SK, SV, SW, SX, SO, SWS, SDB, ST = "s[4:7]", "s[8:11]", "s[12:15]", "s[16:19]", "s[20:23]", "s[24:27]", "s[64:67]", "s[68:71]"
VK, VV, VW = 1, 2, 3
RK, RV, RW = 4, 8, 16
VX, RX = 20, 22
ONES = 26
L16 = 30
Q, ACC = 32, 96
S, P, NM, L = 96, 128, 144, 160
J = 168
T0 = 240
CSA, CSR, STT = 224, 232, 244
KF, VF = 128, 192
VBASE, SPARE = 65536, 131072
XA, XB = SPARE, 32768
FEX, FH, FVOTE, FCS = SPARE + 7680, SPARE + 8192 + 7680, SPARE + 16384 + 7680, SPARE + 24576 + 7680
LDS = 163840
NFFN, NPACK = 216, 256
SEL, RBITS = 46, 47
ASIG = 6
QSCALE = 0x3e0293ee
LMAX = 0x5d800000
NLOG2E = 0xbfb8aa3b
DBG_F, DBG_C = 32, 36
LR = int(os.environ.get("MAPLR", 3))
DUMMY = 239
VT = 31
STO = "s[36:39]"
TOUCH = os.environ.get("TOUCH", "a")
PRE = os.environ.get("PRE", "w0,x0,W,C").split(",")
MID = os.environ.get("MID", "w1,x1,R").split(",")
ZERO = os.environ.get("ZERO", "").split(",")
TPOL = os.environ.get("TPOL", "")

def qf(q, t): return Q + 16 * q + 4 * t
def acc(q, T): return ACC + 32 * q + 4 * T
def kf(kt, t): return KF + 16 * kt + 4 * t
def vf(h, dt): return VF + 32 * h + 4 * dt
def of(dt, q): return 16 * dt + 4 * q
def xb(kt, q, sx): return 192 + 32 * (kt & 1) + 8 * q + 4 * sx
def wslot(kt): return (kt + 2) % 4
KVPOL = os.environ.get("KVPOL", "sc1 nt")
EXP = os.environ.get("EXP", "")
NT = os.environ.get("NT", "nt")
XNT = os.environ.get("XNT", "")
WSC = os.environ.get("WSC", "sc1")
OSC = os.environ.get("OSC", "sc1")
def k_read(slot, kt, t): return f"ds_read_b128 {a(kf(kt,t),4)}, {v(RK+t)} offset:{slot*16384 + kt*1024}"
def v_read(slot, h, dt, p): return f"ds_read_b64_tr_b16 {a(vf(h,dt)+2*p,2)}, {v(RV+dt)} offset:{slot*16384 + (2*h+p)*1024}"
def k_dma(i): return f"buffer_load_dwordx4 {v(VK)}, {SK}, s34 offen offset:{1024*i} {KVPOL} lds"
def v_dma(i): return f"buffer_load_dwordx4 {v(VV)}, {SV}, s35 offen offset:{1024*i} {KVPOL} lds"
def kv_touch(): return f"buffer_load_dword {v(DUMMY)}, {v(VT)}, {STO}, 0 offen {TPOL}"
def k_m0(slot): return f"s_add_u32 m0, s33, {slot*16384}"
def v_m0(slot): return f"s_add_u32 m0, s33, {VBASE + slot*16384}"

class VM:
    def __init__(self, older=0):
        self.q = [None] * older; self.done = 0
    def issue(self, tag): self.q.append(tag)
    def n_after(self, tags):
        return len(self.q) - 1 - max(i for i, t in enumerate(self.q) if t in tags)
    def wait(self, tags):
        n = self.n_after(tags)
        if len(self.q) - self.done <= n: return []
        self.done = len(self.q) - n
        return [f"s_waitcnt vmcnt({n})"]
    def room(self):
        if len(self.q) - self.done < 62: return []
        self.done = len(self.q) - 56
        return ["s_waitcnt vmcnt(56)"]

class Stream:
    def __init__(self):
        self.mf = []; self.sc = []; self.mem = []; self.va = []; self.force = {}
        self.pre = []; self.tag = {}; self.tagq = {}
    def add(self, m):
        self.mf.append(m); self.sc.append([]); self.mem.append([]); self.va.append([]); self.pre.append([])
        return len(self.mf) - 1
    def resolve(self, vm):
        for g in range(len(self.mf)):
            for need in self.pre[g]: self.sc[g] = vm.wait(need) + self.sc[g]
            tq = list(self.tagq.get(g, []))
            for x in self.mem[g]:
                if x.startswith("buffer"): vm.issue(self.tag[x] if x in self.tag else tq.pop(0))
            out = []
            for x in self.va[g]:
                if isinstance(x, list): out += vm.wait(x)
                elif x == "@mark": vm.mark = len(vm.q)
                elif x == "@poll": out.append(f"s_waitcnt vmcnt({len(vm.q) - vm.mark})")
                else:
                    out.append(x)
                    if x in self.tag: vm.issue(self.tag[x])
            self.va[g] = out
    def emit(self, A, state=None, lag=6, nxt0=None):
        pend = list(state) if state else []
        n = len(self.mf); out = []
        for i in range(n):
            out.append(self.mf[i])
            pre = list(self.sc[i])
            nxt = I(self.mf[i + 1]).ab if i + 1 < n else (I(self.mf[0]).ab if nxt0 is None else nxt0)
            nxt = nxt | self.force.get(i, set())
            hit = [k for k, (rg, t) in enumerate(pend) if rg & nxt]
            if hit:
                k = max(hit)
                while k + 1 < len(pend) and i - pend[k + 1][1] >= lag: k += 1
                left = len(pend) - 1 - k
                assert left <= 15
                pre.insert(0, f"s_waitcnt lgkmcnt({left})")
                pend = pend[k + 1:]
            out += pre
            for m in self.mem[i]:
                out.append(m)
                if m.startswith("ds_read"): pend.append((I(m).w, i))
            out += self.va[i]
        if A is not None: A(*out)
        return [(rg, t - n) for rg, t in pend]

def stamp(A, k, on):
    A(*stampl(k, on))

def stampl(k, on):
    return [f"s_memrealtime {s(80+2*on.index(k),2)}"] if on and k in on else []

def allred32(A, x, t, op):
    for r in (8, 4, 2, 1):
        A("s_nop 1", f"{op}_dpp {v(x)}, {v(x)}, {v(x)} row_ror:{r} row_mask:0xf bank_mask:0xf")
    A(f"v_mov_b32 {v(t)}, {v(x)}", "s_nop 1", f"v_permlane16_swap_b32 {v(x)}, {v(t)}", "s_nop 1", f"{op} {v(x)}, {v(x)}, {v(t)}")

def rbf(A, x):
    A(f"v_cvt_pk_bf16_f32 {v(x)}, {v(x)}, {v(x)}", f"v_lshlrev_b32 {v(x)}, 16, {v(x)}")

def w0_only(label, lines):
    return ["s_cmp_lg_u32 s28, 0", f"s_cbranch_scc1 {label}"] + lines + [f"{label}:"]

def signal(off):
    return ["s_mov_b64 exec, 1", f"v_mov_b32 {v(T0+14)}, 1", f"v_mov_b32 {v(T0+15)}, {off}",
            f"buffer_atomic_add {v(T0+14)}, {v(T0+15)}, {SDB}, 0 offen sc1", "s_mov_b64 exec, -1"]

def spin(label, reload_, val, expect, mask=None):
    m = [f"s_and_b64 vcc, vcc, {mask}"] if mask else []
    return [f"s_mov_b32 s32, {os.environ.get('SPINCAP', '0x100000')}", f"{label}:", f"v_cmp_gt_u32 vcc, {expect}, {val}", "s_sub_u32 s32, s32, 1", f"s_cbranch_scc1 {label}_OK"] + m + \
           [f"s_cbranch_vccz {label}_OK", "s_sleep 1", reload_, "s_waitcnt vmcnt(0)", f"s_branch {label}", f"{label}_OK:"]

ROW, PP, LXA, LWA, LSA = 32, 33, 34, 35, 36
LX, LW, LF, LS, LD = 40, 50, 60, 80, 90

def ln_unpack(d, x):
    o = []
    for i in range(10): o += [f"v_lshlrev_b32 {v(d+2*i)}, 16, {v(x+i)}", f"v_and_b32 {v(d+2*i+1)}, s72, {v(x+i)}"]
    return o

def ln_stats(A, vm, stamps, extra):
    t = 37
    B = Asm()
    B(*ln_unpack(LF, LX))
    for i in range(10): B(f"v_add_f32 {v(LS+i)}, {v(LF+2*i)}, {v(LF+2*i+1)}")
    for i in range(5): B(f"v_add_f32 {v(LS+i)}, {v(LS+i)}, {v(LS+5+i)}")
    B(f"v_add_f32 {v(LS)}, {v(LS)}, {v(LS+1)}", f"v_add_f32 {v(LS+2)}, {v(LS+2)}, {v(LS+3)}", f"v_add_f32 {v(LS)}, {v(LS)}, {v(LS+4)}", f"v_add_f32 {v(LS)}, {v(LS)}, {v(LS+2)}")
    allred32(B, LS, LS + 1, "v_add_f32")
    M, R = LS, LS + 2
    B(f"v_mul_f32 {v(M)}, s73, {v(M)}")
    for i in range(20): B(f"v_sub_f32 {v(LD+i)}, {v(LF+i)}, {v(M)}")
    for i in range(4): B(f"v_mul_f32 {v(R+i)}, {v(LD+i)}, {v(LD+i)}")
    for i in range(4, 20): B(f"v_fmac_f32 {v(R+i%4)}, {v(LD+i)}, {v(LD+i)}")
    B(f"v_add_f32 {v(R)}, {v(R)}, {v(R+1)}", f"v_add_f32 {v(R+2)}, {v(R+2)}, {v(R+3)}", f"v_add_f32 {v(R)}, {v(R)}, {v(R+2)}")
    allred32(B, R, R + 1, "v_add_f32")
    B(f"v_mul_f32 {v(R)}, s73, {v(R)}")
    rbf(B, M); rbf(B, R)
    B(f"v_add_f32 {v(R)}, 0x3727c5ac, {v(R)}"); rbf(B, R)
    B(f"v_sqrt_f32 {v(R)}, {v(R)}", "s_nop 0"); rbf(B, R)
    B(f"v_rcp_f32 {v(R)}, {v(R)}", f"v_lshlrev_b32 {v(t)}, 3, {v(ROW)}")
    B(f"v_mul_f32 {v(LS+6)}, {QSCALE}, {v(R)}", f"v_mul_f32 {v(LS+7)}, {v(M)}, {v(LS+6)}", f"v_sub_f32 {v(LS+7)}, 0, {v(LS+7)}")
    A("s_mov_b32 s72, 0xffff0000", "s_mov_b32 s73, 0x3acccccd")
    A(*vm.wait(["lx"]))
    stamp(A, "lx", stamps)
    k = 0
    per = max(1, len(B.L) // (1 + sum(tag is not None for y, tag in extra)))
    for i, x in enumerate(B.L):
        A(x)
        while i % per == per - 1 and k < len(extra):
            y, tag = extra[k]; k += 1
            A(y)
            if tag is not None:
                vm.issue(tag); break
    assert k == len(extra)
    A(f"s_mov_b32 s31, {STAT_OFF}", f"buffer_store_dwordx2 {v(LS+6,2)}, {v(t)}, {SWS}, s31 offen sc1"); vm.issue("ls")

def ln_rest():
    t = 37
    M, R = LS, LS + 2
    B = Asm()
    for i in range(20): B(f"v_sub_f32 {v(LF+i)}, {v(LF+i)}, {v(M)}")
    for i in range(10): B(f"v_cvt_pk_bf16_f32 {v(LX+i)}, {v(LF+2*i)}, {v(LF+2*i+1)}")
    B(*ln_unpack(LF, LX))
    for i in range(20): B(f"v_mul_f32 {v(LF+i)}, {v(LF+i)}, {v(R)}")
    for i in range(10): B(f"v_cvt_pk_bf16_f32 {v(LX+i)}, {v(LF+2*i)}, {v(LF+2*i+1)}")
    un = ln_unpack(LF, LX)
    for i in range(5): B(f"buffer_store_dwordx2 {v(LX+2*i,2)}, {v(LXA)}, {SWS}, 0 offen offset:{256*i} sc1", *un[4*i:4*i+4])
    u = LS + 6
    for i in range(10):
        B(f"v_lshlrev_b32 {v(u)}, 16, {v(LW+i)}", f"v_and_b32 {v(u+1)}, s72, {v(LW+i)}")
        op = "v_mul_f32" if i < 2 else "v_fmac_f32"
        B(f"{op} {v(R+2*(i&1))}, {v(LF+2*i)}, {v(u)}", f"{op} {v(R+2*(i&1)+1)}, {v(LF+2*i+1)}, {v(u+1)}")
    B(f"v_add_f32 {v(R)}, {v(R)}, {v(R+1)}", f"v_add_f32 {v(R+2)}, {v(R+2)}, {v(R+3)}", f"v_add_f32 {v(R)}, {v(R)}, {v(R+2)}")
    allred32(B, R, R + 1, "v_add_f32")
    k, u = R, R + 1
    B(f"v_cvt_pk_bf16_f32 {v(k)}, {v(k)}, {v(k)}", f"v_ashrrev_i32 {v(u)}, 31, {v(k)}", f"v_and_b32 {v(u)}, 0x7fff, {v(u)}", f"v_or_b32 {v(u)}, 0x8000, {v(u)}",
      f"v_and_b32 {v(k)}, 0xffff, {v(k)}", f"v_xor_b32 {v(k)}, {v(k)}, {v(u)}", f"v_sub_u32 {v(u)}, 2047, {v(ROW)}", f"v_lshl_or_b32 {v(k)}, {v(k)}, 11, {v(u)}",
      f"v_mov_b32 {v(u)}, {v(k)}", f"v_lshrrev_b32 {v(t)}, 1, {v(ROW)}", f"v_lshlrev_b32 {v(t)}, 2, {v(t)}", f"v_permlane32_swap_b32 {v(k)}, {v(u)}",
      f"v_add_u32 {v(t)}, {KEY_OFF}, {v(t)}", "s_nop 0", f"v_max_u32 {v(k)}, {v(k)}, {v(u)}", f"buffer_store_dword {v(k)}, {v(t)}, {SWS}, 0 offen sc1")
    B(f"v_mov_b32 {v(u)}, 0", f"v_mov_b32 {v(t)}, s74", f"buffer_store_dword {v(u)}, {v(t)}, {SWS}, 0 offen sc1")
    B(f"v_lshl_add_u32 {v(t)}, v0, 2, s73", f"buffer_store_dword {v(u)}, {v(t)}, {SWS}, 0 offen sc1")
    return B.L

def main_loop():
    st = Stream()
    for tile in range(4):
        base = len(st.mf)
        for q in range(4):
            qn, qp = (q + 1) % 4, (q - 1) % 4
            sb = S + 16 * ((q + 1) % 2)
            w0 = len(st.mf)
            for kt in range(4):
                for t in range(4):
                    c = v(NM + 4 * qn, 4) if t == 0 else v(sb + 4 * kt, 4)
                    st.add(f"{MF} {v(sb+4*kt,4)}, {a(kf(kt,t),4)}, {v(qf(qn,t),4)}, {c}")
            pb = P + 8 * ((q - 1) % 2)
            for dt in range(8):
                for h in range(2):
                    st.add(f"{MF} {a(of(dt,qp),4)}, {a(vf(h,dt),4)}, {v(pb+4*h,4)}, {a(of(dt,qp),4)}")
            sc = S + 16 * (q % 2); pc = P + 8 * (q % 2)
            for i in range(16):
                st.va[w0 + 2*i].append(f"v_exp_f32 {v(sc+i)}, {v(sc+i)}")
                l = L + 2 * q + (i & 1)
                st.va[w0 + 2*i + 1].append(f"v_add_f32 {v(l)}, {v(l)}, {v(sc+i)}")
                if i & 1: st.va[w0 + 2*i + 1].append(f"v_cvt_pk_bf16_f32 {v(pc + i//2)}, {v(sc+i-1)}, {v(sc+i)}")
        if tile == 0 and "k" in TOUCH:
            st.mem[5].append(kv_touch()); st.va[9].append(f"v_add_u32 {v(VT)}, 0x10000, {v(VT)}")
        st.sc[base + 15] += ["s_waitcnt vmcnt(16)"]
        st.sc[base + 16] += ["s_barrier"]
        g = base + 17
        for dt in range(8):
            for h in range(2):
                for p in range(2):
                    st.mem[g].append(v_read(tile, h, dt, p)); g += 1
        g = base + 65
        for kt in range(4):
            for t in range(4):
                st.mem[g].append(k_read((tile + 1) % 4, kt, t)); g += 2
        for i, x in enumerate(["s_cmp_lt_u32 s35, 0x80000", "s_cselect_b32 s8, s40, s36", "s_cselect_b32 s9, s41, s37", "s_cselect_b32 s3, 0x4000, s48"]): st.sc[base + 44 + 2*i].append(x)
        st.sc[base + 52] += [v_m0((tile + 3) % 4)]
        gv = [53, 57, 61, 101]; gk = [109, 113, 117, 121]
        for i in range(4): st.mem[base + gv[i]].append(v_dma(i))
        for i, x in enumerate(["s_add_u32 s35, s35, s3", "s_cmp_lt_u32 s34, 0x80000", "s_cselect_b32 s4, s38, s42", "s_cselect_b32 s5, s39, s43", "s_cselect_b32 s3, 0x4000, s48"]): st.sc[base + 102 + i].append(x)
        st.sc[base + 107] += [k_m0(tile)]
        for i in range(4): st.mem[base + gk[i]].append(k_dma(i))
        st.sc[base + 122] += ["s_add_u32 s34, s34, s3"]
    return st

def negm_from_max(A, ms):
    xgroup_multi(A, ms, [T0 + i for i in range(4)], "v_max_f32")
    for q in range(4):
        for r in range(4): A(f"v_sub_f32 {v(NM+4*q+r)}, 0, {v(ms[q])}")

def div_rows(A, d, i, per, magic, stride, t):
    A(f"v_add_u32 {v(t)}, {64*i}, v0", f"v_mul_u32_u24 {v(t+1)}, {magic}, {v(t)}", f"v_lshrrev_b32 {v(t+1)}, 16, {v(t+1)}",
      f"v_mul_u32_u24 {v(t+2)}, {per}, {v(t+1)}", f"v_sub_u32 {v(t+2)}, {v(t)}, {v(t+2)}", f"v_lshlrev_b32 {v(t+2)}, 4, {v(t+2)}",
      f"v_mul_u32_u24 {v(t+1)}, {stride}, {v(t+1)}", f"v_add_u32 {v(d)}, {v(t+1)}, {v(t+2)}")

XRP, XNP = (22, 24, 26, 28, 18), (16, 232, 234, 236, 252)
VXO = 31
XS, WF, GA = J, J + 20, J + 40
DBGV, DBGA = J + 46, J + 47

def side_jobs(A):
    t = T0
    dbg_load = f"buffer_load_dword {v(DBGV)}, {v(DBGA)}, {SDB}, 0 offen sc1"
    A("SIDE:")
    for it in (1, 2, 3, 4, 5, 6): A(f"s_cmp_eq_u32 s62, {7-it}", f"s_cbranch_scc1 JOB{it}")
    A("JOB0:", "s_lshl_b32 s75, s28, 13", f"s_add_u32 s75, s75, {SPARE}")
    div_rows(A, J + 44, 0, 10, 6554, 1280, t)
    srd(A, 68, PWO, 0, 4096 * 1280)
    A("s_lshr_b32 s73, s2, 1", "s_and_b32 s72, s2, 1", "s_lshl_b32 s72, s72, 2", "s_add_u32 s72, s72, s28",
      f"s_mul_i32 s76, s73, {32*1280}", "s_mul_i32 s77, s72, 160", "s_add_u32 s76, s76, s77",
      f"s_mul_i32 s77, s72, {128*5120}", "s_mul_i32 s73, s73, 5120", "s_add_u32 s77, s77, s73")
    for i in range(6):
        A(f"s_add_u32 m0, s75, {i*1024}", "s_nop 0" if i == 0 else f"s_add_u32 s76, s76, {6*1280}", f"buffer_load_dwordx4 {v(J+44)}, {ST}, s76 offen {NT} lds")
    A(f"s_mov_b32 s72, {KEY_OFF}")
    for i in range(4): A(f"buffer_load_dwordx4 {v(XS+4*i,4)}, {v(L16)}, {SWS}, s72 offen offset:{1024*i} sc1")
    A("s_branch LOOP")
    A("JOB1:", f"v_lshrrev_b32 {v(t)}, 2, v0", f"v_and_b32 {v(t+3)}, 3, v0", f"v_lshl_add_u32 {v(t+3)}, {v(t+3)}, 3, s75")
    for p in range(2):
        if p: A(f"v_add_u32 {v(t)}, 16, {v(t)}")
        A(f"v_mul_u32_u24 {v(t+1)}, 43, {v(t)}", f"v_lshrrev_b32 {v(t+1)}, 8, {v(t+1)}", f"v_mul_u32_u24 {v(t+2)}, 160, {v(t)}",
          f"v_lshl_add_u32 {v(t+2)}, {v(t+1)}, 6, {v(t+2)}", f"v_add_u32 {v(t+4+p)}, {v(t+2)}, {v(t+3)}")
    A("s_waitcnt vmcnt(32)")
    for nt in range(5):
        for p in range(2): A(f"ds_read_b64_tr_b16 {v(WF+4*nt+2*p,2)}, {v(t+4+p)} offset:{nt*32}")
    argmax_keys(A, XS, XS + 16, RBITS)
    A(f"s_and_b32 {s(SEL)}, {s(RBITS)}, 2047", f"s_sub_u32 {s(SEL)}, 2047, {s(SEL)}", f"s_lshr_b32 {s(RBITS)}, {s(RBITS)}, 11",
      f"s_bitcmp1_b32 {s(RBITS)}, 15", "s_mov_b32 s72, 0xffff", "s_cselect_b32 s72, 0x8000, s72", f"s_xor_b32 {s(RBITS)}, {s(RBITS)}, s72", f"s_lshl_b32 {s(RBITS)}, {s(RBITS)}, 16",
      f"s_mul_i32 s73, {s(SEL)}, 1280", "s_mul_i32 s72, s28, 320", "s_add_u32 s73, s73, s72", f"v_and_b32 {v(t)}, 48, v0")
    for i in range(5): A(f"buffer_load_dwordx4 {v(XS+4*i,4)}, {v(t)}, {SWS}, s73 offen offset:{64*i} sc1")
    srd(A, 12, PWS, WOF_OFF, WOF_SIZE)
    A("s_and_b32 s76, s2, 7", "s_mul_i32 s76, s76, 27", "s_lshr_b32 s72, s2, 3", "s_min_u32 s72, s72, 26", "s_add_u32 s76, s76, s72",
      "s_mul_i32 s72, s28, 160", f"v_lshrrev_b32 {v(t)}, 1, v0", f"v_add_u32 {v(t)}, s72, {v(t)}", f"v_mul_u32_u24 {v(t)}, 3456, {v(t)}",
      "s_lshl_b32 s72, s76, 4", f"v_add_u32 {v(t)}, s72, {v(t)}", f"v_and_b32 {v(t+1)}, 1, v0", f"v_cmp_eq_u32 vcc, 1, {v(t+1)}",
      f"v_mov_b32 {v(t+2)}, {s(PG)}", f"v_mov_b32 {v(t+3)}, {s(PU)}", f"v_cndmask_b32 {v(t+2)}, {v(t+2)}, {v(t+3)}, vcc",
      f"v_mov_b32 {v(t+1)}, {s(PG+1)}", f"v_mov_b32 {v(t+3)}, {s(PU+1)}", f"v_cndmask_b32 {v(t+3)}, {v(t+1)}, {v(t+3)}, vcc",
      f"v_add_co_u32 {v(J+44)}, vcc, {v(t+2)}, {v(t)}", "s_nop 1", f"v_addc_co_u32 {v(J+45)}, vcc, 0, {v(t+3)}, vcc",
      "s_waitcnt lgkmcnt(0)")
    for nt in range(5):
        A(f"buffer_store_dwordx4 {v(WF+4*nt,4)}, {v(L16)}, {SW}, s77 offen offset:{1024*(nt%4)} sc1")
        if nt == 3: A("s_add_u32 s77, s77, 4096")
    def gu(first):
        if not first: A("s_add_u32 s77, s77, 1", "s_cmp_eq_u32 s77, 5", "s_cselect_b32 s77, 0, s77")
        A("s_lshl_b32 s72, s77, 10", "s_add_u32 m0, s75, s72", f"s_mul_i32 s72, s77, {32*3456}", "s_mov_b32 s73, 0",
          f"v_lshl_add_u64 {v(t,2)}, {v(J+44,2)}, 0, s[72:73]", f"global_load_lds_dwordx4 {v(t,2)}, off {NT if first else ''}")
    A("s_lshr_b32 s77, s2, 3", "s_and_b32 s77, s77, 7", "s_cmp_ge_u32 s77, 5", "s_cselect_b32 s72, 5, 0", "s_sub_u32 s77, s77, s72")
    gu(True)
    A("s_branch LOOP")
    A("JOB2:")
    for i in range(4): gu(False)
    A(*w0_only("JOB2W", ["s_and_b32 s72, s2, 1", "s_lshl_b32 s72, s72, 7", f"s_add_u32 s72, s72, {DBG_F}"] + signal("s72"))); A("s_branch LOOP")
    A("JOB3:")
    srd(A, 68, PD, 0, 1728 * 1280)
    A("s_mul_i32 s72, s76, 10240", "s_mul_i32 s73, s28, 320", "s_add_u32 s72, s72, s73")
    for i in range(3):
        div_rows(A, t + 3, i, 20, 3277, 1280, t)
        if i == 2: A("s_mov_b64 exec, 0xffffffff")
        A(f"s_add_u32 m0, s75, {5120 + 1024*i}", "s_nop 0", f"buffer_load_dwordx4 {v(t+3)}, {ST}, s72 offen {NT} lds")
    A("s_mov_b64 exec, -1", "s_branch LOOP")
    A("JOB4:")
    oproj_setup_early(A)
    A(f"v_and_b32 {v(t)}, 15, v0", f"v_lshrrev_b32 {v(t+1)}, 4, v0", "s_lshl_b32 s73, s78, 6", "s_lshl_b32 s72, s28, 4", "s_add_u32 s73, s73, s72",
      f"v_add_u32 {v(t)}, s73, {v(t)}", "s_mul_i32 s72, s79, 160", f"v_mul_u32_u24 {v(VXO)}, 1280, {v(t)}",
      f"v_lshl_add_u32 {v(VXO)}, {v(t+1)}, 3, {v(VXO)}", f"v_add_u32 {v(VXO)}, s72, {v(VXO)}")
    for nt in range(5): A(f"buffer_load_dwordx2 {v(XRP[nt],2)}, {v(VXO)}, {SX}, 0 offen offset:{32*nt}")
    A(f"v_and_b32 {v(DBGA)}, 1, v0", f"v_lshlrev_b32 {v(DBGA)}, 7, {v(DBGA)}", f"v_add_u32 {v(DBGA)}, {DBG_F}, {v(DBGA)}"); A(*w0_only("JOB4W", [dbg_load])); A("s_branch LOOP")
    A("JOB5:", "s_waitcnt vmcnt(32)")
    for nt in range(5): A(f"buffer_load_dwordx2 {v(XNP[nt],2)}, {v(VXO)}, {SWS}, 0 offen offset:{32*nt} sc1")
    A("s_cmp_lg_u32 s28, 0", "s_cbranch_scc1 LOOP", f"s_movk_i32 s72, {NPACK//2}")
    A(*spin("JOB5S", dbg_load, v(DBGV), "s72"))
    A("s_branch LOOP")
    A("JOB6:")
    if "c" in TOUCH:
        A("s_getpc_b64 s[72:73]", "CODE2:", "s_sub_u32 s72, s72, (CODE2 - LOOPX)", "s_subb_u32 s73, s73, 0",
          "s_lshl_b32 s31, s28, 6", f"v_add_u32 {v(t)}, s31, v0", f"v_lshlrev_b32 {v(t)}, 7, {v(t)}", f"v_min_u32 {v(t)}, (END - LOOPX), {v(t)}",
          f"v_mov_b32 {v(t+1)}, 0", f"v_lshl_add_u64 {v(t,2)}, {v(t,2)}, 0, s[72:73]", f"global_load_dword {v(DUMMY)}, {v(t,2)}, off")
    if "a" in TOUCH:
        n = 1 << LR
        A("s_lshr_b32 s72, s2, 3", f"s_and_b32 s72, s72, {n-1}", f"v_lshl_add_u32 {v(t)}, v0, {LR}, s72", f"v_lshlrev_b32 {v(t)}, 7, {v(t)}")
        for i in range(-(-1280 // (64 * n))):
            if i: A(f"v_add_u32 {v(t)}, {64*n*128}, {v(t)}")
            A(f"buffer_load_dword {v(DUMMY)}, {v(t)}, {SW}, 0 offen sc1")
    A("s_branch LOOP")

def ffn_part1():
    t = T0; B = Asm()
    B(f"v_lshrrev_b32 {v(t)}, 4, v0", f"v_bfe_u32 {v(t+1)}, v0, 2, 2", f"v_lshl_add_u32 {v(t)}, {v(t)}, 3, {v(t+1)}",
      f"v_and_b32 {v(t+1)}, 3, v0", f"v_lshlrev_b32 {v(t+1)}, 3, {v(t+1)}", f"v_lshl_add_u32 {v(t)}, {v(t)}, 5, {v(t+1)}", f"v_add_u32 {v(t)}, s75, {v(t)}")
    for i in range(5):
        for p in range(2): B(f"ds_read_b64_tr_b16 {v(WF+4*i+2*p,2)}, {v(t)} offset:{i*1024 + p*128}")
    B(f"v_and_b32 {v(t+3)}, 15, v0", f"v_lshlrev_b32 {v(t+1)}, 4, {v(t+3)}", "s_lshl_b32 s72, s28, 2", f"s_add_u32 s72, s72, {FEX}", f"v_add_u32 {v(t+1)}, s72, {v(t+1)}",
      "s_waitcnt lgkmcnt(0)")
    for i in range(5): B(f"{MF} {v(GA,4)}, {v(XS+4*i,4)}, {v(WF+4*i,4)}, {v(GA,4) if i else 0}")
    B(f"v_bfe_u32 {v(t)}, v0, 2, 3", f"v_mul_u32_u24 {v(t)}, 320, {v(t)}", f"v_and_b32 {v(t+2)}, 3, v0", f"v_lshl_add_u32 {v(t)}, {v(t+2)}, 3, {v(t)}", f"v_add_u32 {v(t)}, s75, {v(t)}",
      "s_nop 2", f"ds_write_b32 {v(t+1)}, {v(GA)}")
    for nt in range(10): B(f"ds_read_b64_tr_b16 {v(WF+2*nt,2)}, {v(t)} offset:{5120 + nt*32}")
    B("s_waitcnt lgkmcnt(0)")
    return B.L

def ffn_part2():
    t = T0; G = GA; B = Asm()
    B(f"v_and_b32 {v(t)}, 7, v0", f"v_lshlrev_b32 {v(t+1)}, 4, {v(t)}", f"v_add_u32 {v(t+1)}, {FEX}, {v(t+1)}",
      f"ds_read_b128 {v(G,4)}, {v(t+1)}", f"ds_read_b128 {v(G+4,4)}, {v(t+1)} offset:128",
      "s_lshl_b32 s72, s28, 5", f"s_add_u32 s72, s72, {FH}", f"v_lshl_add_u32 {v(t+1)}, {v(t)}, 1, s72", f"v_bfe_u32 {v(t)}, v0, 4, 1", f"v_lshl_add_u32 {v(t)}, {v(t)}, 3, s72",
      "s_waitcnt lgkmcnt(0)")
    for m in range(2):
        b = G + 4 * m
        B(f"v_add_f32 {v(b)}, {v(b)}, {v(b+1)}", f"v_add_f32 {v(b+2)}, {v(b+2)}, {v(b+3)}", f"v_add_f32 {v(b)}, {v(b)}, {v(b+2)}")
    B(f"v_cvt_pk_bf16_f32 {v(G)}, {v(G)}, {v(G+4)}", f"v_and_b32 {v(G+4)}, 0xffff0000, {v(G)}", f"v_lshlrev_b32 {v(G)}, 16, {v(G)}",
      f"v_mul_f32 {v(G+1)}, {NLOG2E}, {v(G)}", f"v_exp_f32 {v(G+1)}, {v(G+1)}", "s_nop 0", f"v_add_f32 {v(G+1)}, 1.0, {v(G+1)}",
      f"v_rcp_f32 {v(G+1)}, {v(G+1)}", "s_nop 0", f"v_mul_f32 {v(G)}, {v(G)}, {v(G+1)}",
      f"v_cvt_pk_bf16_f32 {v(G)}, {v(G)}, {v(G)}", f"v_lshlrev_b32 {v(G)}, 16, {v(G)}", f"v_mul_f32 {v(G)}, {v(G)}, {v(G+4)}",
      f"v_cvt_pk_bf16_f32 {v(G)}, {v(G)}, {v(G)}", f"ds_write_b16 {v(t+1)}, {v(G)}", "s_waitcnt lgkmcnt(0)", f"ds_read_b64 {v(G,2)}, {v(t)}",
      "v_cmp_gt_u32 vcc, 32, v0", "s_lshr_b32 s73, s2, 3", "s_cmp_lt_u32 s73, 27", f"s_mov_b32 s73, {WSLO}", f"s_cselect_b32 s73, {Y_OFF}, s73",
      "s_mul_i32 s72, s28, 640", "s_add_u32 s72, s72, s73", "s_and_b32 s73, s2, 15", "s_mul_i32 s73, s73, 2560", "s_add_u32 s72, s72, s73",
      f"v_lshl_add_u32 {v(t+3)}, {v(t+3)}, 2, s72", "s_waitcnt lgkmcnt(0)",
      f"v_cndmask_b32 {v(G)}, 0, {v(G)}, vcc", f"v_cndmask_b32 {v(G+1)}, 0, {v(G+1)}, vcc", "s_nop 1")
    outs = [XS + 4*i for i in range(5)] + [J + 44 + 4*i for i in range(5)]
    for nt in range(10): B(f"v_mfma_f32_16x16x16_bf16 {v(outs[nt],4)}, {v(G,2)}, {v(WF+2*nt,2)}, 0")
    B("s_mov_b64 exec, 0xffff")
    for nt in range(10):
        if nt >= 8: B("s_nop 1")
        B(f"buffer_atomic_add_f32 {v(outs[nt])}, {v(t+3)}, {SWS}, 0 offen offset:{64*nt}")
    B("s_mov_b64 exec, -1")
    return B.L

def weave(A, vm, loads, fill, per):
    fill = list(fill)
    def pop():
        x = fill.pop(0)
        if x.startswith("s_mov_b64 exec, 0x"):
            while True:
                put(A, vm, [x], "fa")
                if x == "s_mov_b64 exec, -1": return
                x = fill.pop(0)
        put(A, vm, [x], "fa")
        while x.startswith(("s_cmp", "s_mov_b32 s73")): x = fill.pop(0); put(A, vm, [x], "fa")
    for lines, tag in loads:
        for x in lines:
            put(A, vm, [x], tag)
            if x.startswith("buffer_"):
                for _ in range(per):
                    if fill: pop()
    while fill: pop()

OACC, OB, OT = 32, 112, 192
NB = 5
EXCH = 0
def oacc(i, nt): return OACC + 20 * i + 4 * nt
def aslot(k): return (128 + 20 * (k - 6)) if k >= 6 else 20 * k

def oproj_setup_early(A):
    lr = LR
    A("s_and_b32 s72, s2, 7", "s_lshr_b32 s73, s2, 3", f"s_lshr_b32 s78, s72, {lr-2}", f"s_lshl_b32 s78, s78, {lr}", f"s_and_b32 s79, s73, {(1<<lr)-1}", "s_add_u32 s78, s78, s79",
      f"s_and_b32 s72, s72, {(1<<(lr-2))-1}", f"s_lshl_b32 s72, s72, {5-lr}", f"s_lshr_b32 s79, s73, {lr}", "s_add_u32 s79, s79, s72",
      f"s_mul_i32 s72, s79, {128*5120}", f"s_mul_i32 s73, s28, {32*5120}", "s_add_u32 s72, s72, s73", f"s_add_u32 s72, s72, {WOF_OFF}")
    srd(A, 12, PWS, "s72", 32 * 5120)
    A("s_sub_u32 s72, s72, s33", f"s_sub_u32 s72, s72, {0x80000 - 60*1024}", f"s_add_u32 s42, {s(PWS)}, s72", f"s_addc_u32 s43, {s(PWS+1)}, 0",
      "s_add_u32 s36, s42, 16384", "s_addc_u32 s37, s43, 0")

def a_loads(k, slot):
    out = [f"s_mov_b32 s31, {k*5120}", f"s_mov_b32 s32, {k*5120+4096}"]
    for nt in range(5):
        out.append(f"buffer_load_dwordx4 {a(aslot(slot)+4*nt,4)}, {v(L16)}, {SW}, {'s32' if nt == 4 else 's31'} offen offset:{1024*(nt%4)} {WSC}")
    return out

def put(A, vm, lines, tag):
    for x in lines:
        if x.startswith(("buffer_", "global_")):
            A(*vm.room()); A(x); vm.issue(tag)
        else: A(x)

OLEAD = int(os.environ.get('OLEAD', 8))
NL = 7
EARLY = int(os.environ.get("EARLY", 0))
def lds_frag(n):
    if n < 16: return VK, (n >> 2) * 16384 + (n & 3) * 1024
    if n < 28: return VV, ((n - 16) >> 2) * 16384 + (n & 3) * 1024
    return 21, (n - 28) * 1024

def late_loads():
    out = []
    for n in range(28, 35):
        if n in (28, 32): out += [f"s_add_u32 m0, s48, {(n-28)*1024}", f"s_mov_b32 s31, {(60+n)*1024}"]
        out.append(f"buffer_load_dwordx4 {v(L16)}, {SW}, s31 offen offset:{1024*(n & 3)} {WSC} lds")
    return out

def oproj(A, vm, stamps):
    t = T0
    VB, VROW, WX = 3, 7, 9
    RE, VY, VF_ = 12, 13, 14
    G = OT + 20
    XR = [p + h for p in XRP for h in range(2)]; XNR = [p + h for p in XNP for h in range(2)]
    B = Asm()
    B("s_lshl_b32 s72, s78, 9", "s_lshl_b32 s73, s28, 7", "s_add_u32 s72, s72, s73", f"s_add_u32 s72, s72, {FLAG_OFF}",
      f"v_and_b32 {v(VF_)}, 7, v0", f"v_lshl_add_u32 {v(VF_)}, {v(VF_)}, 2, s72")
    for i in range(4):
        B(f"s_add_u32 s72, s28, {i}", "s_and_b32 s72, s72, 3", "s_lshl_b32 s72, s72, 10", f"v_add_u32 {v(VB+i)}, s72, {v(L16)}")
    B(f"v_add_u32 {v(VV)}, {VBASE}, {v(VV)}")
    B(f"v_and_b32 {v(t)}, 15, v0", f"v_lshrrev_b32 {v(t+1)}, 4, v0", "s_lshl_b32 s74, s78, 6", "s_lshl_b32 s72, s28, 4", "s_add_u32 s74, s74, s72",
      f"v_add_u32 {v(VROW)}, s74, {v(t)}",
      "s_mul_i32 s72, s79, 320", f"s_add_u32 s72, s72, {Y_OFF}", f"v_lshl_add_u32 {v(VY)}, {v(t+1)}, 4, s72", f"v_mul_u32_u24 {v(t+2)}, 2560, {v(t)}", f"v_add_u32 {v(VY)}, {v(VY)}, {v(t+2)}")
    for i in range(1, 4):
        B(f"s_add_u32 s72, s28, {i}", "s_and_b32 s72, s72, 3", "s_mul_i32 s72, s72, 15360", f"s_add_u32 s72, s72, {EXCH + (i-1)*5120}", f"v_add_u32 {v(WX+i-1)}, s72, {v(L16)}")
    B("s_mul_i32 s72, s28, 15360", f"v_add_u32 {v(RE)}, s72, {v(L16)}",
      f"s_sub_u32 s75, {s(SEL)}, s74", f"v_mov_b32 {v(t+10)}, {DBG_C}", f"s_mov_b32 s100, {NLOG2E}", "s_mov_b32 s101, 0xffff0000")
    VOT, RA2 = 20, 21
    B(f"v_lshrrev_b32 {v(VOT)}, {LR}, v0", f"v_lshlrev_b32 {v(VOT)}, 17, {v(VOT)}", f"s_lshr_b32 s72, s2, {3+LR}", f"s_lshl_b32 s72, s72, {LR}",
      f"v_and_b32 {v(t)}, {(1<<LR)-1}, v0", f"v_add_u32 {v(t)}, s72, {v(t)}", f"v_lshl_add_u32 {v(VOT)}, {v(t)}, 7, {v(VOT)}")
    A("s_mov_b32 s48, s75")
    B(f"v_add_u32 {v(RA2)}, s48, {v(L16)}")
    order = [0, 1, 2, 3, 4, 5, 6, 7, 8, 9, 10, 11]
    order = [k for k in order if ("a", k) not in vm.q]
    weave(A, vm, [(a_loads(k, k), ("a", k)) for k in order[:2]], ffn_part2(), 8)
    A("s_lshl_b32 s72, s78, 12", "s_lshl_b32 s73, s28, 22", "s_add_u32 s72, s72, s73", f"s_add_u32 s72, s72, {OF_OFF}")
    srd(A, 20, PWS, "s72", 31 * 131072 + 4096)
    srd(A, 4, POUT, 0, 2048 * 1280)
    weave(A, vm, [(a_loads(k, k), ("a", k)) for k in order[2:3]], B.L, 12)
    fpoll = f"buffer_load_dword {v(t+8)}, {v(VF_)}, {SWS}, 0 offen sc1"
    put(A, vm, [fpoll], "flag")
    for k in order[3:]: put(A, vm, a_loads(k, k), ("a", k))
    put(A, vm, late_loads(), "l")
    A(*vm.wait(["flag"]))
    A(*spin("OFLAG", fpoll, v(t+8), "1"))
    stamp(A, "flag", stamps)
    def b_load(k, i): return f"buffer_load_dwordx4 {v(OB+16*(k%NB)+4*i,4)}, {v(VB+i)}, {SO}, s34 offen {OSC}"
    for k in range(NB - 1):
        A(f"s_mov_b32 s34, {k*131072}")
        put(A, vm, [b_load(k, i) for i in range(4)], ("b", k))
    def asrc(k):
        if k < 12: return lambda nt: a(aslot(k) + 4*nt, 4)
        if k < 12 + NL: return lambda nt: v(OT + 20*(k & 1) + 4*nt, 4)
        return lambda nt: a(aslot((k - 12 - NL) % 12) + 4*nt, 4)
    refill = []
    for i in range(20 - NL):
        for nt in range(5): refill.append((i, nt))
    va = gate_ops(XNR, G)
    state = []
    cpoll = f"buffer_load_dword {v(t+9)}, {v(t+10)}, {SDB}, 0 offen sc1"
    for k in range(32):
        st = Stream()
        for i in range(4):
            for nt in range(5):
                c = v(oacc(i, nt), 4) if k else 0
                st.add(f"{MF} {v(oacc(i,nt),4)}, {asrc(k)(nt)}, {v(OB+16*(k%NB)+4*i,4)}, {c}")
        need = [("b", k)] + ([("a", k)] if k < 12 or k >= 12 + NL else [])
        A(*vm.wait(need))
        if 11 <= k < 11 + NL:
            st.sc[0] += vm.wait(["l"])
            for nt in range(5):
                r, o = lds_frag(5 * (k + 1 - 12) + nt)
                st.mem[1 + nt].append(f"ds_read_b128 {v(OT+20*((k+1)&1)+4*nt,4)}, {v(r)} offset:{o}")
        if k == 22: A("s_cmp_lt_u32 s75, 16", "s_cbranch_scc0 OC3", f"s_waitcnt vmcnt({len(vm.q) - ny})", *route_ops(G, VROW), "OC3:")
        ops = []
        def mem(g, x, tag): ops.append((g, x, tag))
        kb = k + NB - 1
        if kb < 32:
            st.sc[5].append(f"s_mov_b32 s34, {kb*131072}")
            for i in range(4): mem(6 + 2*i, b_load(kb, i), ("b", kb))
        n = 3 if k % 4 else 2
        g = 14
        while n and refill and (refill[0][0] if refill[0][0] < 12 else refill[0][0] + NL) < k:
            i, nt = refill.pop(0)
            st.sc[g - 1].append(f"s_mov_b32 s31, {(12+NL+i)*5120 + 1024*nt}")
            mem(g, f"buffer_load_dwordx4 {a(aslot(i % 12)+4*nt,4)}, {v(L16)}, {SW}, s31 offen {WSC}", ("a", 12 + NL + i)); g += 2; n -= 1
        span = 64 >> LR
        if "o" in TOUCH and (k + OLEAD) % span == 0 and k + OLEAD < 32:
            st.sc[2].append(f"s_mov_b32 s32, {(k + OLEAD) * 131072}")
            mem(3, f"buffer_load_dword {v(DUMMY)}, {v(VOT)}, {SO}, s32 offen sc1", "t")
        if k == 1: st.va[19] += ["s_barrier"] + w0_only("OCSIG", ["s_mov_b32 s72, 1", f"s_atomic_add s72, {s(PDBG,2)}, {DBG_C}"])
        if k == 15: st.va[19] += ["s_cmp_lt_u32 s75, 16", "s_cbranch_scc0 OC1", cpoll, "OC1:"]; nc = len(vm.q) + len(ops)
        if k == 20:
            for i in range(20): st.va[2 * (i // 2) + (1 if i >= 10 else 0)].append(f"v_mov_b32 {v(G+i)}, 0")
            st.va[19] += ["s_cmp_lt_u32 s75, 16", "s_cbranch_scc0 OC2", f"s_waitcnt vmcnt({len(vm.q) + len(ops) - nc})"] + spin("OCS", cpoll, v(t+9), "s72") + \
                         [f"buffer_load_dwordx4 {v(G+4*nt,4)}, {v(VY)}, {SWS}, 0 offen offset:{64*nt} sc1" for nt in range(5)] + ["OC2:"]
            st.va[18].append("s_movk_i32 s72, 256")
        if k == 22: st.sc[19].append("s_barrier")
        for g, x, tag in sorted(ops, key=lambda o: o[0]):
            st.sc[g] += vm.room(); st.mem[g].append(x); vm.issue(tag)
        if k == 20: ny = len(vm.q)
        if k >= 23:
            for g in range(1, 20):
                if any(x.startswith("buffer") for x in st.mem[g]): continue
                for _ in range(2):
                    if va:
                        x = va.pop(0); st.va[g].append(x)
                        if x.startswith(TRANS): break
        nx0 = regs_of(" ".join(asrc(k + 1)(nt) for nt in range(5))) if k < 31 else set()
        stamp(A, f"g{k}", stamps)
        state = st.emit(A, state, nxt0=nx0)
    assert not refill
    A(*va)
    stamp(A, "gend", stamps)
    for i in range(1, 4):
        for nt in range(5): A(f"ds_write_b128 {v(WX+i-1)}, {v(oacc(i,nt),4)} offset:{nt*1024}")
    A("s_waitcnt lgkmcnt(0)", "s_barrier")
    for i in range(1, 4):
        for nt in range(5): A(f"ds_read_b128 {v(oacc(i,nt),4)}, {v(RE)} offset:{(i-1)*5120 + nt*1024}")
    for i in range(1, 4):
        A(f"s_waitcnt lgkmcnt({5*(3-i)})")
        for j in range(10): A(f"v_pk_add_f32 {v(OACC+2*j,2)}, {v(OACC+2*j,2)}, {v(OACC+20*i+2*j,2)}")
    for i in range(10): A(*rb2(OACC+2*i))
    for i in range(10): A(f"v_pk_mul_f32 {v(OACC+2*i,2)}, {v(OACC+2*i,2)}, {v(G+2*i,2)}")
    for i in range(10): A(*rb2(OACC+2*i))
    for i in range(10):
        A(f"v_lshlrev_b32 {v(t)}, 16, {v(XR[i])}", f"v_and_b32 {v(t+1)}, s101, {v(XR[i])}",
          f"v_pk_add_f32 {v(t,2)}, {v(t,2)}, {v(OACC+2*i,2)}", f"v_cvt_pk_bf16_f32 {v(XR[i])}, {v(t)}, {v(t+1)}")
        if i & 1: A(f"buffer_store_dwordx2 {v(XR[i-1],2)}, {v(VXO)}, {SK}, 0 offen offset:{16*(i-1)}")

def rb2(x):
    return [f"v_cvt_pk_bf16_f32 {v(x)}, {v(x)}, {v(x+1)}", f"v_and_b32 {v(x+1)}, s101, {v(x)}", f"v_lshlrev_b32 {v(x)}, 16, {v(x)}"]

def route_ops(G, VROW):
    t = T0; o = []
    r = t + 11
    o += [f"v_mov_b32 {v(r)}, {s(RBITS)}", f"v_mul_f32 {v(r)}, s100, {v(r)}", f"v_exp_f32 {v(r)}, {v(r)}", f"v_cmp_eq_u32 vcc, {s(SEL)}, {v(VROW)}", f"v_add_f32 {v(r)}, 1.0, {v(r)}",
          f"v_rcp_f32 {v(r)}, {v(r)}", "s_nop 0", f"v_cvt_pk_bf16_f32 {v(r)}, {v(r)}, {v(r)}", f"v_lshlrev_b32 {v(r)}, 16, {v(r)}"]
    for ror in (8, 4, 2, 1):
        for i in range(20): o.append(f"v_add_f32_dpp {v(G+i)}, {v(G+i)}, {v(G+i)} row_ror:{ror} row_mask:0xf bank_mask:0xf")
    for i in range(10): o += rb2(G + 2*i)
    for i in range(20): o.append(f"v_mul_f32 {v(G+i)}, {v(G+i)}, {v(r)}")
    for i in range(10): o += rb2(G + 2*i)
    for i in range(20): o.append(f"v_cndmask_b32 {v(G+i)}, 0, {v(G+i)}, vcc")
    return o

def gate_ops(XNR, G):
    t = T0; o = []
    for i in range(10):
        o += [f"v_lshlrev_b32 {v(t)}, 16, {v(XNR[i])}", f"v_and_b32 {v(t+1)}, s101, {v(XNR[i])}",
              f"v_add_f32 {v(G+2*i)}, {v(G+2*i)}, {v(t)}", f"v_add_f32 {v(G+2*i+1)}, {v(G+2*i+1)}, {v(t+1)}"]
    for i in range(10): o += rb2(G + 2*i)
    for h in range(4):
        for i in range(5): o.append(f"v_mul_f32 {v(t+i)}, s100, {v(G+5*h+i)}")
        for i in range(5): o.append(f"v_exp_f32 {v(t+i)}, {v(t+i)}")
        for i in range(5): o.append(f"v_add_f32 {v(t+i)}, 1.0, {v(t+i)}")
        for i in range(5): o.append(f"v_rcp_f32 {v(t+i)}, {v(t+i)}")
        for i in range(5): o.append(f"v_mul_f32 {v(G+5*h+i)}, {v(G+5*h+i)}, {v(t+i)}")
    for i in range(10): o += rb2(G + 2*i)
    return o

def gen(stamps=False):
    A = Asm()
    t = T0
    A("s_cmp_ge_u32 s2, 256", "s_cbranch_scc1 END")
    stamp(A, "start", stamps)
    A("s_load_dwordx16 s[36:51], s[0:1], 0", "s_load_dwordx8 s[52:59], s[0:1], 64", "s_load_dwordx2 s[60:61], s[0:1], 96")
    A(f"v_lshrrev_b32 {v(t)}, 6, v0", f"v_lshrrev_b32 {v(ROW)}, 5, v0", f"v_readfirstlane_b32 s28, {v(t)}", f"v_and_b32 {v(PP)}, 31, v0", f"v_lshlrev_b32 {v(t+8)}, 7, v0")
    A("s_and_b32 s29, s2, 7", "s_lshl_b32 s29, s29, 2", "s_lshr_b32 s30, s2, 3", "s_and_b32 s31, s30, 3", "s_add_u32 s29, s29, s31", "s_lshr_b32 s63, s30, 2",
      "s_lshl_b32 s31, s63, 8", "s_lshl_b32 s32, s29, 3", "s_add_u32 s31, s31, s32", f"v_add_u32 {v(ROW)}, s31, {v(ROW)}",
      f"v_lshlrev_b32 {v(LWA)}, 3, {v(PP)}", f"v_mul_u32_u24 {v(LXA)}, 1280, {v(ROW)}", f"v_add_u32 {v(LXA)}, {v(LXA)}, {v(LWA)}",
      "v_and_b32 v0, 63, v0", f"v_lshlrev_b32 {v(L16)}, 4, v0",
      "s_lshl_b32 s30, s63, 4", "s_lshl_b32 s31, s28, 2", "s_add_u32 s30, s30, s31", "s_lshl_b32 s33, s28, 12")
    vm = VM()
    A(f"v_lshrrev_b32 {v(t)}, 3, v0", f"v_and_b32 {v(t+1)}, 7, v0", f"v_lshrrev_b32 {v(t+2)}, 4, v0", "s_lshl_b32 s31, s30, 4", f"v_add_u32 {v(t)}, s31, {v(t)}",
      f"v_mul_u32_u24 {v(t)}, 1280, {v(t)}", f"v_xor_b32 {v(t+3)}, {v(t+1)}, {v(t+2)}", f"v_lshl_add_u32 {v(VX)}, {v(t+3)}, 4, {v(t)}",
      f"v_xor_b32 {v(t+3)}, 4, {v(t+3)}", f"v_lshl_add_u32 {v(VX+1)}, {v(t+3)}, 4, {v(t)}", f"v_add_u32 {v(VX+1)}, {8*1280-1024}, {v(VX+1)}")
    A(f"v_and_b32 {v(t+1)}, 15, v0", "s_lshl_b32 s31, s28, 4", f"v_add_u32 {v(t+4)}, s31, {v(t+2)}",
      f"v_lshlrev_b32 {v(t+3)}, 2, {v(t+2)}", f"v_xor_b32 {v(t+3)}, {v(t+3)}, {v(t+1)}", f"v_lshlrev_b32 {v(t+3)}, 4, {v(t+3)}", f"v_lshl_add_u32 {v(VW)}, {v(t+4)}, 13, {v(t+3)}")
    A("s_waitcnt lgkmcnt(0)")
    srd(A, 16, PX, 0, 2048 * 1280); srd(A, 68, PWR, 0, 1280)
    stamp(A, "karg", stamps)
    for i in range(5): A(f"buffer_load_dwordx2 {v(LX+2*i,2)}, {v(LXA)}, {SX}, 0 offen offset:{256*i}"); vm.issue("lx")
    A("s_lshl_b32 s31, s29, 8"); srd(A, 12, PWQ, "s31", 639 * 8192 + 256)
    A("s_lshl_b32 s75, s28, 13")
    def x_dma(kt):
        out = []
        for pr in range(4):
            out += [f"s_add_u32 m0, s75, {(XA, XB)[kt & 1] + 2048*pr}", f"s_mov_b32 s62, {kt*128 + 20480*pr}",
                    f"buffer_load_dwordx4 {v(VX)}, {SX}, s62 offen {XNT} lds", f"buffer_load_dwordx4 {v(VX+1)}, {SX}, s62 offen offset:1024 {XNT} lds"]
        return out
    def wq_dma(kt):
        out = [f"s_add_u32 m0, s33, {VBASE + wslot(kt)*16384}"]
        for i in range(4):
            out += [f"s_mov_b32 s32, {kt*524288 + i*31744}", f"buffer_load_dwordx4 {v(VW)}, {SW}, s32 offen offset:{1024*i} {NT} lds"]
        return out
    TD = LD + 21
    def event(e):
        if e == "": return []
        if e[0] == "w": return [(x, ("w", int(e[1]))) for x in wq_dma(int(e[1]))]
        if e[0] == "x": return [(x, ("x", int(e[1]))) for x in x_dma(int(e[1]))]
        if e == "R": return [(f"buffer_load_dwordx2 {v(LW+2*i,2)}, {v(LWA)}, {ST}, 0 offen offset:{256*i}", "lw") for i in range(5)]
        if e == "W": return [(f"buffer_load_dword {v(DUMMY)}, {v(TD+2)}, {SW}, 0 offen {NT}", "t")]
        if e[0] == "X": return [(f"buffer_load_dword {v(DUMMY)}, {v(TD+1 if e[1] != '2' else TD+3)}, {SX}, 0 offen offset:{512*int(e[1])}", "t")]
        if e == "C":
            out = [("s_getpc_b64 s[72:73]", None), ("CODE0:", None), (f"v_mov_b32 {v(t+11)}, s73", None)]
            for i in range(2):
                out += [(x, "code") for x in (f"v_add_u32 {v(t+9)}, {32768*i}, {v(t+8)}", f"v_min_u32 {v(t+9)}, (CODE1 - CODE0), {v(t+9)}",
                        f"v_add_co_u32 {v(t+12)}, vcc, s72, {v(t+9)}", "s_nop 1", f"v_addc_co_u32 {v(t+13)}, vcc, 0, {v(t+11)}, vcc",
                        f"global_load_dword {v(DUMMY)}, {v(t+12,2)}, off")]
            return out
    A("s_and_b32 s31, s29, 3", "s_lshl_b32 s31, s31, 6", "s_lshl_b32 s32, s63, 8", "s_add_u32 s31, s31, s32", f"v_add_u32 {v(TD+1)}, s31, v0",
      f"v_mul_u32_u24 {v(TD+1)}, 1280, {v(TD+1)}", "s_and_b32 s31, s28, 1", "s_lshl_b32 s31, s31, 7", f"v_add_u32 {v(TD+3)}, s31, {v(TD+1)}",
      "s_lshl_b32 s31, s28, 7", f"v_add_u32 {v(TD+1)}, s31, {v(TD+1)}",
      f"v_min_u32 {v(TD+2)}, 39, v0", f"v_lshrrev_b32 {v(TD)}, 1, {v(TD+2)}", f"v_lshlrev_b32 {v(TD)}, 5, {v(TD)}", "s_lshl_b32 s31, s28, 3", "s_add_u32 s31, s31, s63",
      f"v_add_u32 {v(TD)}, s31, {v(TD)}", f"v_lshlrev_b32 {v(TD)}, 13, {v(TD)}", f"v_and_b32 {v(TD+2)}, 1, {v(TD+2)}", f"v_lshl_add_u32 {v(TD+2)}, {v(TD+2)}, 7, {v(TD)}")
    for e in PRE:
        for x, tag in event(e): put(A, vm, [x], tag)
    A("s_lshl_b32 s31, s29, 19"); srd(A, 4, PK, "s31", "0x90000"); srd(A, 8, PV, "s31", "0x90000")
    A("s_mov_b64 s[38:39], s[4:5]", "s_mov_b64 s[40:41], s[8:9]", "s_mov_b64 s[42:43], s[4:5]", "s_mov_b64 s[36:37], s[8:9]", "s_movk_i32 s48, 4096",
      f"v_mov_b32 {v(VXO)}, 0")
    A("s_lshl_b32 s31, s30, 10", "s_lshl_b32 s32, s29, 19", "s_add_u32 s31, s31, s32", f"s_add_u32 s31, s31, {OF_OFF}")
    srd(A, 20, PWS, "s31", 3 * 131072 + 4096)
    srd(A, 24, PWS, 0, WSLO); srd(A, 64, PDBG, 0, 256)
    A("s_lshr_b32 s31, s29, 3", "s_add_u32 s74, s30, s31", "s_lshl_b32 s74, s74, 7", "s_and_b32 s31, s29, 7", "s_lshl_b32 s31, s31, 2", "s_add_u32 s74, s74, s31",
      f"s_add_u32 s74, s74, {FLAG_OFF}")
    A("s_lshl_b32 s31, s28, 2", f"v_or_b32 {v(t+3)}, s31, {v(t+2)}", f"v_xor_b32 {v(t+3)}, {v(t+3)}, {v(t+1)}", f"v_lshlrev_b32 {v(t+3)}, 4, {v(t+3)}",
      f"v_lshl_add_u32 {v(VK)}, {v(t+4)}, 8, {v(t+3)}")
    A("s_and_b32 s31, s31, 4", f"v_or_b32 {v(t+3)}, s31, {v(t+2)}", f"v_lshlrev_b32 {v(t+3)}, 1, {v(t+3)}", f"v_xor_b32 {v(t+3)}, {v(t+3)}, {v(t+1)}",
      f"v_lshlrev_b32 {v(t+3)}, 4, {v(t+3)}", f"v_lshl_add_u32 {v(VV)}, {v(t+4)}, 8, {v(t+3)}")
    g_, i_, c_, r_ = t + 2, t + 1, t + 5, t + 6
    A(f"v_and_b32 {v(c_)}, 3, v0", f"v_bfe_u32 {v(r_)}, v0, 2, 2")
    A(f"v_lshlrev_b32 {v(t+4)}, 8, {v(c_)}", f"v_lshl_add_u32 {v(t+4)}, {v(r_)}, 12, {v(t+4)}")
    for k in range(4):
        A(f"s_add_u32 s31, s28, {k}", "s_and_b32 s31, s31, 3", f"s_lshl_b32 {s(76+k)}, s31, 2",
          f"v_or_b32 {v(t+3)}, {s(76+k)}, {v(g_)}", f"v_xor_b32 {v(t+3)}, {v(t+3)}, {v(i_)}", f"v_lshl_add_u32 {v(RK+k)}, {v(t+3)}, 4, {v(t+4)}")
    A(f"v_lshl_add_u32 {v(t+4)}, {v(g_)}, 3, {v(r_)}", f"v_lshlrev_b32 {v(t+4)}, 8, {v(t+4)}", f"v_lshl_add_u32 {v(t+4)}, {v(c_)}, 4, {v(t+4)}",
      f"v_add_u32 {v(t+4)}, {VBASE}, {v(t+4)}", f"v_lshlrev_b32 {v(t+7)}, 2, {v(r_)}")
    for k in range(4): A(f"v_xor_b32 {v(t+3)}, {s(76+k)}, {v(t+7)}", f"v_lshl_add_u32 {v(RW+k)}, {v(t+3)}, 4, {v(t+4)}")
    A(f"v_lshl_add_u32 {v(t+4)}, {v(g_)}, 4, {v(r_)}", f"v_lshlrev_b32 {v(t+4)}, 8, {v(t+4)}", f"v_lshl_add_u32 {v(t+4)}, {v(c_)}, 3, {v(t+4)}",
      f"v_add_u32 {v(t+4)}, {VBASE}, {v(t+4)}", f"v_and_b32 {v(t+7)}, 1, {v(g_)}", f"v_lshl_or_b32 {v(t+7)}, {v(t+7)}, 2, {v(r_)}")
    for k in range(8): A(f"v_xor_b32 {v(t+3)}, {k}, {v(t+7)}", f"v_lshl_add_u32 {v(RV+k)}, {v(t+3)}, 5, {v(t+4)}")
    A(f"v_lshrrev_b32 {v(t+3)}, 1, {v(i_)}", f"v_xor_b32 {v(t+3)}, {v(t+3)}, {v(g_)}", f"v_lshlrev_b32 {v(t+4)}, 7, {v(i_)}", f"v_add_u32 {v(t+4)}, s75, {v(t+4)}",
      f"v_lshl_add_u32 {v(t+4)}, {v(t+3)}, 4, {v(t+4)}", f"v_add_u32 {v(RX)}, {XA}, {v(t+4)}", f"v_add_u32 {v(RX+2)}, {XB}, {v(t+4)}",
      f"v_xor_b32 {v(RX+1)}, 64, {v(RX)}", f"v_xor_b32 {v(RX+3)}, 64, {v(RX+2)}")
    for i in range(4): A(f"v_mov_b32 {v(ONES+i)}, 0x3f803f80")
    A("s_mov_b32 s34, 0", "s_mov_b32 s35, 0")
    stamp(A, "setup", stamps)
    extra = [(x, tag if x.startswith("buffer") else None) for e in MID for x, tag in event(e)]
    ln_stats(A, vm, stamps, extra)
    A("s_lshl_b32 s31, s2, 2", "s_add_u32 s31, s31, s28", "s_lshl_b32 s31, s31, 8", "s_cmp_lt_u32 s31, 40960", f"s_mov_b32 s73, {WSLO}", f"s_cselect_b32 s73, {Y_OFF}, s73",
      "s_add_u32 s73, s73, s31")
    lnr = ln_rest()
    stamp(A, "lnend", stamps)
    def w_read(G, sx, p):
        kt, T = divmod(G, 8)
        return f"ds_read_b64_tr_b16 {a(8*(G%4)+4*sx+2*p,2)}, {v(RW+T//2)} offset:{wslot(kt)*16384 + sx*8192 + p*1024 + 8*(T&1)}"
    def x_read(kt, q, sx): return f"ds_read_b128 {a(xb(kt,q,sx),4)}, {v(RX+2*(kt&1)+sx)} offset:{2048*q}"
    for e in ZERO:
        for x, tag in event(e): put(A, vm, [x], tag)
    A(*vm.wait([("w", 0), ("x", 0)])); A("s_barrier")
    stamp(A, "q0", stamps)
    for sx in range(2):
        for p in range(2): A(w_read(0, sx, p))
    for q in range(4):
        for sx in range(2): A(x_read(0, q, sx))
    for sx in range(2):
        for p in range(2): A(w_read(1, sx, p))
    A("s_waitcnt lgkmcnt(4)")
    state = [(I(w_read(1, sx, p)).w, -8) for sx in range(2) for p in range(2)]
    apoll = f"buffer_load_dword {v(t+12)}, {v(t+13)}, {SDB}, 0 offen sc1"
    for kt in range(10):
        st = Stream(); pos = {}
        for T in range(8):
            af = 8 * ((kt * 8 + T) % 4)
            for q in range(4):
                for sx in range(2):
                    c = 0 if (kt == 0 and sx == 0) else v(acc(q, T), 4)
                    pos[T, 2*q + sx] = st.add(f"{MF} {v(acc(q,T),4)}, {a(af+4*sx,4)}, {a(xb(kt,q,sx),4)}, {c}")
            if T < 2:
                for sx in range(2):
                    c = 0 if (kt == 0 and sx == 0) else v(CSA + 4*T, 4)
                    pos[T, 8 + sx] = st.add(f"{MF} {v(CSA+4*T,4)}, {a(af+4*sx,4)}, {v(ONES,4)}, {c}")
        last = len(st.mf) - 1
        for T in range(8):
            G = kt * 8 + T + 2
            if G < 80:
                for k in range(4): st.mem[pos[T, 1 + k]].append(w_read(G, k >> 1, k & 1))
        def place(ops, slots, tag):
            for (m0, so, x), g in zip(ops, slots):
                assert not {g - 1, g, g + 1} & set(st.tagq), (kt, g)
                st.sc[max(g - 1, 0)].append(m0)
                st.sc[g].append(so if so else "s_nop 0")
                st.mem[g].append(x); st.tagq.setdefault(g, []).append(tag)
        def x_ops(k):
            return [(f"s_add_u32 m0, s75, {(XA, XB)[k & 1] + 2048*(i >> 1)}", f"s_mov_b32 s62, {k*128 + 20480*(i >> 1)}",
                     f"buffer_load_dwordx4 {v(VX + (i & 1))}, {SX}, s62 offen offset:{1024*(i & 1)} {XNT} lds") for i in range(8)]
        def w_ops(k):
            return [(f"s_add_u32 m0, s33, {VBASE + wslot(k)*16384}", f"s_mov_b32 s32, {k*524288 + i*31744}",
                     f"buffer_load_dwordx4 {v(VW)}, {SW}, s32 offen offset:{1024*i} {NT} lds") for i in range(4)]
        def v_ops(j): return [(v_m0(j), f"s_mov_b32 s35, {16384*j}", v_dma(i)) for i in range(4)]
        def k_ops(j): return [(k_m0(j), f"s_mov_b32 s34, {16384*j}", k_dma(i)) for i in range(4)]
        m = kt + 1
        def ring(mm):
            return (w_ops(mm + 2), ("w", mm + 2)) if mm <= 7 else (v_ops(mm - 8), ("v", mm - 8))
        if kt == 0:
            place(x_ops(2), [0, 2, 4, 10, 18, 20, 22, 25], ("x", 2))
            place(w_ops(2), [7, 13, 15, 30], ("w", 2))
        else:
            ops, tag = ring(kt); place(ops[2:], [0, 10], tag)
        kk = {6: 0, 7: 1, 9: 2}.get(kt)
        if kk is not None: place(k_ops(kk), [18, 20, 22, 25], ("k", kk))
        if kt < 9:
            st.pre[pos[0, 4]].append([("x", kt + 1)] + (["lw"] if kt == 0 else []))
            sx_ = [pos[0, k] for k in range(5, 10)] + [pos[1, k] for k in range(5, 8)]
            xr = set()
            for k in range(8):
                x = x_read(kt + 1, k >> 1, k & 1); st.mem[sx_[k]].append(x); xr |= I(x).w
            st.force[25] = xr
        if kt + 3 < 10: place(x_ops(kt + 3), [27, 33, 36, 41, 44, 49, 57, 62], ("x", kt + 3))
        need = ([("w", m)] if m < 10 else []) + ([("k", 0)] if m == 9 else []) + (["ls"] if m == ASIG else [])
        gb = pos[5, 7]
        ops, tag = ring(m)
        place(ops[:2] if m < 10 else ops, [53, 60] if m < 10 else [53, 55, 57, 59], tag)
        if m == 10:
            place(k_ops(3), [61, 63, 65, 67], ("k", 3))
            st.va[last] += ["s_mov_b32 s34, 0x10000", "s_mov_b32 s35, 0xc000"]
        for g in range(pos[0, 5] if kt == 0 else 0, last + 1):
            if any(x.startswith("buffer") for x in st.mem[g]): continue
            n = len(st.mem[g])
            while lnr and n < 2:
                x = lnr.pop(0); st.va[g].append(x); n += 0 if x.startswith("s_nop") else 1
                if x.startswith("buffer"): st.tag[x] = "ls"; break
        if m == 9: st.va[gb] += w0_only("APOLLW", ["@poll", "s_mov_b32 s72, 15", "s_mov_b32 s73, 15"] + spin("APOLL", apoll, v(t+12), "32", "s[72:73]"))
        st.va[gb] += stampl(f"q{kt}b", stamps)
        if need: st.va[gb].append(need)
        st.va[gb] += stampl(f"q{kt}c", stamps)
        st.va[gb].append("s_barrier")
        if m == ASIG:
            assert not lnr
            st.va[gb] += w0_only("ASIGW", ["s_lshr_b32 s72, s63, 2", "s_mul_i32 s72, s72, 112", "s_lshl_b32 s73, s63, 2", "s_add_u32 s72, s72, s73"] + signal("s72"))
        if m == 8: st.va[gb] += w0_only("APOL0W", [f"v_lshlrev_b32 {v(t+13)}, 2, v0", apoll, "@mark"])
        if m == 9:
            st.va[54] += [f"v_and_b32 {v(t+12)}, 15, v0", f"v_lshlrev_b32 {v(t+12)}, 3, {v(t+12)}"]
            st.sc[55] += ["s_lshl_b32 s72, s30, 7", f"s_add_u32 s72, s72, {STAT_OFF}"]
            for q, g in enumerate((57, 59, 65, 67)):
                x = f"buffer_load_dwordx2 {v(STT+2*q,2)}, {v(t+12)}, {SWS}, s72 offen offset:{128*q} sc1"
                st.mem[g].append(x); st.tag[x] = "st"
        if kt == 9:
            sl = [pos[T, k] for T in range(6) for k in (5, 6, 7)]
            for k in range(16): st.mem[sl[k]].append(k_read(0, k >> 2, k & 3))
        if kt in (6, 7, 8):
            for i in range(32): st.va[pos[i // 4, 1 + i % 4]].append(f"v_accvgpr_write_b32 {a(32 + 32*(kt-6) + i)}, 0")
        st.resolve(vm)
        if 'X' in EXP or 'W' in EXP:
            for g in range(len(st.mem)):
                st.mem[g] = [x for x in st.mem[g] if not (x.endswith("lds") and ((SX in x and 'X' in EXP) or (SW in x and 'W' in EXP)))]
        if 'L' in EXP:
            for g in range(len(st.va)): st.va[g] = [x for x in st.va[g] if not (x.startswith("v_") and kt < 3)]
        if kt: stamp(A, f"q{kt}", stamps)
        state = st.emit(A, state, nxt0=regs_of(a(0, 4)) | regs_of(a(xb(kt + 1, 0, 0), 4)))
    stamp(A, "q10", stamps)
    A(f"v_lshrrev_b32 {v(t+12)}, 4, v0", f"v_lshlrev_b32 {v(t+12)}, 4, {v(t+12)}", "s_lshl_b32 s72, s28, 7", f"s_add_u32 s72, s72, {FCS}",
      f"v_add_u32 {v(t+13)}, s72, {v(t+12)}", f"v_mov_b32 {v(t+14)}, {FVOTE}", f"v_mov_b32 {v(t+15)}, 0",
      f"ds_write_b128 {v(t+13)}, {v(CSA,4)}", f"ds_write_b128 {v(t+13)}, {v(CSA+4,4)} offset:64", f"ds_write_b32 {v(t+14)}, {v(t+15)}")
    for k in range(4): A(f"s_lshl_b32 s72, {s(76+k)}, 5", f"s_add_u32 s72, s72, {FCS}", f"v_add_u32 {v(ONES+k)}, s72, {v(t+12)}")
    A(*vm.wait(["st"])); A("s_waitcnt lgkmcnt(0)", "s_barrier")
    def cs_read(T): return f"ds_read_b128 {v(CSR+4*(T%3),4)}, {v(ONES+T//2)} offset:{64*(T&1)}"
    A(cs_read(0), cs_read(1))
    for T in range(8):
        if T + 2 < 8: A(cs_read(T + 2))
        A(f"s_waitcnt lgkmcnt({min(2, 7-T)})")
        c = CSR + 4 * (T % 3)
        for q in range(4):
            for h in range(2): A(f"v_pk_mul_f32 {v(t+12+2*h,2)}, {v(c+2*h,2)}, {v(STT+2*q,2)} op_sel:[0,1] op_sel_hi:[1,1]")
            for h in range(2): A(f"v_pk_fma_f32 {v(acc(q,T)+2*h,2)}, {v(acc(q,T)+2*h,2)}, {v(STT+2*q,2)}, {v(t+12+2*h,2)} op_sel_hi:[1,0,1]")
        for q in range(4):
            for h in range(2): A(f"v_cvt_pk_bf16_f32 {v(Q+16*q+2*T+h)}, {v(acc(q,T)+2*h)}, {v(acc(q,T)+2*h+1)}")
    TMP = J
    for q in range(4):
        for tt in range(4):
            A(f"{MF} {v(TMP+4*q,4)}, {a(kf(0,tt),4)}, {v(qf(q,tt),4)}, {v(TMP+4*q,4) if tt else 0}")
            for i in range(2): A(f"v_accvgpr_write_b32 {a(8*q + 2*tt + i)}, 0")
    for i in range(8): A(f"v_mov_b32 {v(L+i)}, 0")
    for i in range(8): A(f"v_mov_b32 {v(P+8+i)}, 0")
    for q in range(4):
        A(f"v_max3_f32 {v(TMP+4*q)}, {v(TMP+4*q)}, {v(TMP+4*q+1)}, {v(TMP+4*q+2)}", f"v_max_f32 {v(TMP+4*q)}, {v(TMP+4*q)}, {v(TMP+4*q+3)}")
    negm_from_max(A, [TMP + 4*q for q in range(4)])
    A("s_movk_i32 s49, 0xfe", "s_mov_b32 s63, 0")
    if 'n' in EXP: A("s_mov_b32 s49, 0")
    A("ATT:", "s_nop 1")
    for kt in range(4):
        for tt in range(4):
            A(f"{MF} {v(S+4*kt,4)}, {a(kf(kt,tt),4)}, {v(qf(0,tt),4)}, {v(S+4*kt,4) if tt else v(NM,4)}")
    A("s_mov_b32 s62, 8")
    stamp(A, "att", stamps)
    if stamps: A("s_memtime s[96:97]")
    st = main_loop()
    state = st.emit(None, [])
    A(".p2align 5", "LOOP:")
    b0 = len(A.L)
    assert state == st.emit(A, state)
    A("s_sub_u32 s62, s62, 1", "s_cmp_eq_u32 s62, 0", "s_cbranch_scc1 LOOPX", "s_bitcmp1_b32 s49, s62", "s_cbranch_scc0 LOOP", "s_branch SIDE", "LOOPX:")
    body = A.L[b0:]
    stamp(A, "loopx", stamps)
    if stamps: A("s_memtime s[98:99]")
    vm = VM(24)
    tail = []
    for dt in range(8):
        for h in range(2): tail.append(f"{MF} {a(of(dt,3),4)}, {a(vf(h,dt),4)}, {v(P+8+4*h,4)}, {a(of(dt,3),4)}")
    ls = [L + 2*q for q in range(4)]
    B = Asm()
    for q in range(4): B(f"v_add_f32 {v(ls[q])}, {v(ls[q])}, {v(ls[q]+1)}")
    xgroup_multi(B, ls, [t + i for i in range(4)], "v_add_f32")
    B(f"v_add_f32 {v(t+1)}, {v(ls[0])}, {v(ls[1])}", f"v_add_f32 {v(t+2)}, {v(ls[2])}, {v(ls[3])}", f"v_add_f32 {v(t+1)}, {v(t+1)}, {v(t+2)}",
      f"s_mov_b32 s72, {LMAX}", f"v_cmp_nge_f32 vcc, s72, {v(t+1)}", f"v_mov_b32 {v(t+2)}, {FVOTE}", f"v_mov_b32 {v(t+3)}, 1")
    for q in range(4): B(f"v_rcp_f32 {v(ls[q])}, {v(ls[q])}")
    for i, m in enumerate(tail):
        A(m); A(*B.L[3*i:3*i+3])
    assert len(B.L) <= 48
    A("s_and_saveexec_b64 s[72:73], vcc", f"ds_write_b32 {v(t+2)}, {v(t+3)}", "s_mov_b64 exec, s[72:73]")
    early = [(x, ("a", k)) for k in range(6, 6 + EARLY) for x in a_loads(k, k)]
    for e in range(4):
        A(f"s_mov_b32 s72, {e*131072}")
        for q in range(4):
            w = S + 12 * (q & 1)
            for b in range(2):
                for r in range(4): A(f"v_accvgpr_read_b32 {v(w+4*b+r)}, {a(of(2*e+b,q)+r)}")
            for i in range(4): A(f"v_pk_mul_f32 {v(w+2*i,2)}, {v(w+2*i,2)}, {v(ls[q],2)} op_sel_hi:[1,0]")
            for i in range(4): A(f"v_cvt_pk_bf16_f32 {v(w+8+i)}, {v(w+2*i)}, {v(w+2*i+1)}")
            put(A, vm, [f"buffer_store_dwordx4 {v(w+8,4)}, {v(L16)}, {SO}, s72 offen offset:{1024*q} sc1"], "o")
            while early:
                x, tag = early.pop(0); put(A, vm, [x], tag)
                if x.startswith("buffer"): break
        if e == 0: A("s_waitcnt lgkmcnt(0)", "s_barrier", f"ds_read_b32 {v(t+3)}, {v(t+2)}")
    stamp(A, "ost", stamps)
    A("s_waitcnt lgkmcnt(0)", f"v_readfirstlane_b32 s72, {v(t+3)}", f"v_mov_b32 {v(t+8)}, 1", f"v_mov_b32 {v(t+9)}, s74",
      "s_andn2_b32 s72, s72, s63", "s_cmp_lg_u32 s72, 0", "s_cbranch_scc1 REDO")
    stamp(A, "vote", stamps)
    assert not early
    weave(A, vm, [(a_loads(k, k), ("a", k)) for k in range(6)], ffn_part1(), 2)
    A("s_barrier")
    A(*vm.wait(["o"]))
    stamp(A, "drain", stamps)
    A("s_mov_b64 exec, 1"); put(A, vm, [f"buffer_store_dword {v(t+8)}, {v(t+9)}, {SWS}, 0 offen sc1"], "f"); A("s_mov_b64 exec, -1")
    oproj(A, vm, stamps)
    if stamps:
        A("s_memrealtime s[62:63]", "s_waitcnt lgkmcnt(0)", "s_sub_u32 s96, s98, s96")
        srd(A, 68, PWS, STAMP_OFF, 0x10000)
        A("s_lshl_b32 s72, s2, 2", "s_add_u32 s72, s72, s28", "s_lshl_b32 s72, s72, 6", f"v_mov_b32 {v(t)}, s72", "s_mov_b64 exec, 1")
        for i, r in enumerate([80 + 2*k for k in range(8)] + [62, 96]):
            A(f"v_mov_b32 {v(t+1)}, {s(r)}", f"buffer_store_dword {v(t+1)}, {v(t)}, {ST}, 0 offen offset:{4*i}", "s_nop 1")
    A("END:", "s_endpgm")
    B = Asm(); side_jobs(B)
    cur = None
    for x in B.L:
        if x in ("s_branch LOOP", "s_branch CHK") and cur: stamp(A, cur + "x", stamps)
        A(x)
        if x.endswith(":") and x[:-1] in [f"JOB{i}" for i in range(7)]:
            cur = x[:-1]; stamp(A, cur, stamps)
    A("REDO:", "s_mov_b32 s63, 1", "s_mov_b32 s49, 0", "s_mov_b32 s34, 0", "s_mov_b64 s[4:5], s[38:39]", "s_mov_b64 s[8:9], s[40:41]", "s_waitcnt vmcnt(0)")
    TMP = J + 20
    M = TMP + 16
    for q in range(4): A(f"v_mov_b32 {v(M+q)}, 0xff800000")
    A("MAXL:", "s_barrier", k_m0(0), "s_nop 0")
    for i in range(4): A(k_dma(i))
    A("s_add_u32 s34, s34, 16384", "s_waitcnt vmcnt(0)", "s_barrier")
    for kt in range(4):
        for tt in range(4): A(k_read(0, kt, tt))
        if kt == 1: A("s_waitcnt lgkmcnt(0)")
    A("s_waitcnt lgkmcnt(0)")
    for q in range(4):
        for kt in range(4):
            for tt in range(4): A(f"{MF} {v(TMP+4*kt,4)}, {a(kf(kt,tt),4)}, {v(qf(q,tt),4)}, {v(TMP+4*kt,4) if tt else 0}")
        A("s_nop 7")
        for i in range(8): A(f"v_max3_f32 {v(M+q)}, {v(M+q)}, {v(TMP+2*i)}, {v(TMP+2*i+1)}")
    A("s_cmp_lt_u32 s34, 0x80000", "s_cbranch_scc1 MAXL")
    negm_from_max(A, [M + q for q in range(4)])
    for i in range(128): A(f"v_accvgpr_write_b32 {a(i)}, 0")
    for i in range(8): A(f"v_mov_b32 {v(L+i)}, 0")
    for i in range(8): A(f"v_mov_b32 {v(P+8+i)}, 0")
    A("s_mov_b32 s34, 0", "s_mov_b32 s35, 0", "s_barrier")
    for j in range(4):
        if j > 0:
            A(v_m0(j - 1), "s_nop 0")
            for i in range(4): A(v_dma(i))
            A("s_add_u32 s35, s35, 16384")
        A(k_m0(j), "s_nop 0")
        for i in range(4): A(k_dma(i))
        A("s_add_u32 s34, s34, 16384")
    A("s_waitcnt vmcnt(24)", "s_barrier")
    for kt in range(4):
        for tt in range(4): A(k_read(0, kt, tt))
        if kt == 1: A("s_waitcnt lgkmcnt(0)")
    A("s_waitcnt lgkmcnt(0)", "CODE1:", "s_branch ATT")
    return A, body
```

```python
import os
from core import *
from layout import *
from common import argmax_keys, xgroup_multi

MF = "v_mfma_f32_16x16x32_bf16"
NAME = "recurrent_scan__mha_block_cached__moe_arch_mod__prompt_kernel"
PX, PK, PV, PWQ, PWO, PWR, PG, PU, PD, POUT, PDBG, PWS = 36, 38, 40, 42, 44, 48, 50, 52, 54, 56, 58, 60
SK, SV, SW, SX, SO, SWS, SDB, ST = "s[4:7]", "s[8:11]", "s[12:15]", "s[16:19]", "s[20:23]", "s[24:27]", "s[64:67]", "s[68:71]"
VK, VV, VW = 1, 2, 3
RK, RV, RW = 4, 8, 16
VX, RX = 20, 22
ONES = 26
L16 = 30
Q, ACC = 32, 96
S, P, NM, L = 96, 128, 144, 160
J = 168
T0 = 240
CSA, CSR, STT = 224, 232, 244
KF, VF = 128, 192
VBASE, SPARE = 65536, 131072
XA, XB = SPARE, 32768
FEX, FH, FVOTE, FCS = SPARE + 7680, SPARE + 8192 + 7680, SPARE + 16384 + 7680, SPARE + 24576 + 7680
LDS = 163840
NFFN, NPACK = 216, 256
SEL, RBITS = 46, 47
ASIG = 4
QSCALE = 0x3e0293ee
LMAX = 0x5d800000
NLOG2E = 0xbfb8aa3b
DBG_F, DBG_C, DBG_B = 32, 36, 40
LR = int(os.environ.get("MAPLR", 3))
DUMMY = 239
VT = 31
STO = "s[36:39]"
TOUCH = os.environ.get("TOUCH", "a")
PRE = os.environ.get("PRE", "x0,w0,x1,L,C").split(",")
MID = os.environ.get("MID", "w1").split(",")
TPOL = os.environ.get("TPOL", "")

def qf(q, t): return Q + 16 * q + 4 * t
def acc(q, T): return ACC + 32 * q + 4 * T
def kf(kt, t): return KF + 16 * kt + 4 * t
def vf(h, dt): return VF + 32 * h + 4 * dt
def of(dt, q): return 16 * dt + 4 * q
def xb(kt, q, sx): return 192 + 32 * (kt & 1) + 8 * q + 4 * sx
def wslot(kt): return (kt + 2) % 4
KVPOL = os.environ.get("KVPOL", "sc1")
EXP = os.environ.get("EXP", "")
NT = os.environ.get("NT", "")
XNT = os.environ.get("XNT", "")
WSC = os.environ.get("WSC", "sc1")
OSC = os.environ.get("OSC", "sc1")
def k_read(slot, kt, t): return f"ds_read_b128 {a(kf(kt,t),4)}, {v(RK+t)} offset:{slot*16384 + kt*1024}"
def v_read(slot, h, dt, p): return f"ds_read_b64_tr_b16 {a(vf(h,dt)+2*p,2)}, {v(RV+dt)} offset:{slot*16384 + (2*h+p)*1024}"
def k_dma(i): return f"buffer_load_dwordx4 {v(VK)}, {SK}, s34 offen offset:{1024*i} {KVPOL} lds"
def v_dma(i): return f"buffer_load_dwordx4 {v(VV)}, {SV}, s35 offen offset:{1024*i} {KVPOL} lds"
def kv_touch(): return f"buffer_load_dword {v(DUMMY)}, {v(VT)}, {STO}, 0 offen {TPOL}"
def k_m0(slot): return f"s_add_u32 m0, s33, {slot*16384}"
def v_m0(slot): return f"s_add_u32 m0, s33, {VBASE + slot*16384}"

class VM:
    def __init__(self, older=0):
        self.q = [None] * older; self.done = 0
    def issue(self, tag): self.q.append(tag)
    def n_after(self, tags):
        return len(self.q) - 1 - max(i for i, t in enumerate(self.q) if t in tags)
    def wait(self, tags):
        n = self.n_after(tags)
        if len(self.q) - self.done <= n: return []
        self.done = len(self.q) - n
        return [f"s_waitcnt vmcnt({n})"]
    def room(self):
        if len(self.q) - self.done < 62: return []
        self.done = len(self.q) - 56
        return ["s_waitcnt vmcnt(56)"]

class Stream:
    def __init__(self):
        self.mf = []; self.sc = []; self.mem = []; self.va = []; self.force = {}
        self.pre = []; self.tag = {}; self.tagq = {}
    def add(self, m):
        self.mf.append(m); self.sc.append([]); self.mem.append([]); self.va.append([]); self.pre.append([])
        return len(self.mf) - 1
    def resolve(self, vm):
        for g in range(len(self.mf)):
            for need in self.pre[g]: self.sc[g] = vm.wait(need) + self.sc[g]
            tq = list(self.tagq.get(g, []))
            for x in self.mem[g]:
                if x.startswith("buffer"): vm.issue(self.tag[x] if x in self.tag else tq.pop(0))
            out = []
            for x in self.va[g]:
                if isinstance(x, list): out += vm.wait(x)
                elif x == "@mark": vm.mark = len(vm.q)
                elif x == "@poll": out.append(f"s_waitcnt vmcnt({len(vm.q) - vm.mark})")
                else:
                    out.append(x)
                    if x in self.tag: vm.issue(self.tag[x])
            self.va[g] = out
    def emit(self, A, state=None, lag=6, nxt0=None):
        pend = list(state) if state else []
        n = len(self.mf); out = []
        for i in range(n):
            out.append(self.mf[i])
            pre = list(self.sc[i])
            nxt = I(self.mf[i + 1]).ab if i + 1 < n else (I(self.mf[0]).ab if nxt0 is None else nxt0)
            nxt = nxt | self.force.get(i, set())
            hit = [k for k, (rg, t) in enumerate(pend) if rg & nxt]
            if hit:
                k = max(hit)
                while k + 1 < len(pend) and i - pend[k + 1][1] >= lag: k += 1
                left = len(pend) - 1 - k
                assert left <= 15
                pre.insert(0, f"s_waitcnt lgkmcnt({left})")
                pend = pend[k + 1:]
            out += pre
            for m in self.mem[i]:
                out.append(m)
                if m.startswith("ds_read"): pend.append((I(m).w, i))
            out += self.va[i]
        if A is not None: A(*out)
        return [(rg, t - n) for rg, t in pend]

def stamp(A, k, on):
    A(*stampl(k, on))

def stampl(k, on):
    return [f"s_memrealtime {s(80+2*on.index(k),2)}"] if on and k in on else []

def allred32(A, x, t, op):
    for r in (8, 4, 2, 1):
        A("s_nop 1", f"{op}_dpp {v(x)}, {v(x)}, {v(x)} row_ror:{r} row_mask:0xf bank_mask:0xf")
    A(f"v_mov_b32 {v(t)}, {v(x)}", "s_nop 1", f"v_permlane16_swap_b32 {v(x)}, {v(t)}", "s_nop 1", f"{op} {v(x)}, {v(x)}, {v(t)}")

def rbf(A, x):
    A(f"v_cvt_pk_bf16_f32 {v(x)}, {v(x)}, {v(x)}", f"v_lshlrev_b32 {v(x)}, 16, {v(x)}")

def w0_only(label, lines):
    return ["s_cmp_lg_u32 s28, 0", f"s_cbranch_scc1 {label}"] + lines + [f"{label}:"]

def signal(off):
    return ["s_mov_b64 exec, 1", f"v_mov_b32 {v(T0+14)}, 1", f"v_mov_b32 {v(T0+15)}, {off}",
            f"buffer_atomic_add {v(T0+14)}, {v(T0+15)}, {SDB}, 0 offen sc1", "s_mov_b64 exec, -1"]

def spin(label, reload_, val, expect, mask=None):
    m = [f"s_and_b64 vcc, vcc, {mask}"] if mask else []
    return [f"s_mov_b32 s32, {os.environ.get('SPINCAP', '0x100000')}", f"{label}:", f"v_cmp_gt_u32 vcc, {expect}, {val}", "s_sub_u32 s32, s32, 1", f"s_cbranch_scc1 {label}_OK"] + m + \
           [f"s_cbranch_vccz {label}_OK", "s_sleep 1", reload_, "s_waitcnt vmcnt(0)", f"s_branch {label}", f"{label}_OK:"]

ROW, PP, LXA, LWA, LSA = 32, 33, 34, 35, 36
LX, LW, LF, LS, LD = 40, 50, 60, 80, 90

def ln_unpack(d, x):
    o = []
    for i in range(10): o += [f"v_lshlrev_b32 {v(d+2*i)}, 16, {v(x+i)}", f"v_and_b32 {v(d+2*i+1)}, s101, {v(x+i)}"]
    return o

def ln_stats():
    t = 37
    B = Asm()
    B(*ln_unpack(LF, LX))
    for i in range(10): B(f"v_add_f32 {v(LS+i)}, {v(LF+2*i)}, {v(LF+2*i+1)}")
    for i in range(5): B(f"v_add_f32 {v(LS+i)}, {v(LS+i)}, {v(LS+5+i)}")
    B(f"v_add_f32 {v(LS)}, {v(LS)}, {v(LS+1)}", f"v_add_f32 {v(LS+2)}, {v(LS+2)}, {v(LS+3)}", f"v_add_f32 {v(LS)}, {v(LS)}, {v(LS+4)}", f"v_add_f32 {v(LS)}, {v(LS)}, {v(LS+2)}")
    allred32(B, LS, LS + 1, "v_add_f32")
    M, R = LS, LS + 2
    B(f"v_mul_f32 {v(M)}, s100, {v(M)}")
    for i in range(0, 20, 4):
        for k in range(4): B(f"v_sub_f32 {v(LD+k)}, {v(LF+i+k)}, {v(M)}")
        for k in range(4): B(f"{'v_fmac_f32' if i else 'v_mul_f32'} {v(R+k)}, {v(LD+k)}, {v(LD+k)}")
    B(f"v_add_f32 {v(R)}, {v(R)}, {v(R+1)}", f"v_add_f32 {v(R+2)}, {v(R+2)}, {v(R+3)}", f"v_add_f32 {v(R)}, {v(R)}, {v(R+2)}")
    allred32(B, R, R + 1, "v_add_f32")
    B(f"v_mul_f32 {v(R)}, s100, {v(R)}")
    rbf(B, M); rbf(B, R)
    B(f"v_add_f32 {v(R)}, 0x3727c5ac, {v(R)}"); rbf(B, R)
    B(f"v_sqrt_f32 {v(R)}, {v(R)}", "s_nop 0"); rbf(B, R)
    B(f"v_rcp_f32 {v(R)}, {v(R)}", f"v_lshlrev_b32 {v(t)}, 3, {v(ROW)}", f"v_add_u32 {v(t)}, {STAT_OFF}, {v(t)}")
    B(f"v_mul_f32 {v(LS+6)}, {QSCALE}, {v(R)}", f"v_mul_f32 {v(LS+7)}, {v(M)}, {v(LS+6)}", f"v_sub_f32 {v(LS+7)}, 0, {v(LS+7)}")
    B(f"buffer_store_dwordx2 {v(LS+6,2)}, {v(t)}, {SWS}, 0 offen sc1")
    return B.L

def ln_rest():
    t = 37
    M, R = LS, LS + 2
    B = Asm()
    for i in range(20): B(f"v_sub_f32 {v(LF+i)}, {v(LF+i)}, {v(M)}")
    for i in range(10): B(f"v_cvt_pk_bf16_f32 {v(LX+i)}, {v(LF+2*i)}, {v(LF+2*i+1)}")
    B(*ln_unpack(LF, LX))
    for i in range(20): B(f"v_mul_f32 {v(LF+i)}, {v(LF+i)}, {v(R)}")
    for i in range(10): B(f"v_cvt_pk_bf16_f32 {v(LX+i)}, {v(LF+2*i)}, {v(LF+2*i+1)}")
    un = ln_unpack(LF, LX)
    for i in range(5): B(f"buffer_store_dwordx2 {v(LX+2*i,2)}, {v(LXA)}, {SWS}, 0 offen offset:{256*i} sc1", *un[4*i:4*i+4])
    u = LS + 6
    for i in range(10):
        B(f"v_lshlrev_b32 {v(u)}, 16, {v(LW+i)}", f"v_and_b32 {v(u+1)}, s101, {v(LW+i)}")
        op = "v_mul_f32" if i < 2 else "v_fmac_f32"
        B(f"{op} {v(R+2*(i&1))}, {v(LF+2*i)}, {v(u)}", f"{op} {v(R+2*(i&1)+1)}, {v(LF+2*i+1)}, {v(u+1)}")
    B(f"v_add_f32 {v(R)}, {v(R)}, {v(R+1)}", f"v_add_f32 {v(R+2)}, {v(R+2)}, {v(R+3)}", f"v_add_f32 {v(R)}, {v(R)}, {v(R+2)}")
    allred32(B, R, R + 1, "v_add_f32")
    k, u = R, R + 1
    B(f"v_cvt_pk_bf16_f32 {v(k)}, {v(k)}, {v(k)}", f"v_ashrrev_i32 {v(u)}, 31, {v(k)}", f"v_and_b32 {v(u)}, 0x7fff, {v(u)}", f"v_or_b32 {v(u)}, 0x8000, {v(u)}",
      f"v_and_b32 {v(k)}, 0xffff, {v(k)}", f"v_xor_b32 {v(k)}, {v(k)}, {v(u)}", f"v_sub_u32 {v(u)}, 2047, {v(ROW)}", f"v_lshl_or_b32 {v(k)}, {v(k)}, 11, {v(u)}",
      f"v_mov_b32 {v(u)}, {v(k)}", f"v_lshrrev_b32 {v(t)}, 1, {v(ROW)}", f"v_lshlrev_b32 {v(t)}, 2, {v(t)}", f"v_permlane32_swap_b32 {v(k)}, {v(u)}",
      f"v_add_u32 {v(t)}, {KEY_OFF}, {v(t)}", "s_nop 0", f"v_max_u32 {v(k)}, {v(k)}, {v(u)}", f"buffer_store_dword {v(k)}, {v(t)}, {SWS}, 0 offen sc1")
    B(f"v_mov_b32 {v(u)}, 0", f"v_mov_b32 {v(t)}, s74", f"buffer_store_dword {v(u)}, {v(t)}, {SWS}, 0 offen sc1")
    B(f"v_lshl_add_u32 {v(t)}, v0, 2, s47", f"buffer_store_dword {v(u)}, {v(t)}, {SWS}, 0 offen sc1")
    return B.L

def main_loop():
    st = Stream()
    for tile in range(4):
        base = len(st.mf)
        for q in range(4):
            qn, qp = (q + 1) % 4, (q - 1) % 4
            sb = S + 16 * ((q + 1) % 2)
            w0 = len(st.mf)
            for kt in range(4):
                for t in range(4):
                    c = v(NM + 4 * qn, 4) if t == 0 else v(sb + 4 * kt, 4)
                    st.add(f"{MF} {v(sb+4*kt,4)}, {a(kf(kt,t),4)}, {v(qf(qn,t),4)}, {c}")
            pb = P + 8 * ((q - 1) % 2)
            for dt in range(8):
                for h in range(2):
                    st.add(f"{MF} {a(of(dt,qp),4)}, {a(vf(h,dt),4)}, {v(pb+4*h,4)}, {a(of(dt,qp),4)}")
            sc = S + 16 * (q % 2); pc = P + 8 * (q % 2)
            for i in range(16):
                st.va[w0 + 2*i].append(f"v_exp_f32 {v(sc+i)}, {v(sc+i)}")
                l = L + 2 * q + (i & 1)
                st.va[w0 + 2*i + 1].append(f"v_add_f32 {v(l)}, {v(l)}, {v(sc+i)}")
                if i & 1: st.va[w0 + 2*i + 1].append(f"v_cvt_pk_bf16_f32 {v(pc + i//2)}, {v(sc+i-1)}, {v(sc+i)}")
        if tile == 0 and "k" in TOUCH:
            st.mem[5].append(kv_touch()); st.va[9].append(f"v_add_u32 {v(VT)}, 0x10000, {v(VT)}")
        st.sc[base + 15] += ["s_waitcnt vmcnt(16)"]
        st.sc[base + 16] += ["s_barrier"]
        g = base + 17
        for dt in range(8):
            for h in range(2):
                for p in range(2):
                    st.mem[g].append(v_read(tile, h, dt, p)); g += 1
        g = base + 65
        for kt in range(4):
            for t in range(4):
                st.mem[g].append(k_read((tile + 1) % 4, kt, t)); g += 2
        for i, x in enumerate(["s_cmp_lt_u32 s35, 0x80000", "s_cselect_b32 s8, s40, s36", "s_cselect_b32 s9, s41, s37", "s_cselect_b32 s3, 0x4000, s48"]): st.sc[base + 44 + 2*i].append(x)
        st.sc[base + 52] += [v_m0((tile + 3) % 4)]
        gv = [53, 57, 61, 101]; gk = [109, 113, 117, 121]
        for i in range(4): st.mem[base + gv[i]].append(v_dma(i))
        for i, x in enumerate(["s_add_u32 s35, s35, s3", "s_cmp_lt_u32 s34, 0x80000", "s_cselect_b32 s4, s38, s42", "s_cselect_b32 s5, s39, s43", "s_cselect_b32 s3, 0x4000, s48"]): st.sc[base + 102 + i].append(x)
        st.sc[base + 107] += [k_m0(tile)]
        for i in range(4): st.mem[base + gk[i]].append(k_dma(i))
        st.sc[base + 122] += ["s_add_u32 s34, s34, s3"]
    return st

def negm_from_max(A, ms):
    xgroup_multi(A, ms, [T0 + i for i in range(4)], "v_max_f32")
    for q in range(4):
        for r in range(4): A(f"v_sub_f32 {v(NM+4*q+r)}, 0, {v(ms[q])}")

def div_rows(A, d, i, per, magic, stride, t):
    A(f"v_add_u32 {v(t)}, {64*i}, v0", f"v_mul_u32_u24 {v(t+1)}, {magic}, {v(t)}", f"v_lshrrev_b32 {v(t+1)}, 16, {v(t+1)}",
      f"v_mul_u32_u24 {v(t+2)}, {per}, {v(t+1)}", f"v_sub_u32 {v(t+2)}, {v(t)}, {v(t+2)}", f"v_lshlrev_b32 {v(t+2)}, 4, {v(t+2)}",
      f"v_mul_u32_u24 {v(t+1)}, {stride}, {v(t+1)}", f"v_add_u32 {v(d)}, {v(t+1)}, {v(t+2)}")

XRP, XNP = (22, 24, 26, 28, 18), (16, 232, 234, 236, 252)
VXO = 31
XS, WF, GA = J, J + 20, J + 40
DBGV, DBGA = J + 46, J + 47

def side_jobs(A):
    t = T0
    dbg_load = f"buffer_load_dword {v(DBGV)}, {v(DBGA)}, {SDB}, 0 offen sc1"
    A("SIDE:")
    for it in (1, 2, 3, 4, 5): A(f"s_cmp_eq_u32 s62, {7-it}", f"s_cbranch_scc1 JOB{it}")
    def two_counters(off): return [f"v_and_b32 {v(DBGA)}, 1, v0", f"v_lshlrev_b32 {v(DBGA)}, 7, {v(DBGA)}", f"v_add_u32 {v(DBGA)}, {off}, {v(DBGA)}", dbg_load]
    A("JOB0:", "s_lshl_b32 s75, s28, 13", f"s_add_u32 s75, s75, {SPARE}")
    div_rows(A, J + 44, 0, 10, 6554, 1280, t)
    srd(A, 68, PWO, 0, 4096 * 1280)
    A("s_lshr_b32 s73, s2, 1", "s_and_b32 s72, s2, 1", "s_lshl_b32 s72, s72, 2", "s_add_u32 s72, s72, s28",
      f"s_mul_i32 s76, s73, {32*1280}", "s_mul_i32 s77, s72, 160", "s_add_u32 s76, s76, s77",
      f"s_mul_i32 s77, s72, {128*5120}", "s_mul_i32 s73, s73, 5120", "s_add_u32 s77, s77, s73")
    for i in range(6):
        A(f"s_add_u32 m0, s75, {i*1024}", "s_nop 0" if i == 0 else f"s_add_u32 s76, s76, {6*1280}", f"buffer_load_dwordx4 {v(J+44)}, {ST}, s76 offen {NT} lds")
    A(*two_counters(DBG_B)); A("s_branch LOOP")
    A("JOB1:", f"v_lshrrev_b32 {v(t)}, 2, v0", f"v_and_b32 {v(t+3)}, 3, v0", f"v_lshl_add_u32 {v(t+3)}, {v(t+3)}, 3, s75")
    for p in range(2):
        if p: A(f"v_add_u32 {v(t)}, 16, {v(t)}")
        A(f"v_mul_u32_u24 {v(t+1)}, 43, {v(t)}", f"v_lshrrev_b32 {v(t+1)}, 8, {v(t+1)}", f"v_mul_u32_u24 {v(t+2)}, 160, {v(t)}",
          f"v_lshl_add_u32 {v(t+2)}, {v(t+1)}, 6, {v(t+2)}", f"v_add_u32 {v(t+4+p)}, {v(t+2)}, {v(t+3)}")
    A("s_waitcnt vmcnt(32)")
    for nt in range(5):
        for p in range(2): A(f"ds_read_b64_tr_b16 {v(WF+4*nt+2*p,2)}, {v(t+4+p)} offset:{nt*32}")
    A("s_movk_i32 s72, 128"); A(*spin("JOB1S", dbg_load, v(DBGV), "s72"))
    A(f"s_mov_b32 s72, {KEY_OFF}")
    for i in range(4): A(f"buffer_load_dwordx4 {v(XS+4*i,4)}, {v(L16)}, {SWS}, s72 offen offset:{1024*i} sc1")
    srd(A, 12, PWS, WOF_OFF, WOF_SIZE)
    A("s_and_b32 s76, s2, 7", "s_mul_i32 s76, s76, 27", "s_lshr_b32 s72, s2, 3", "s_min_u32 s72, s72, 26", "s_add_u32 s76, s76, s72",
      "s_mul_i32 s72, s28, 160", f"v_lshrrev_b32 {v(t)}, 1, v0", f"v_add_u32 {v(t)}, s72, {v(t)}", f"v_mul_u32_u24 {v(t)}, 3456, {v(t)}",
      "s_lshl_b32 s72, s76, 4", f"v_add_u32 {v(t)}, s72, {v(t)}", f"v_and_b32 {v(t+1)}, 1, v0", f"v_cmp_eq_u32 vcc, 1, {v(t+1)}",
      f"v_mov_b32 {v(t+2)}, {s(PG)}", f"v_mov_b32 {v(t+3)}, {s(PU)}", f"v_cndmask_b32 {v(t+2)}, {v(t+2)}, {v(t+3)}, vcc",
      f"v_mov_b32 {v(t+1)}, {s(PG+1)}", f"v_mov_b32 {v(t+3)}, {s(PU+1)}", f"v_cndmask_b32 {v(t+3)}, {v(t+1)}, {v(t+3)}, vcc",
      f"v_add_co_u32 {v(J+44)}, vcc, {v(t+2)}, {v(t)}", "s_nop 1", f"v_addc_co_u32 {v(J+45)}, vcc, 0, {v(t+3)}, vcc",
      "s_waitcnt lgkmcnt(0)")
    for nt in range(5):
        A(f"buffer_store_dwordx4 {v(WF+4*nt,4)}, {v(L16)}, {SW}, s77 offen offset:{1024*(nt%4)} sc1")
        if nt == 3: A("s_add_u32 s77, s77, 4096")
    def gu(first):
        if not first: A("s_add_u32 s77, s77, 1", "s_cmp_eq_u32 s77, 5", "s_cselect_b32 s77, 0, s77")
        A("s_lshl_b32 s72, s77, 10", "s_add_u32 m0, s75, s72", f"s_mul_i32 s72, s77, {32*3456}", "s_mov_b32 s73, 0",
          f"v_lshl_add_u64 {v(t,2)}, {v(J+44,2)}, 0, s[72:73]", f"global_load_lds_dwordx4 {v(t,2)}, off {NT if first else ''}")
    A("s_lshr_b32 s77, s2, 3", "s_and_b32 s77, s77, 7", "s_cmp_ge_u32 s77, 5", "s_cselect_b32 s72, 5, 0", "s_sub_u32 s77, s77, s72")
    gu(True)
    A("s_branch LOOP")
    A("JOB2:", "s_waitcnt vmcnt(32)")
    argmax_keys(A, XS, XS + 16, RBITS)
    A(f"s_and_b32 {s(SEL)}, {s(RBITS)}, 2047", f"s_sub_u32 {s(SEL)}, 2047, {s(SEL)}", f"s_lshr_b32 {s(RBITS)}, {s(RBITS)}, 11",
      f"s_bitcmp1_b32 {s(RBITS)}, 15", "s_mov_b32 s72, 0xffff", "s_cselect_b32 s72, 0x8000, s72", f"s_xor_b32 {s(RBITS)}, {s(RBITS)}, s72", f"s_lshl_b32 {s(RBITS)}, {s(RBITS)}, 16",
      f"s_mul_i32 s73, {s(SEL)}, 1280", "s_mul_i32 s72, s28, 320", "s_add_u32 s73, s73, s72", f"v_and_b32 {v(t)}, 48, v0")
    for i in range(5): A(f"buffer_load_dwordx4 {v(XS+4*i,4)}, {v(t)}, {SWS}, s73 offen offset:{64*i} sc1")
    for i in range(4): gu(False)
    A(*w0_only("JOB2W", ["s_and_b32 s72, s2, 1", "s_lshl_b32 s72, s72, 7", f"s_add_u32 s72, s72, {DBG_F}"] + signal("s72"))); A("s_branch LOOP")
    A("JOB3:")
    srd(A, 68, PD, 0, 1728 * 1280)
    A("s_mul_i32 s72, s76, 10240", "s_mul_i32 s73, s28, 2560", "s_add_u32 s72, s72, s73", "s_add_u32 m0, s75, 5120")
    for i in range(3):
        A("s_mov_b64 exec, 0xffffffff" if i == 2 else "s_nop 0", f"buffer_load_dwordx4 {v(L16)}, {ST}, s72 offen offset:{1024*i} {NT} lds")
    A("s_mov_b64 exec, -1")
    oproj_setup_early(A)
    A(f"v_and_b32 {v(t)}, 15, v0", f"v_lshrrev_b32 {v(t+1)}, 4, v0", "s_lshl_b32 s73, s78, 6", "s_lshl_b32 s72, s28, 4", "s_add_u32 s73, s73, s72",
      f"v_add_u32 {v(t)}, s73, {v(t)}", "s_mul_i32 s72, s79, 160", f"v_mul_u32_u24 {v(VXO)}, 1280, {v(t)}",
      f"v_lshl_add_u32 {v(VXO)}, {v(t+1)}, 3, {v(VXO)}", f"v_add_u32 {v(VXO)}, s72, {v(VXO)}")
    for nt in range(5): A(f"buffer_load_dwordx2 {v(XRP[nt],2)}, {v(VXO)}, {SX}, 0 offen offset:{32*nt}")
    A("s_branch LOOP")
    A("JOB4:"); A(*two_counters(DBG_F))
    for nt in range(5): A(f"buffer_load_dwordx2 {v(XNP[nt],2)}, {v(VXO)}, {SWS}, 0 offen offset:{32*nt} sc1")
    A("s_branch LOOP")
    A("JOB5:", "s_waitcnt vmcnt(32)", f"s_movk_i32 s72, {NPACK//2}")
    A(*spin("JOB5S", dbg_load, v(DBGV), "s72"))
    n = 1 << LR
    A("s_lshr_b32 s72, s2, 3", f"s_and_b32 s72, s72, {n-1}", f"v_lshl_add_u32 {v(t)}, v0, {LR}, s72", f"v_lshlrev_b32 {v(t)}, 7, {v(t)}")
    for i in range(-(-1280 // (64 * n))):
        if i: A(f"v_add_u32 {v(t)}, {64*n*128}, {v(t)}")
        A(f"buffer_load_dword {v(DUMMY)}, {v(t)}, {SW}, 0 offen sc1")
    A("s_branch LOOP")

def ffn_part1():
    t = T0; B = Asm()
    B(f"v_lshrrev_b32 {v(t)}, 4, v0", f"v_bfe_u32 {v(t+1)}, v0, 2, 2", f"v_lshl_add_u32 {v(t)}, {v(t)}, 3, {v(t+1)}",
      f"v_and_b32 {v(t+1)}, 3, v0", f"v_lshlrev_b32 {v(t+1)}, 3, {v(t+1)}", f"v_lshl_add_u32 {v(t)}, {v(t)}, 5, {v(t+1)}", f"v_add_u32 {v(t)}, s75, {v(t)}")
    for i in range(5):
        for p in range(2): B(f"ds_read_b64_tr_b16 {v(WF+4*i+2*p,2)}, {v(t)} offset:{i*1024 + p*128}")
    B(f"v_and_b32 {v(t+3)}, 15, v0", f"v_lshlrev_b32 {v(t+1)}, 4, {v(t+3)}", "s_lshl_b32 s72, s28, 2", f"s_add_u32 s72, s72, {FEX}", f"v_add_u32 {v(t+1)}, s72, {v(t+1)}",
      "s_mul_i32 s72, s28, 320", f"s_add_u32 s72, s72, {SPARE}", "s_movk_i32 s73, 1280", "s_waitcnt lgkmcnt(0)")
    for i in range(5): B(f"{MF} {v(GA,4)}, {v(XS+4*i,4)}, {v(WF+4*i,4)}, {v(GA,4) if i else 0}")
    B(f"v_bfe_u32 {v(t)}, v0, 3, 2", f"v_lshlrev_b32 {v(t)}, 13, {v(t)}", f"v_bfe_u32 {v(t+2)}, v0, 2, 1", f"v_mad_u32_u24 {v(t)}, {v(t+2)}, s73, {v(t)}",
      f"v_and_b32 {v(t+2)}, 3, v0", f"v_lshl_add_u32 {v(t)}, {v(t+2)}, 3, {v(t)}", f"v_add_u32 {v(t)}, s72, {v(t)}", "s_nop 0", f"ds_write_b32 {v(t+1)}, {v(GA)}")
    for nt in range(10): B(f"ds_read_b64_tr_b16 {v(WF+2*nt,2)}, {v(t)} offset:{5120 + nt*32}")
    B("s_waitcnt lgkmcnt(0)")
    return B.L

def ffn_part2():
    t = T0; G = GA; B = Asm()
    B(f"v_and_b32 {v(t)}, 7, v0", f"v_lshlrev_b32 {v(t+1)}, 4, {v(t)}", f"v_add_u32 {v(t+1)}, {FEX}, {v(t+1)}",
      f"ds_read_b128 {v(G,4)}, {v(t+1)}", f"ds_read_b128 {v(G+4,4)}, {v(t+1)} offset:128",
      "s_lshl_b32 s72, s28, 5", f"s_add_u32 s72, s72, {FH}", f"v_lshl_add_u32 {v(t+1)}, {v(t)}, 1, s72", f"v_bfe_u32 {v(t)}, v0, 4, 1", f"v_lshl_add_u32 {v(t)}, {v(t)}, 3, s72",
      "s_waitcnt lgkmcnt(0)")
    for m in range(2):
        b = G + 4 * m
        B(f"v_add_f32 {v(b)}, {v(b)}, {v(b+1)}", f"v_add_f32 {v(b+2)}, {v(b+2)}, {v(b+3)}", f"v_add_f32 {v(b)}, {v(b)}, {v(b+2)}")
    B(f"v_cvt_pk_bf16_f32 {v(G)}, {v(G)}, {v(G+4)}", f"v_and_b32 {v(G+4)}, 0xffff0000, {v(G)}", f"v_lshlrev_b32 {v(G)}, 16, {v(G)}",
      f"v_mul_f32 {v(G+1)}, {NLOG2E}, {v(G)}", f"v_exp_f32 {v(G+1)}, {v(G+1)}", "s_nop 0", f"v_add_f32 {v(G+1)}, 1.0, {v(G+1)}",
      f"v_rcp_f32 {v(G+1)}, {v(G+1)}", "s_nop 0", f"v_mul_f32 {v(G)}, {v(G)}, {v(G+1)}",
      f"v_cvt_pk_bf16_f32 {v(G)}, {v(G)}, {v(G)}", f"v_lshlrev_b32 {v(G)}, 16, {v(G)}", f"v_mul_f32 {v(G)}, {v(G)}, {v(G+4)}",
      f"v_cvt_pk_bf16_f32 {v(G)}, {v(G)}, {v(G)}", f"ds_write_b16 {v(t+1)}, {v(G)}", "s_waitcnt lgkmcnt(0)", f"ds_read_b64 {v(G,2)}, {v(t)}",
      "v_cmp_gt_u32 vcc, 32, v0", "s_lshr_b32 s73, s2, 3", "s_cmp_lt_u32 s73, 27", f"s_mov_b32 s73, {WSLO}", f"s_cselect_b32 s73, {Y_OFF}, s73",
      "s_mul_i32 s72, s28, 640", "s_add_u32 s72, s72, s73", "s_and_b32 s73, s2, 15", "s_mul_i32 s73, s73, 2560", "s_add_u32 s72, s72, s73",
      f"v_lshl_add_u32 {v(t+3)}, {v(t+3)}, 2, s72", "s_waitcnt lgkmcnt(0)",
      f"v_cndmask_b32 {v(G)}, 0, {v(G)}, vcc", f"v_cndmask_b32 {v(G+1)}, 0, {v(G+1)}, vcc", "s_nop 1")
    outs = [XS + 4*i for i in range(5)] + [J + 44 + 4*i for i in range(5)]
    for nt in range(10): B(f"v_mfma_f32_16x16x16_bf16 {v(outs[nt],4)}, {v(G,2)}, {v(WF+2*nt,2)}, 0")
    B("s_mov_b64 exec, 0xffff")
    for nt in range(10):
        if nt >= 8: B("s_nop 1")
        B(f"buffer_atomic_add_f32 {v(outs[nt])}, {v(t+3)}, {SWS}, 0 offen offset:{64*nt}")
    B("s_mov_b64 exec, -1")
    return B.L

def weave(A, vm, loads, fill, per):
    fill = list(fill)
    def pop():
        x = fill.pop(0)
        if x.startswith("s_mov_b64 exec, 0x"):
            while True:
                put(A, vm, [x], "fa")
                if x == "s_mov_b64 exec, -1": return
                x = fill.pop(0)
        put(A, vm, [x], "fa")
        while x.startswith(("s_cmp", "s_mov_b32 s73")): x = fill.pop(0); put(A, vm, [x], "fa")
    for lines, tag in loads:
        for x in lines:
            put(A, vm, [x], tag)
            if x.startswith("buffer_"):
                for _ in range(per):
                    if fill: pop()
    while fill: pop()

OACC, OB, OT = 32, 112, 192
NB = 5
EXCH = 0
def oacc(i, nt): return OACC + 20 * i + 4 * nt
def aslot(k): return (128 + 20 * (k - 6)) if k >= 6 else 20 * k

def oproj_setup_early(A):
    lr = LR
    A("s_and_b32 s72, s2, 7", "s_lshr_b32 s73, s2, 3", f"s_lshr_b32 s78, s72, {lr-2}", f"s_lshl_b32 s78, s78, {lr}", f"s_and_b32 s79, s73, {(1<<lr)-1}", "s_add_u32 s78, s78, s79",
      f"s_and_b32 s72, s72, {(1<<(lr-2))-1}", f"s_lshl_b32 s72, s72, {5-lr}", f"s_lshr_b32 s79, s73, {lr}", "s_add_u32 s79, s79, s72",
      f"s_mul_i32 s72, s79, {128*5120}", f"s_mul_i32 s73, s28, {32*5120}", "s_add_u32 s72, s72, s73", f"s_add_u32 s72, s72, {WOF_OFF}")
    srd(A, 12, PWS, "s72", 32 * 5120)
    A("s_sub_u32 s72, s72, s33", f"s_sub_u32 s72, s72, {0x80000 - 60*1024}", f"s_add_u32 s42, {s(PWS)}, s72", f"s_addc_u32 s43, {s(PWS+1)}, 0",
      "s_add_u32 s36, s42, 16384", "s_addc_u32 s37, s43, 0")

def a_loads(k, slot):
    out = [f"s_mov_b32 s31, {k*5120}", f"s_mov_b32 s32, {k*5120+4096}"]
    for nt in range(5):
        out.append(f"buffer_load_dwordx4 {a(aslot(slot)+4*nt,4)}, {v(L16)}, {SW}, {'s32' if nt == 4 else 's31'} offen offset:{1024*(nt%4)} {WSC}")
    return out

def put(A, vm, lines, tag):
    for x in lines:
        if x.startswith(("buffer_", "global_")):
            A(*vm.room()); A(x); vm.issue(tag)
        else: A(x)

OLEAD = int(os.environ.get('OLEAD', 8))
NL = 7
EARLY = int(os.environ.get("EARLY", 0))
def lds_frag(n):
    if n < 16: return VK, (n >> 2) * 16384 + (n & 3) * 1024
    if n < 28: return VV, ((n - 16) >> 2) * 16384 + (n & 3) * 1024
    return 21, (n - 28) * 1024

def late_loads():
    out = []
    for n in range(28, 35):
        if n in (28, 32): out += [f"s_add_u32 m0, s48, {(n-28)*1024}", f"s_mov_b32 s31, {(60+n)*1024}"]
        out.append(f"buffer_load_dwordx4 {v(L16)}, {SW}, s31 offen offset:{1024*(n & 3)} {WSC} lds")
    return out

def oproj(A, vm, stamps):
    t = T0
    VB, VROW, WX = 3, 7, 9
    RE, VY, VF_ = 12, 13, 14
    G = OT + 20
    XR = [p + h for p in XRP for h in range(2)]; XNR = [p + h for p in XNP for h in range(2)]
    B = Asm()
    B("s_lshl_b32 s72, s78, 9", "s_lshl_b32 s73, s28, 7", "s_add_u32 s72, s72, s73", f"s_add_u32 s72, s72, {FLAG_OFF}",
      f"v_and_b32 {v(VF_)}, 7, v0", f"v_lshl_add_u32 {v(VF_)}, {v(VF_)}, 2, s72")
    for i in range(4):
        B(f"s_add_u32 s72, s28, {i}", "s_and_b32 s72, s72, 3", "s_lshl_b32 s72, s72, 10", f"v_add_u32 {v(VB+i)}, s72, {v(L16)}")
    B(f"v_add_u32 {v(VV)}, {VBASE}, {v(VV)}")
    B(f"v_and_b32 {v(t)}, 15, v0", f"v_lshrrev_b32 {v(t+1)}, 4, v0", "s_lshl_b32 s74, s78, 6", "s_lshl_b32 s72, s28, 4", "s_add_u32 s74, s74, s72",
      f"v_add_u32 {v(VROW)}, s74, {v(t)}",
      "s_mul_i32 s72, s79, 320", f"s_add_u32 s72, s72, {Y_OFF}", f"v_lshl_add_u32 {v(VY)}, {v(t+1)}, 4, s72", f"v_mul_u32_u24 {v(t+2)}, 2560, {v(t)}", f"v_add_u32 {v(VY)}, {v(VY)}, {v(t+2)}")
    for i in range(1, 4):
        B(f"s_add_u32 s72, s28, {i}", "s_and_b32 s72, s72, 3", "s_mul_i32 s72, s72, 15360", f"s_add_u32 s72, s72, {EXCH + (i-1)*5120}", f"v_add_u32 {v(WX+i-1)}, s72, {v(L16)}")
    B("s_mul_i32 s72, s28, 15360", f"v_add_u32 {v(RE)}, s72, {v(L16)}",
      f"s_sub_u32 s75, {s(SEL)}, s74", f"v_mov_b32 {v(t+10)}, {DBG_C}", f"s_mov_b32 s100, {NLOG2E}", "s_mov_b32 s101, 0xffff0000")
    VOT, RA2 = 20, 21
    B(f"v_lshrrev_b32 {v(VOT)}, {LR}, v0", f"v_lshlrev_b32 {v(VOT)}, 17, {v(VOT)}", f"s_lshr_b32 s72, s2, {3+LR}", f"s_lshl_b32 s72, s72, {LR}",
      f"v_and_b32 {v(t)}, {(1<<LR)-1}, v0", f"v_add_u32 {v(t)}, s72, {v(t)}", f"v_lshl_add_u32 {v(VOT)}, {v(t)}, 7, {v(VOT)}")
    A("s_mov_b32 s48, s75")
    B(f"v_add_u32 {v(RA2)}, s48, {v(L16)}")
    order = [0, 1, 2, 3, 4, 5, 6, 7, 8, 9, 10, 11]
    order = [k for k in order if ("a", k) not in vm.q]
    weave(A, vm, [(a_loads(k, k), ("a", k)) for k in order[:2]], ffn_part2(), 8)
    A("s_lshl_b32 s72, s78, 12", "s_lshl_b32 s73, s28, 22", "s_add_u32 s72, s72, s73", f"s_add_u32 s72, s72, {OF_OFF}")
    srd(A, 20, PWS, "s72", 31 * 131072 + 4096)
    srd(A, 4, POUT, 0, 2048 * 1280)
    weave(A, vm, [(a_loads(k, k), ("a", k)) for k in order[2:3]], B.L, 12)
    fpoll = f"buffer_load_dword {v(t+8)}, {v(VF_)}, {SWS}, 0 offen sc1"
    put(A, vm, [fpoll], "flag")
    for k in order[3:]: put(A, vm, a_loads(k, k), ("a", k))
    put(A, vm, late_loads(), "l")
    A(*vm.wait(["flag"]))
    A(*spin("OFLAG", fpoll, v(t+8), "1"))
    stamp(A, "flag", stamps)
    def o_off(k):
        if 'r' in EXP: return [f"s_add_u32 s34, s35, {k*131072}", "s_and_b32 s34, s34, 0x3fffff"]
        return [f"s_mov_b32 s34, {k*131072}"]
    if 'r' in EXP: A(f"s_lshr_b32 s35, s2, {3+LR}", f"s_lshl_b32 s35, s35, {17+LR}")
    def b_load(k, i): return f"buffer_load_dwordx4 {v(OB+16*(k%NB)+4*i,4)}, {v(VB+i)}, {SO}, s34 offen {OSC}"
    for k in range(NB - 1):
        A(*o_off(k))
        put(A, vm, [b_load(k, i) for i in range(4)], ("b", k))
    def asrc(k):
        if k < 12: return lambda nt: a(aslot(k) + 4*nt, 4)
        if k < 12 + NL: return lambda nt: v(OT + 20*(k & 1) + 4*nt, 4)
        return lambda nt: a(aslot((k - 12 - NL) % 12) + 4*nt, 4)
    refill = []
    for i in range(20 - NL):
        for nt in range(5): refill.append((i, nt))
    va = gate_ops(XNR, G)
    state = []
    cpoll = f"buffer_load_dword {v(t+9)}, {v(t+10)}, {SDB}, 0 offen sc1"
    for k in range(32):
        st = Stream()
        for i in range(4):
            for nt in range(5):
                c = v(oacc(i, nt), 4) if k else 0
                st.add(f"{MF} {v(oacc(i,nt),4)}, {asrc(k)(nt)}, {v(OB+16*(k%NB)+4*i,4)}, {c}")
        need = [("b", k)] + ([("a", k)] if k < 12 or k >= 12 + NL else [])
        A(*vm.wait(need))
        if 11 <= k < 11 + NL:
            st.sc[0] += vm.wait(["l"])
            for nt in range(5):
                r, o = lds_frag(5 * (k + 1 - 12) + nt)
                st.mem[1 + nt].append(f"ds_read_b128 {v(OT+20*((k+1)&1)+4*nt,4)}, {v(r)} offset:{o}")
        if k == 22: A("s_cmp_lt_u32 s75, 16", "s_cbranch_scc0 OC3", f"s_waitcnt vmcnt({len(vm.q) - ny})", *route_ops(G, VROW), "OC3:")
        ops = []
        def mem(g, x, tag): ops.append((g, x, tag))
        kb = k + NB - 1
        if kb < 32:
            for i, x in enumerate(o_off(kb)): st.sc[4 + i].append(x)
            for i in range(4): mem(6 + 2*i, b_load(kb, i), ("b", kb))
        n = 3 if k % 4 else 2
        g = 14
        while n and refill and (refill[0][0] if refill[0][0] < 12 else refill[0][0] + NL) < k:
            i, nt = refill.pop(0)
            st.sc[g - 1].append(f"s_mov_b32 s31, {(12+NL+i)*5120 + 1024*nt}")
            mem(g, f"buffer_load_dwordx4 {a(aslot(i % 12)+4*nt,4)}, {v(L16)}, {SW}, s31 offen {WSC}", ("a", 12 + NL + i)); g += 2; n -= 1
        span = 64 >> LR
        if "o" in TOUCH and (k + OLEAD) % span == 0 and k + OLEAD < 32:
            st.sc[2].append(f"s_mov_b32 s32, {(k + OLEAD) * 131072}")
            mem(3, f"buffer_load_dword {v(DUMMY)}, {v(VOT)}, {SO}, s32 offen sc1", "t")
        if k == 1: st.va[19] += ["s_barrier"] + w0_only("OCSIG", ["s_mov_b32 s72, 1", f"s_atomic_add s72, {s(PDBG,2)}, {DBG_C}"])
        if k == 15: st.va[19] += ["s_cmp_lt_u32 s75, 16", "s_cbranch_scc0 OC1", cpoll, "OC1:"]; nc = len(vm.q) + len(ops)
        if k == 20:
            for i in range(20): st.va[2 * (i // 2) + (1 if i >= 10 else 0)].append(f"v_mov_b32 {v(G+i)}, 0")
            st.va[19] += ["s_cmp_lt_u32 s75, 16", "s_cbranch_scc0 OC2", f"s_waitcnt vmcnt({len(vm.q) + len(ops) - nc})"] + spin("OCS", cpoll, v(t+9), "s72") + \
                         [f"buffer_load_dwordx4 {v(G+4*nt,4)}, {v(VY)}, {SWS}, 0 offen offset:{64*nt} sc1" for nt in range(5)] + ["OC2:"]
            st.va[18].append("s_movk_i32 s72, 256")
        if k == 22: st.sc[19].append("s_barrier")
        for g, x, tag in sorted(ops, key=lambda o: o[0]):
            st.sc[g] += vm.room(); st.mem[g].append(x); vm.issue(tag)
        if k == 20: ny = len(vm.q)
        if k >= 23:
            for g in range(1, 20):
                if any(x.startswith("buffer") for x in st.mem[g]): continue
                for _ in range(2):
                    if va:
                        x = va.pop(0); st.va[g].append(x)
                        if x.startswith(TRANS): break
        nx0 = regs_of(" ".join(asrc(k + 1)(nt) for nt in range(5))) if k < 31 else set()
        stamp(A, f"g{k}", stamps)
        state = st.emit(A, state, nxt0=nx0)
    assert not refill
    A(*va)
    stamp(A, "gend", stamps)
    for i in range(1, 4):
        for nt in range(5): A(f"ds_write_b128 {v(WX+i-1)}, {v(oacc(i,nt),4)} offset:{nt*1024}")
    A("s_waitcnt lgkmcnt(0)", "s_barrier")
    for i in range(1, 4):
        for nt in range(5): A(f"ds_read_b128 {v(oacc(i,nt),4)}, {v(RE)} offset:{(i-1)*5120 + nt*1024}")
    for i in range(1, 4):
        A(f"s_waitcnt lgkmcnt({5*(3-i)})")
        for j in range(10): A(f"v_pk_add_f32 {v(OACC+2*j,2)}, {v(OACC+2*j,2)}, {v(OACC+20*i+2*j,2)}")
    for i in range(10): A(*rb2(OACC+2*i))
    for i in range(10): A(f"v_pk_mul_f32 {v(OACC+2*i,2)}, {v(OACC+2*i,2)}, {v(G+2*i,2)}")
    for i in range(10): A(*rb2(OACC+2*i))
    for i in range(10):
        A(f"v_lshlrev_b32 {v(t)}, 16, {v(XR[i])}", f"v_and_b32 {v(t+1)}, s101, {v(XR[i])}",
          f"v_pk_add_f32 {v(t,2)}, {v(t,2)}, {v(OACC+2*i,2)}", f"v_cvt_pk_bf16_f32 {v(XR[i])}, {v(t)}, {v(t+1)}")
        if i & 1: A(f"buffer_store_dwordx2 {v(XR[i-1],2)}, {v(VXO)}, {SK}, 0 offen offset:{16*(i-1)} {os.environ.get('OUTPOL', '')}")

def rb2(x):
    return [f"v_cvt_pk_bf16_f32 {v(x)}, {v(x)}, {v(x+1)}", f"v_and_b32 {v(x+1)}, s101, {v(x)}", f"v_lshlrev_b32 {v(x)}, 16, {v(x)}"]

def route_ops(G, VROW):
    t = T0; o = []
    r = t + 11
    o += [f"v_mov_b32 {v(r)}, {s(RBITS)}", f"v_mul_f32 {v(r)}, s100, {v(r)}", f"v_exp_f32 {v(r)}, {v(r)}", f"v_cmp_eq_u32 vcc, {s(SEL)}, {v(VROW)}", f"v_add_f32 {v(r)}, 1.0, {v(r)}",
          f"v_rcp_f32 {v(r)}, {v(r)}", "s_nop 0", f"v_cvt_pk_bf16_f32 {v(r)}, {v(r)}, {v(r)}", f"v_lshlrev_b32 {v(r)}, 16, {v(r)}"]
    for ror in (8, 4, 2, 1):
        for i in range(20): o.append(f"v_add_f32_dpp {v(G+i)}, {v(G+i)}, {v(G+i)} row_ror:{ror} row_mask:0xf bank_mask:0xf")
    for i in range(10): o += rb2(G + 2*i)
    for i in range(20): o.append(f"v_mul_f32 {v(G+i)}, {v(G+i)}, {v(r)}")
    for i in range(10): o += rb2(G + 2*i)
    for i in range(20): o.append(f"v_cndmask_b32 {v(G+i)}, 0, {v(G+i)}, vcc")
    return o

def gate_ops(XNR, G):
    t = T0; o = []
    for i in range(10):
        o += [f"v_lshlrev_b32 {v(t)}, 16, {v(XNR[i])}", f"v_and_b32 {v(t+1)}, s101, {v(XNR[i])}",
              f"v_add_f32 {v(G+2*i)}, {v(G+2*i)}, {v(t)}", f"v_add_f32 {v(G+2*i+1)}, {v(G+2*i+1)}, {v(t+1)}"]
    for i in range(10): o += rb2(G + 2*i)
    for h in range(4):
        for i in range(5): o.append(f"v_mul_f32 {v(t+i)}, s100, {v(G+5*h+i)}")
        for i in range(5): o.append(f"v_exp_f32 {v(t+i)}, {v(t+i)}")
        for i in range(5): o.append(f"v_add_f32 {v(t+i)}, 1.0, {v(t+i)}")
        for i in range(5): o.append(f"v_rcp_f32 {v(t+i)}, {v(t+i)}")
        for i in range(5): o.append(f"v_mul_f32 {v(G+5*h+i)}, {v(G+5*h+i)}, {v(t+i)}")
    for i in range(10): o += rb2(G + 2*i)
    return o

def gen(stamps=False):
    A = Asm()
    t = T0
    A("s_cmp_ge_u32 s2, 256", "s_cbranch_scc1 END")
    stamp(A, "start", stamps)
    A("s_load_dwordx16 s[36:51], s[0:1], 0", "s_load_dwordx8 s[52:59], s[0:1], 64", "s_load_dwordx2 s[60:61], s[0:1], 96")
    A(f"v_lshrrev_b32 {v(t)}, 6, v0", f"v_lshrrev_b32 {v(ROW)}, 5, v0", f"v_readfirstlane_b32 s28, {v(t)}", f"v_and_b32 {v(PP)}, 31, v0")
    A("s_and_b32 s29, s2, 7", "s_lshl_b32 s29, s29, 2", "s_lshr_b32 s30, s2, 3", "s_and_b32 s31, s30, 3", "s_add_u32 s29, s29, s31", "s_lshr_b32 s63, s30, 2",
      "v_and_b32 v0, 63, v0", "s_lshl_b32 s30, s63, 4", "s_lshl_b32 s31, s28, 2", "s_add_u32 s30, s30, s31", "s_lshl_b32 s33, s28, 12", "s_lshl_b32 s75, s28, 13")
    vm = VM()
    A(f"v_lshrrev_b32 {v(t)}, 3, v0", f"v_and_b32 {v(t+1)}, 7, v0", f"v_lshrrev_b32 {v(t+2)}, 4, v0", "s_lshl_b32 s31, s30, 4", f"v_add_u32 {v(t)}, s31, {v(t)}",
      f"v_mul_u32_u24 {v(t)}, 1280, {v(t)}", f"v_xor_b32 {v(t+3)}, {v(t+1)}, {v(t+2)}", f"v_lshl_add_u32 {v(VX)}, {v(t+3)}, 4, {v(t)}",
      f"v_xor_b32 {v(t+3)}, 4, {v(t+3)}", f"v_lshl_add_u32 {v(VX+1)}, {v(t+3)}, 4, {v(t)}", f"v_add_u32 {v(VX+1)}, {8*1280-1024}, {v(VX+1)}")
    A(f"v_and_b32 {v(t+1)}, 15, v0", "s_lshl_b32 s31, s28, 4", f"v_add_u32 {v(t+4)}, s31, {v(t+2)}",
      f"v_lshlrev_b32 {v(t+3)}, 2, {v(t+2)}", f"v_xor_b32 {v(t+3)}, {v(t+3)}, {v(t+1)}", f"v_lshlrev_b32 {v(t+3)}, 4, {v(t+3)}", f"v_lshl_add_u32 {v(VW)}, {v(t+4)}, 13, {v(t+3)}")
    A("s_waitcnt lgkmcnt(0)")
    srd(A, 16, PX, 0, 2048 * 1280)
    A("s_lshl_b32 s31, s29, 8"); srd(A, 12, PWQ, "s31", 639 * 8192 + 256)
    stamp(A, "karg", stamps)
    def x_dma(kt):
        out = []
        for pr in range(4):
            out += [f"s_add_u32 m0, s75, {(XA, XB)[kt & 1] + 2048*pr}", f"s_mov_b32 s62, {kt*128 + 20480*pr}",
                    f"buffer_load_dwordx4 {v(VX)}, {SX}, s62 offen {XNT} lds", f"buffer_load_dwordx4 {v(VX+1)}, {SX}, s62 offen offset:1024 {XNT} lds"]
        return out
    def wq_dma(kt):
        out = [f"s_add_u32 m0, s33, {VBASE + wslot(kt)*16384}"]
        for i in range(4):
            out += [f"s_mov_b32 s32, {kt*524288 + i*31744}", f"buffer_load_dwordx4 {v(VW)}, {SW}, s32 offen offset:{1024*i} {NT} lds"]
        return out
    def event(e):
        if e == "": return []
        if e[0] == "w": return [(x, ("w", int(e[1]))) for x in wq_dma(int(e[1]))]
        if e[0] == "x": return [(x, ("x", int(e[1]))) for x in x_dma(int(e[1]))]
        if e == "L":
            return [(x, "lx") for x in ["s_lshl_b32 s31, s63, 8", "s_lshl_b32 s32, s29, 3", "s_add_u32 s31, s31, s32", f"v_add_u32 {v(ROW)}, s31, {v(ROW)}",
                    f"v_lshlrev_b32 {v(LWA)}, 3, {v(PP)}", f"v_mul_u32_u24 {v(LXA)}, 1280, {v(ROW)}", f"v_add_u32 {v(LXA)}, {v(LXA)}, {v(LWA)}"] +
                    [f"buffer_load_dwordx2 {v(LX+2*i,2)}, {v(LXA)}, {SX}, 0 offen offset:{256*i}" for i in range(5)]]
        if e == "C":
            return [(x, "code") for x in ["s_getpc_b64 s[72:73]", "CODE0:", "s_lshr_b32 s31, s2, 3", "s_and_b32 s31, s31, 7", "s_lshl_b32 s32, s28, 7", "s_add_u32 s31, s31, s32",
                    f"v_and_b32 {v(t+8)}, 15, v0", f"v_lshl_add_u32 {v(t+8)}, {v(t+8)}, 3, s31", f"v_lshlrev_b32 {v(t+8)}, 7, {v(t+8)}",
                    f"v_min_u32 {v(t+8)}, (CODE1 - CODE0), {v(t+8)}", f"v_mov_b32 {v(t+9)}, 0", f"v_lshl_add_u64 {v(t+8,2)}, {v(t+8,2)}, 0, s[72:73]",
                    f"global_load_dword {v(DUMMY)}, {v(t+8,2)}, off"]]
    for e in PRE:
        for x, tag in event(e): put(A, vm, [x], tag)
    g_, i_, c_, r_ = t + 2, t + 1, t + 5, t + 6
    A(f"v_and_b32 {v(c_)}, 3, v0", f"v_bfe_u32 {v(r_)}, v0, 2, 2")
    for k in range(4): A(f"s_add_u32 s31, s28, {k}", "s_and_b32 s31, s31, 3", f"s_lshl_b32 {s(76+k)}, s31, 2")
    A(f"v_lshl_add_u32 {v(t+8)}, {v(g_)}, 3, {v(r_)}", f"v_lshlrev_b32 {v(t+8)}, 8, {v(t+8)}", f"v_lshl_add_u32 {v(t+8)}, {v(c_)}, 4, {v(t+8)}",
      f"v_add_u32 {v(t+8)}, {VBASE}, {v(t+8)}", f"v_lshlrev_b32 {v(t+7)}, 2, {v(r_)}")
    for k in range(4): A(f"v_xor_b32 {v(t+3)}, {s(76+k)}, {v(t+7)}", f"v_lshl_add_u32 {v(RW+k)}, {v(t+3)}, 4, {v(t+8)}")
    A(f"v_lshrrev_b32 {v(t+3)}, 1, {v(i_)}", f"v_xor_b32 {v(t+3)}, {v(t+3)}, {v(g_)}", f"v_lshlrev_b32 {v(t+8)}, 7, {v(i_)}", f"v_add_u32 {v(t+8)}, s75, {v(t+8)}",
      f"v_lshl_add_u32 {v(t+8)}, {v(t+3)}, 4, {v(t+8)}", f"v_add_u32 {v(RX)}, {XA}, {v(t+8)}", f"v_add_u32 {v(RX+2)}, {XB}, {v(t+8)}",
      f"v_xor_b32 {v(RX+1)}, 64, {v(RX)}", f"v_xor_b32 {v(RX+3)}, 64, {v(RX+2)}")
    for i in range(4): A(f"v_mov_b32 {v(ONES+i)}, 0x3f803f80")
    srd(A, 68, PWR, 0, 1280); srd(A, 24, PWS, 0, WSLO); srd(A, 64, PDBG, 0, 256)
    A("s_mov_b32 s101, 0xffff0000", "s_mov_b32 s100, 0x3acccccd")
    stamp(A, "setup", stamps)
    for e in MID:
        for x, tag in event(e): put(A, vm, [x], tag)
    B = Asm()
    B("s_lshl_b32 s31, s29, 19"); srd(B, 4, PK, "s31", "0x90000"); srd(B, 8, PV, "s31", "0x90000")
    B("s_mov_b64 s[38:39], s[4:5]", "s_mov_b64 s[40:41], s[8:9]", "s_mov_b64 s[42:43], s[4:5]", "s_mov_b64 s[36:37], s[8:9]", "s_movk_i32 s48, 4096")
    sc1 = B.L
    B = Asm()
    B("s_lshl_b32 s31, s30, 10", "s_lshl_b32 s73, s29, 19", "s_add_u32 s31, s31, s73", f"s_add_u32 s31, s31, {OF_OFF}")
    srd(B, 20, PWS, "s31", 3 * 131072 + 4096)
    sc2 = B.L
    sc3 = ["s_lshr_b32 s31, s29, 3", "s_add_u32 s74, s30, s31", "s_lshl_b32 s74, s74, 7", "s_and_b32 s31, s29, 7", "s_lshl_b32 s31, s31, 2", "s_add_u32 s74, s74, s31",
           f"s_add_u32 s74, s74, {FLAG_OFF}"]
    sc4 = ["s_lshl_b32 s31, s2, 2", "s_add_u32 s31, s31, s28", "s_lshl_b32 s31, s31, 8", "s_cmp_lt_u32 s31, 40960", f"s_mov_b32 s47, {WSLO}", f"s_cselect_b32 s47, {Y_OFF}, s47",
           "s_add_u32 s47, s47, s31"]
    B = Asm()
    B(f"v_lshlrev_b32 {v(L16)}, 4, v0", f"v_mov_b32 {v(VXO)}, 0")
    B(f"v_lshl_or_b32 {v(t+3)}, s28, 2, {v(g_)}", f"v_xor_b32 {v(t+3)}, {v(t+3)}, {v(i_)}", f"v_lshlrev_b32 {v(t+3)}, 4, {v(t+3)}", f"v_lshl_add_u32 {v(VK)}, {v(t+4)}, 8, {v(t+3)}")
    B(f"v_lshl_or_b32 {v(t+3)}, s28, 2, {v(g_)}", f"v_and_b32 {v(t+3)}, 7, {v(t+3)}", f"v_lshlrev_b32 {v(t+3)}, 1, {v(t+3)}", f"v_xor_b32 {v(t+3)}, {v(t+3)}, {v(i_)}",
      f"v_lshlrev_b32 {v(t+3)}, 4, {v(t+3)}", f"v_lshl_add_u32 {v(VV)}, {v(t+4)}, 8, {v(t+3)}")
    B(f"v_lshlrev_b32 {v(t+4)}, 8, {v(c_)}", f"v_lshl_add_u32 {v(t+4)}, {v(r_)}, 12, {v(t+4)}")
    for k in range(4): B(f"v_or_b32 {v(t+3)}, {s(76+k)}, {v(g_)}", f"v_xor_b32 {v(t+3)}, {v(t+3)}, {v(i_)}", f"v_lshl_add_u32 {v(RK+k)}, {v(t+3)}, 4, {v(t+4)}")
    B(f"v_lshl_add_u32 {v(t+4)}, {v(g_)}, 4, {v(r_)}", f"v_lshlrev_b32 {v(t+4)}, 8, {v(t+4)}", f"v_lshl_add_u32 {v(t+4)}, {v(c_)}, 3, {v(t+4)}",
      f"v_add_u32 {v(t+4)}, {VBASE}, {v(t+4)}", f"v_and_b32 {v(t+7)}, 1, {v(g_)}", f"v_lshl_or_b32 {v(t+7)}, {v(t+7)}, 2, {v(r_)}")
    for k in range(8): B(f"v_xor_b32 {v(t+3)}, {k}, {v(t+7)}", f"v_lshl_add_u32 {v(RV+k)}, {v(t+3)}, 5, {v(t+4)}")
    rload = [f"buffer_load_dwordx2 {v(LW+2*i,2)}, {v(LWA)}, {ST}, 0 offen offset:{256*i}" for i in range(5)]
    rest = ln_rest()
    k = rest.index(f"v_lshlrev_b32 {v(LS+6)}, 16, {v(LW)}")
    lnr = [(x, "l1") for x in ln_stats()] + [(x, "lw") for x in rload] + [(sc1, None), (sc3, None), (sc4, None)] + [(x, None) for x in B.L] + \
          [(x, "l2") for x in rest[:k]] + [("@lw", None)] + [(x, "l2") for x in rest[k:]] + [(sc2, None)] + \
          [(f"v_accvgpr_write_b32 {a(32 + i)}, 0", None) for i in range(96)]
    def w_read(G, sx, p):
        kt, T = divmod(G, 8)
        return f"ds_read_b64_tr_b16 {a(8*(G%4)+4*sx+2*p,2)}, {v(RW+T//2)} offset:{wslot(kt)*16384 + sx*8192 + p*1024 + 8*(T&1)}"
    def x_read(kt, q, sx): return f"ds_read_b128 {a(xb(kt,q,sx),4)}, {v(RX+2*(kt&1)+sx)} offset:{2048*q}"
    A(*vm.wait([("w", 0), ("x", 0)])); A("s_barrier")
    stamp(A, "q0", stamps)
    for sx in range(2):
        for p in range(2): A(w_read(0, sx, p))
    for q in range(4):
        for sx in range(2): A(x_read(0, q, sx))
    for sx in range(2):
        for p in range(2): A(w_read(1, sx, p))
    A("s_waitcnt lgkmcnt(4)")
    state = [(I(w_read(1, sx, p)).w, -8) for sx in range(2) for p in range(2)]
    apoll = f"buffer_load_dword {v(t+12)}, {v(t+13)}, {SDB}, 0 offen sc1"
    for kt in range(10):
        st = Stream(); pos = {}
        for T in range(8):
            af = 8 * ((kt * 8 + T) % 4)
            for q in range(4):
                for sx in range(2):
                    c = 0 if (kt == 0 and sx == 0) else v(acc(q, T), 4)
                    pos[T, 2*q + sx] = st.add(f"{MF} {v(acc(q,T),4)}, {a(af+4*sx,4)}, {a(xb(kt,q,sx),4)}, {c}")
            if T < 2:
                for sx in range(2):
                    c = 0 if (kt == 0 and sx == 0) else v(CSA + 4*T, 4)
                    pos[T, 8 + sx] = st.add(f"{MF} {v(CSA+4*T,4)}, {a(af+4*sx,4)}, {v(ONES,4)}, {c}")
        last = len(st.mf) - 1
        for T in range(8):
            G = kt * 8 + T + 2
            if G < 80:
                for k in range(4): st.mem[pos[T, 1 + k]].append(w_read(G, k >> 1, k & 1))
        def place(ops, slots, tag):
            for (m0, so, x), g in zip(ops, slots):
                assert not {g - 1, g, g + 1} & set(st.tagq), (kt, g)
                st.sc[max(g - 1, 0)].append(m0)
                st.sc[g].append(so if so else "s_nop 0")
                st.mem[g].append(x); st.tagq.setdefault(g, []).append(tag)
        def x_ops(k):
            return [(f"s_add_u32 m0, s75, {(XA, XB)[k & 1] + 2048*(i >> 1)}", f"s_mov_b32 s62, {k*128 + 20480*(i >> 1)}",
                     f"buffer_load_dwordx4 {v(VX + (i & 1))}, {SX}, s62 offen offset:{1024*(i & 1)} {XNT} lds") for i in range(8)]
        def w_ops(k):
            return [(f"s_add_u32 m0, s33, {VBASE + wslot(k)*16384}", f"s_mov_b32 s32, {k*524288 + i*31744}",
                     f"buffer_load_dwordx4 {v(VW)}, {SW}, s32 offen offset:{1024*i} {NT} lds") for i in range(4)]
        def v_ops(j): return [(v_m0(j), f"s_mov_b32 s35, {16384*j}", v_dma(i)) for i in range(4)]
        def k_ops(j): return [(k_m0(j), f"s_mov_b32 s34, {16384*j}", k_dma(i)) for i in range(4)]
        m = kt + 1
        def ring(mm):
            return (w_ops(mm + 2), ("w", mm + 2)) if mm <= 7 else (v_ops(mm - 8), ("v", mm - 8))
        if kt == 0:
            place(x_ops(2), [0, 2, 4, 10, 18, 20, 22, 25], ("x", 2))
            place(w_ops(2), [7, 13, 15, 30], ("w", 2))
        else:
            ops, tag = ring(kt); place(ops[2:], [0, 10], tag)
        kk = {6: 0, 7: 1, 9: 2}.get(kt)
        if kk is not None: place(k_ops(kk), [18, 20, 22, 25], ("k", kk))
        if kt < 9:
            st.pre[pos[0, 4]].append([("x", kt + 1)] + (["lx"] if kt == 0 else []))
            sx_ = [pos[0, k] for k in range(5, 10)] + [pos[1, k] for k in range(5, 8)]
            xr = set()
            for k in range(8):
                x = x_read(kt + 1, k >> 1, k & 1); st.mem[sx_[k]].append(x); xr |= I(x).w
            st.force[25] = xr
        if kt + 3 < 10: place(x_ops(kt + 3), [27, 33, 36, 41, 44, 49, 57, 62], ("x", kt + 3))
        need = ([("w", m)] if m < 10 else []) + ([("k", 0)] if m == 9 else []) + (["l1"] if m == ASIG else []) + (["l2"] if m == 10 else [])
        gb = pos[5, 7]
        ops, tag = ring(m)
        place(ops[:2] if m < 10 else ops, [53, 60] if m < 10 else [53, 55, 57, 59], tag)
        if m == 10:
            place(k_ops(3), [61, 63, 65, 67], ("k", 3))
            st.va[last] += ["s_mov_b32 s34, 0x10000", "s_mov_b32 s35, 0xc000"]
        for g in range(pos[0, 5] if kt == 0 else 0, last + 1):
            if any(x.startswith("buffer") for x in st.mem[g]): continue
            n = len(st.mem[g])
            while lnr and n < 2:
                x, tag = lnr.pop(0)
                if isinstance(x, list): st.va[g] += x; break
                if x == "@lw": st.va[g].append(["lw"]); continue
                st.va[g].append(x); n += 0 if x.startswith("s_nop") else 1
                if x.startswith("buffer"): st.tag[x] = tag; break
        if kt == 5: assert not any(x in B.L for x, tag in lnr if isinstance(x, str))
        if m == 8: st.va[gb] += w0_only("APOLLW", ["@poll"] + spin("APOLL", apoll, v(t+12), "32"))
        st.va[gb] += stampl(f"q{kt}b", stamps)
        if need: st.va[gb].append(need)
        st.va[gb] += stampl(f"q{kt}c", stamps)
        st.va[gb].append("s_barrier")
        if m == ASIG:
            assert not any(tag == "l1" for x, tag in lnr)
            st.va[gb] += ["s_lshr_b32 s72, s63, 2", "s_mul_i32 s72, s72, 112", "s_lshl_b32 s73, s63, 2", "s_add_u32 s72, s72, s73", f"v_mov_b32 {v(t+13)}, s72"] + \
                         w0_only("ASIGW", signal("s72"))
        if m == 7: st.va[gb] += w0_only("APOL0W", [apoll, "@mark"])
        if m == 10:
            assert not lnr
            st.va[gb] += w0_only("BSIGW", ["s_and_b32 s72, s2, 1", "s_lshl_b32 s72, s72, 7", f"s_add_u32 s72, s72, {DBG_B}"] + signal("s72"))
        if m == 8:
            st.va[54] += [f"v_and_b32 {v(t+12)}, 15, v0", f"v_lshlrev_b32 {v(t+12)}, 3, {v(t+12)}"]
            st.sc[55] += ["s_lshl_b32 s72, s30, 7", f"s_add_u32 s72, s72, {STAT_OFF}"]
            for q, g in enumerate((57, 59, 65, 67)):
                x = f"buffer_load_dwordx2 {v(STT+2*q,2)}, {v(t+12)}, {SWS}, s72 offen offset:{128*q} sc1"
                st.mem[g].append(x); st.tag[x] = "st"
        if kt == 9:
            sl = [pos[T, k] for T in range(6) for k in (5, 6, 7)]
            for k in range(16): st.mem[sl[k]].append(k_read(0, k >> 2, k & 3))
        st.resolve(vm)
        if kt: stamp(A, f"q{kt}", stamps)
        state = st.emit(A, state, nxt0=regs_of(a(0, 4)) | regs_of(a(xb(kt + 1, 0, 0), 4)))
    stamp(A, "q10", stamps)
    A(f"v_lshrrev_b32 {v(t+12)}, 4, v0", f"v_lshlrev_b32 {v(t+12)}, 4, {v(t+12)}", "s_lshl_b32 s72, s28, 7", f"s_add_u32 s72, s72, {FCS}",
      f"v_add_u32 {v(t+13)}, s72, {v(t+12)}", f"v_mov_b32 {v(t+14)}, {FVOTE}", f"v_mov_b32 {v(t+15)}, 0",
      f"ds_write_b128 {v(t+13)}, {v(CSA,4)}", f"ds_write_b128 {v(t+13)}, {v(CSA+4,4)} offset:64", f"ds_write_b32 {v(t+14)}, {v(t+15)}")
    for k in range(4): A(f"s_lshl_b32 s72, {s(76+k)}, 5", f"s_add_u32 s72, s72, {FCS}", f"v_add_u32 {v(ONES+k)}, s72, {v(t+12)}")
    A(*vm.wait(["st"])); A("s_waitcnt lgkmcnt(0)", "s_barrier")
    def cs_read(T): return f"ds_read_b128 {v(CSR+4*(T%3),4)}, {v(ONES+T//2)} offset:{64*(T&1)}"
    A(cs_read(0), cs_read(1))
    for T in range(8):
        if T + 2 < 8: A(cs_read(T + 2))
        A(f"s_waitcnt lgkmcnt({min(2, 7-T)})")
        c = CSR + 4 * (T % 3)
        for q in range(4):
            for h in range(2): A(f"v_pk_mul_f32 {v(t+12+2*h,2)}, {v(c+2*h,2)}, {v(STT+2*q,2)} op_sel:[0,1] op_sel_hi:[1,1]")
            for h in range(2): A(f"v_pk_fma_f32 {v(acc(q,T)+2*h,2)}, {v(acc(q,T)+2*h,2)}, {v(STT+2*q,2)}, {v(t+12+2*h,2)} op_sel_hi:[1,0,1]")
        for q in range(4):
            for h in range(2): A(f"v_cvt_pk_bf16_f32 {v(Q+16*q+2*T+h)}, {v(acc(q,T)+2*h)}, {v(acc(q,T)+2*h+1)}")
    TMP = J
    for q in range(4):
        for tt in range(4):
            A(f"{MF} {v(TMP+4*q,4)}, {a(kf(0,tt),4)}, {v(qf(q,tt),4)}, {v(TMP+4*q,4) if tt else 0}")
            for i in range(2): A(f"v_accvgpr_write_b32 {a(8*q + 2*tt + i)}, 0")
    for i in range(8): A(f"v_mov_b32 {v(L+i)}, 0")
    for i in range(8): A(f"v_mov_b32 {v(P+8+i)}, 0")
    for q in range(4):
        A(f"v_max3_f32 {v(TMP+4*q)}, {v(TMP+4*q)}, {v(TMP+4*q+1)}, {v(TMP+4*q+2)}", f"v_max_f32 {v(TMP+4*q)}, {v(TMP+4*q)}, {v(TMP+4*q+3)}")
    negm_from_max(A, [TMP + 4*q for q in range(4)])
    A("s_movk_i32 s49, 0xfc", "s_mov_b32 s63, 0")
    A("ATT:", "s_nop 1")
    for kt in range(4):
        for tt in range(4):
            A(f"{MF} {v(S+4*kt,4)}, {a(kf(kt,tt),4)}, {v(qf(0,tt),4)}, {v(S+4*kt,4) if tt else v(NM,4)}")
    A("s_mov_b32 s62, 8")
    stamp(A, "att", stamps)
    if stamps: A("s_memtime s[96:97]")
    st = main_loop()
    state = st.emit(None, [])
    A(".p2align 5", "LOOP:")
    b0 = len(A.L)
    assert state == st.emit(A, state)
    A("s_sub_u32 s62, s62, 1", "s_cmp_eq_u32 s62, 0", "s_cbranch_scc1 LOOPX", "s_bitcmp1_b32 s49, s62", "s_cbranch_scc0 LOOP", "s_branch SIDE", "LOOPX:")
    body = A.L[b0:]
    stamp(A, "loopx", stamps)
    if stamps: A("s_memtime s[98:99]")
    vm = VM(24)
    tail = []
    for dt in range(8):
        for h in range(2): tail.append(f"{MF} {a(of(dt,3),4)}, {a(vf(h,dt),4)}, {v(P+8+4*h,4)}, {a(of(dt,3),4)}")
    ls = [L + 2*q for q in range(4)]
    B = Asm()
    for q in range(4): B(f"v_add_f32 {v(ls[q])}, {v(ls[q])}, {v(ls[q]+1)}")
    xgroup_multi(B, ls, [t + i for i in range(4)], "v_add_f32")
    B(f"v_add_f32 {v(t+1)}, {v(ls[0])}, {v(ls[1])}", f"v_add_f32 {v(t+2)}, {v(ls[2])}, {v(ls[3])}", f"v_add_f32 {v(t+1)}, {v(t+1)}, {v(t+2)}",
      f"s_mov_b32 s72, {LMAX}", f"v_cmp_nge_f32 vcc, s72, {v(t+1)}", f"v_mov_b32 {v(t+2)}, {FVOTE}", f"v_mov_b32 {v(t+3)}, 1")
    for q in range(4): B(f"v_rcp_f32 {v(ls[q])}, {v(ls[q])}")
    for i, m in enumerate(tail):
        A(m); A(*B.L[3*i:3*i+3])
    assert len(B.L) <= 48
    A("s_and_saveexec_b64 s[72:73], vcc", f"ds_write_b32 {v(t+2)}, {v(t+3)}", "s_mov_b64 exec, s[72:73]")
    early = [(x, ("a", k)) for k in range(6, 6 + EARLY) for x in a_loads(k, k)]
    for e in range(4):
        A(f"s_mov_b32 s72, {e*131072}")
        for q in range(4):
            w = S + 12 * (q & 1)
            for b in range(2):
                for r in range(4): A(f"v_accvgpr_read_b32 {v(w+4*b+r)}, {a(of(2*e+b,q)+r)}")
            for i in range(4): A(f"v_pk_mul_f32 {v(w+2*i,2)}, {v(w+2*i,2)}, {v(ls[q],2)} op_sel_hi:[1,0]")
            for i in range(4): A(f"v_cvt_pk_bf16_f32 {v(w+8+i)}, {v(w+2*i)}, {v(w+2*i+1)}")
            put(A, vm, [f"buffer_store_dwordx4 {v(w+8,4)}, {v(L16)}, {SO}, s72 offen offset:{1024*q} sc1"], "o")
            while early:
                x, tag = early.pop(0); put(A, vm, [x], tag)
                if x.startswith("buffer"): break
        if e == 0: A("s_waitcnt lgkmcnt(0)", "s_barrier", f"ds_read_b32 {v(t+3)}, {v(t+2)}")
    stamp(A, "ost", stamps)
    A("s_waitcnt lgkmcnt(0)", f"v_readfirstlane_b32 s72, {v(t+3)}", f"v_mov_b32 {v(t+8)}, 1", f"v_mov_b32 {v(t+9)}, s74",
      "s_andn2_b32 s72, s72, s63", "s_cmp_lg_u32 s72, 0", "s_cbranch_scc1 REDO")
    stamp(A, "vote", stamps)
    assert not early
    weave(A, vm, [(a_loads(k, k), ("a", k)) for k in range(6)], ffn_part1(), 2)
    A("s_barrier")
    A(*vm.wait(["o"]))
    stamp(A, "drain", stamps)
    A("s_mov_b64 exec, 1"); put(A, vm, [f"buffer_store_dword {v(t+8)}, {v(t+9)}, {SWS}, 0 offen sc1"], "f"); A("s_mov_b64 exec, -1")
    oproj(A, vm, stamps)
    if stamps:
        A("s_memrealtime s[62:63]", "s_waitcnt lgkmcnt(0)", "s_sub_u32 s96, s98, s96")
        srd(A, 68, PWS, STAMP_OFF, 0x10000)
        A("s_lshl_b32 s72, s2, 2", "s_add_u32 s72, s72, s28", "s_lshl_b32 s72, s72, 6", f"v_mov_b32 {v(t)}, s72", "s_mov_b64 exec, 1")
        for i, r in enumerate([80 + 2*k for k in range(8)] + [62, 96]):
            A(f"v_mov_b32 {v(t+1)}, {s(r)}", f"buffer_store_dword {v(t+1)}, {v(t)}, {ST}, 0 offen offset:{4*i}", "s_nop 1")
    A("END:", "s_endpgm")
    B = Asm(); side_jobs(B)
    cur = None
    for x in B.L:
        if x in ("s_branch LOOP", "s_branch CHK") and cur: stamp(A, cur + "x", stamps)
        A(x)
        if x.endswith(":") and x[:-1] in [f"JOB{i}" for i in range(7)]:
            cur = x[:-1]; stamp(A, cur, stamps)
    A("REDO:", "s_mov_b32 s63, 1", "s_mov_b32 s49, 0", "s_mov_b32 s34, 0", "s_mov_b64 s[4:5], s[38:39]", "s_mov_b64 s[8:9], s[40:41]", "s_waitcnt vmcnt(0)")
    TMP = J + 20
    M = TMP + 16
    for q in range(4): A(f"v_mov_b32 {v(M+q)}, 0xff800000")
    A("MAXL:", "s_barrier", k_m0(0), "s_nop 0")
    for i in range(4): A(k_dma(i))
    A("s_add_u32 s34, s34, 16384", "s_waitcnt vmcnt(0)", "s_barrier")
    for kt in range(4):
        for tt in range(4): A(k_read(0, kt, tt))
        if kt == 1: A("s_waitcnt lgkmcnt(0)")
    A("s_waitcnt lgkmcnt(0)")
    for q in range(4):
        for kt in range(4):
            for tt in range(4): A(f"{MF} {v(TMP+4*kt,4)}, {a(kf(kt,tt),4)}, {v(qf(q,tt),4)}, {v(TMP+4*kt,4) if tt else 0}")
        A("s_nop 7")
        for i in range(8): A(f"v_max3_f32 {v(M+q)}, {v(M+q)}, {v(TMP+2*i)}, {v(TMP+2*i+1)}")
    A("s_cmp_lt_u32 s34, 0x80000", "s_cbranch_scc1 MAXL")
    negm_from_max(A, [M + q for q in range(4)])
    for i in range(128): A(f"v_accvgpr_write_b32 {a(i)}, 0")
    for i in range(8): A(f"v_mov_b32 {v(L+i)}, 0")
    for i in range(8): A(f"v_mov_b32 {v(P+8+i)}, 0")
    A("s_mov_b32 s34, 0", "s_mov_b32 s35, 0", "s_barrier")
    for j in range(4):
        if j > 0:
            A(v_m0(j - 1), "s_nop 0")
            for i in range(4): A(v_dma(i))
            A("s_add_u32 s35, s35, 16384")
        A(k_m0(j), "s_nop 0")
        for i in range(4): A(k_dma(i))
        A("s_add_u32 s34, s34, 16384")
    A("s_waitcnt vmcnt(24)", "s_barrier")
    for kt in range(4):
        for tt in range(4): A(k_read(0, kt, tt))
        if kt == 1: A("s_waitcnt lgkmcnt(0)")
    A("s_waitcnt lgkmcnt(0)", "CODE1:", "s_branch ATT")
    return A, body
```

```python
import os
from core import *
from layout import *
from common import argmax_keys, xgroup_multi
import sched

MF = "v_mfma_f32_16x16x32_bf16"
NAME = "recurrent_scan__mha_block_cached__moe_arch_mod__prompt_kernel"
PX, PK, PV, PWQ, PWO, PWR, PG, PU, PD, POUT, PDBG, PWS = 36, 38, 40, 42, 44, 48, 50, 52, 54, 56, 58, 60
SK, SV, SW, SX, SO, SWS, SDB, ST = "s[4:7]", "s[8:11]", "s[12:15]", "s[16:19]", "s[20:23]", "s[24:27]", "s[64:67]", "s[68:71]"
VK, VV, VW = 1, 2, 3
RK, RV, RW = 4, 8, 16
VX, RX = 20, 22
ONES = 26
L16 = 30
Q, ACC = 32, 96
S, P, NM, L = 96, 128, 144, 160
J = 168
T0 = 240
CSA, CSR, STT = 224, 232, 244
KF, VF = 128, 192
VBASE, SPARE = 65536, 131072
XA, XB = SPARE, 32768
FEX, FH, FVOTE, FCS = SPARE + 7680, SPARE + 8192 + 7680, SPARE + 16384 + 7680, SPARE + 24576 + 7680
LDS = 163840
NFFN, NPACK = 216, 256
SEL, RBITS = 46, 47
ASIG = int(os.environ.get('ASIG', 4))
QS = int(os.environ.get('QS', 1))
QSCALE = 0x3e0293ee
LMAX = 0x5d800000
NLOG2E = 0xbfb8aa3b
DBG_F, DBG_C, DBG_B = 32, 36, 40
LR = int(os.environ.get("MAPLR", 3))
DUMMY = 239
VT = 31
STO = "s[36:39]"
TOUCH = os.environ.get("TOUCH", "a")
PRE = os.environ.get("PRE", "x0,w0,x1,L,C").split(",")
MID = os.environ.get("MID", "w1").split(",")
TPOL = os.environ.get("TPOL", "")

def qf(q, t): return Q + 16 * q + 4 * t
def acc(q, T): return ACC + 32 * q + 4 * T
def kf(kt, t): return KF + 16 * kt + 4 * t
def vf(h, dt): return VF + 32 * h + 4 * dt
def of(dt, q): return 16 * dt + 4 * q
def xb(kt, q, sx): return 192 + 32 * (kt & 1) + 8 * q + 4 * sx
def wslot(kt): return (kt + 2) % 4
KVPOL = os.environ.get("KVPOL", "sc1")
EXP = os.environ.get("EXP", "")
NT = os.environ.get("NT", "")
XNT = os.environ.get("XNT", "")
WSC = os.environ.get("WSC", "sc1")
OSC = os.environ.get("OSC", "sc1")
def k_read(slot, kt, t): return f"ds_read_b128 {a(kf(kt,t),4)}, {v(RK+t)} offset:{slot*16384 + kt*1024}"
def v_read(slot, h, dt, p): return f"ds_read_b64_tr_b16 {a(vf(h,dt)+2*p,2)}, {v(RV+dt)} offset:{slot*16384 + (2*h+p)*1024}"
def k_dma(i): return f"buffer_load_dwordx4 {v(VK)}, {SK}, s34 offen offset:{1024*i} {KVPOL} lds"
def v_dma(i): return f"buffer_load_dwordx4 {v(VV)}, {SV}, s35 offen offset:{1024*i} {KVPOL} lds"
def kv_touch(): return f"buffer_load_dword {v(DUMMY)}, {v(VT)}, {STO}, 0 offen {TPOL}"
def k_m0(slot): return f"s_add_u32 m0, s33, {slot*16384}"
def v_m0(slot): return f"s_add_u32 m0, s33, {VBASE + slot*16384}"

class VM:
    def __init__(self, older=0):
        self.q = [None] * older; self.done = 0
    def issue(self, tag): self.q.append(tag)
    def n_after(self, tags):
        return len(self.q) - 1 - max(i for i, t in enumerate(self.q) if t in tags)
    def wait(self, tags):
        n = self.n_after(tags)
        if len(self.q) - self.done <= n: return []
        self.done = len(self.q) - n
        return [f"s_waitcnt vmcnt({n})"]
    def room(self):
        if len(self.q) - self.done < 62: return []
        self.done = len(self.q) - 56
        return ["s_waitcnt vmcnt(56)"]

class Stream:
    def __init__(self):
        self.mf = []; self.sc = []; self.mem = []; self.va = []; self.force = {}
        self.pre = []; self.tag = {}; self.tagq = {}
    def add(self, m):
        self.mf.append(m); self.sc.append([]); self.mem.append([]); self.va.append([]); self.pre.append([])
        return len(self.mf) - 1
    def resolve(self, vm):
        for g in range(len(self.mf)):
            for need in self.pre[g]: self.sc[g] = vm.wait(need) + self.sc[g]
            tq = list(self.tagq.get(g, []))
            for x in self.mem[g]:
                if x.startswith("buffer"): vm.issue(self.tag[x] if x in self.tag else tq.pop(0))
            out = []
            for x in self.va[g]:
                if isinstance(x, list): out += vm.wait(x)
                elif x == "@mark": vm.mark = len(vm.q)
                elif x == "@poll": out.append(f"s_waitcnt vmcnt({len(vm.q) - vm.mark})")
                else:
                    out.append(x)
                    if x in self.tag: vm.issue(self.tag[x])
            self.va[g] = out
    def emit(self, A, state=None, lag=6, nxt0=None):
        pend = list(state) if state else []
        n = len(self.mf); out = []
        for i in range(n):
            out.append(self.mf[i])
            pre = list(self.sc[i])
            nxt = I(self.mf[i + 1]).ab if i + 1 < n else (I(self.mf[0]).ab if nxt0 is None else nxt0)
            nxt = nxt | self.force.get(i, set())
            hit = [k for k, (rg, t) in enumerate(pend) if rg & nxt]
            if hit:
                k = max(hit)
                while k + 1 < len(pend) and i - pend[k + 1][1] >= lag: k += 1
                left = len(pend) - 1 - k
                assert left <= 15
                pre.insert(0, f"s_waitcnt lgkmcnt({left})")
                pend = pend[k + 1:]
            out += pre
            for m in self.mem[i]:
                out.append(m)
                if m.startswith("ds_read"): pend.append((I(m).w, i))
            out += self.va[i]
        if A is not None: A(*out)
        return [(rg, t - n) for rg, t in pend]

def stamp(A, k, on):
    A(*stampl(k, on))

def stampl(k, on):
    return [f"{'s_memtime' if os.environ.get('CYC') else 's_memrealtime'} {s(80+2*on.index(k),2)}"] if on and k in on else []

def allred32(A, x, t, op):
    for r in (8, 4, 2, 1):
        A("s_nop 1", f"{op}_dpp {v(x)}, {v(x)}, {v(x)} row_ror:{r} row_mask:0xf bank_mask:0xf")
    A(f"v_mov_b32 {v(t)}, {v(x)}", "s_nop 1", f"v_permlane16_swap_b32 {v(x)}, {v(t)}", "s_nop 1", f"{op} {v(x)}, {v(x)}, {v(t)}")

def rbf(A, x):
    A(f"v_cvt_pk_bf16_f32 {v(x)}, {v(x)}, {v(x)}", f"v_lshlrev_b32 {v(x)}, 16, {v(x)}")

def w0_only(label, lines):
    return ["s_cmp_lg_u32 s28, 0", f"s_cbranch_scc1 {label}"] + lines + [f"{label}:"]

def signal(off):
    return ["s_mov_b64 exec, 1", f"v_mov_b32 {v(T0+14)}, 1", f"v_mov_b32 {v(T0+15)}, {off}",
            f"buffer_atomic_add {v(T0+14)}, {v(T0+15)}, {SDB}, 0 offen sc1", "s_mov_b64 exec, -1"]

def spin(label, reload_, val, expect, mask=None):
    m = [f"s_and_b64 vcc, vcc, {mask}"] if mask else []
    return [f"s_mov_b32 s32, {os.environ.get('SPINCAP', '0x100000')}", f"{label}:", f"v_cmp_gt_u32 vcc, {expect}, {val}", "s_sub_u32 s32, s32, 1", f"s_cbranch_scc1 {label}_OK"] + m + \
           [f"s_cbranch_vccz {label}_OK", "s_sleep 1", reload_, "s_waitcnt vmcnt(0)", f"s_branch {label}", f"{label}_OK:"]

ROW, PP, LXA, LWA, LSA = 32, 33, 34, 35, 36
LX, LW, LF, LS, LD = 40, 50, 60, 80, 90

def ln_unpack(d, x):
    o = []
    for i in range(10): o += [f"v_lshlrev_b32 {v(d+2*i)}, 16, {v(x+i)}", f"v_and_b32 {v(d+2*i+1)}, s101, {v(x+i)}"]
    return o

def ln_stats():
    t = 37
    B = Asm()
    B(*ln_unpack(LF, LX))
    for i in range(10): B(f"v_add_f32 {v(LS+i)}, {v(LF+2*i)}, {v(LF+2*i+1)}")
    for i in range(5): B(f"v_add_f32 {v(LS+i)}, {v(LS+i)}, {v(LS+5+i)}")
    B(f"v_add_f32 {v(LS)}, {v(LS)}, {v(LS+1)}", f"v_add_f32 {v(LS+2)}, {v(LS+2)}, {v(LS+3)}", f"v_add_f32 {v(LS)}, {v(LS)}, {v(LS+4)}", f"v_add_f32 {v(LS)}, {v(LS)}, {v(LS+2)}")
    allred32(B, LS, LS + 1, "v_add_f32")
    M, R = LS, LS + 2
    B(f"v_mul_f32 {v(M)}, s100, {v(M)}")
    for i in range(0, 20, 4):
        for k in range(4): B(f"v_sub_f32 {v(LD+k)}, {v(LF+i+k)}, {v(M)}")
        for k in range(4): B(f"{'v_fmac_f32' if i else 'v_mul_f32'} {v(R+k)}, {v(LD+k)}, {v(LD+k)}")
    B(f"v_add_f32 {v(R)}, {v(R)}, {v(R+1)}", f"v_add_f32 {v(R+2)}, {v(R+2)}, {v(R+3)}", f"v_add_f32 {v(R)}, {v(R)}, {v(R+2)}")
    allred32(B, R, R + 1, "v_add_f32")
    B(f"v_mul_f32 {v(R)}, s100, {v(R)}")
    rbf(B, M); rbf(B, R)
    B(f"v_add_f32 {v(R)}, 0x3727c5ac, {v(R)}"); rbf(B, R)
    B(f"v_sqrt_f32 {v(R)}, {v(R)}", "s_nop 0"); rbf(B, R)
    B(f"v_rcp_f32 {v(R)}, {v(R)}", f"v_lshlrev_b32 {v(t)}, 3, {v(ROW)}", f"v_add_u32 {v(t)}, {STAT_OFF}, {v(t)}")
    B(f"v_mul_f32 {v(LS+6)}, {QSCALE}, {v(R)}", f"v_mul_f32 {v(LS+7)}, {v(M)}, {v(LS+6)}", f"v_sub_f32 {v(LS+7)}, 0, {v(LS+7)}")
    B(f"buffer_store_dwordx2 {v(LS+6,2)}, {v(t)}, {SWS}, 0 offen sc1")
    return B.L

def ln_rest():
    t = 37
    M, R = LS, LS + 2
    B = Asm()
    for i in range(20): B(f"v_sub_f32 {v(LF+i)}, {v(LF+i)}, {v(M)}")
    for i in range(10): B(f"v_cvt_pk_bf16_f32 {v(LX+i)}, {v(LF+2*i)}, {v(LF+2*i+1)}")
    B(*ln_unpack(LF, LX))
    for i in range(20): B(f"v_mul_f32 {v(LF+i)}, {v(LF+i)}, {v(R)}")
    for i in range(10): B(f"v_cvt_pk_bf16_f32 {v(LX+i)}, {v(LF+2*i)}, {v(LF+2*i+1)}")
    un = ln_unpack(LF, LX)
    for i in range(5): B(f"buffer_store_dwordx2 {v(LX+2*i,2)}, {v(LXA)}, {SWS}, 0 offen offset:{256*i} sc1", *un[4*i:4*i+4])
    u = LS + 6
    for i in range(10):
        B(f"v_lshlrev_b32 {v(u)}, 16, {v(LW+i)}", f"v_and_b32 {v(u+1)}, s101, {v(LW+i)}")
        op = "v_mul_f32" if i < 2 else "v_fmac_f32"
        B(f"{op} {v(R+2*(i&1))}, {v(LF+2*i)}, {v(u)}", f"{op} {v(R+2*(i&1)+1)}, {v(LF+2*i+1)}, {v(u+1)}")
    B(f"v_add_f32 {v(R)}, {v(R)}, {v(R+1)}", f"v_add_f32 {v(R+2)}, {v(R+2)}, {v(R+3)}", f"v_add_f32 {v(R)}, {v(R)}, {v(R+2)}")
    allred32(B, R, R + 1, "v_add_f32")
    k, u = R, R + 1
    B(f"v_cvt_pk_bf16_f32 {v(k)}, {v(k)}, {v(k)}", f"v_ashrrev_i32 {v(u)}, 31, {v(k)}", f"v_and_b32 {v(u)}, 0x7fff, {v(u)}", f"v_or_b32 {v(u)}, 0x8000, {v(u)}",
      f"v_and_b32 {v(k)}, 0xffff, {v(k)}", f"v_xor_b32 {v(k)}, {v(k)}, {v(u)}", f"v_sub_u32 {v(u)}, 2047, {v(ROW)}", f"v_lshl_or_b32 {v(k)}, {v(k)}, 11, {v(u)}",
      f"v_mov_b32 {v(u)}, {v(k)}", f"v_lshrrev_b32 {v(t)}, 1, {v(ROW)}", f"v_lshlrev_b32 {v(t)}, 2, {v(t)}", f"v_permlane32_swap_b32 {v(k)}, {v(u)}",
      f"v_add_u32 {v(t)}, {KEY_OFF}, {v(t)}", "s_nop 0", f"v_max_u32 {v(k)}, {v(k)}, {v(u)}", f"buffer_store_dword {v(k)}, {v(t)}, {SWS}, 0 offen sc1")
    B(f"v_mov_b32 {v(u)}, 0", f"v_mov_b32 {v(t)}, s74", f"buffer_store_dword {v(u)}, {v(t)}, {SWS}, 0 offen sc1")
    B(f"v_lshl_add_u32 {v(t)}, v0, 2, s47", f"buffer_store_dword {v(u)}, {v(t)}, {SWS}, 0 offen sc1")
    return B.L

CONV = tuple(int(c) for c in os.environ.get("CONV", "01"))
LONE, LA = J + 40, J + 48
DLO = int(os.environ.get("DLO", 64))
GUS = int(os.environ.get("GUS", 1))
BAR = int(os.environ.get("BAR", 16))
def la(q): return LA + 4 * CONV.index(q)

def main_loop():
    plans = {dlo: sched.schedule(CONV, lat=int(os.environ.get("LAT", 8)), bar=BAR, seed=int(os.environ.get("SEED", 1)), wds=float(os.environ.get("WDS", 0.9)), dlo=dlo)
             for dlo in {0, DLO}}
    print("loop overflow units", [p[2] for p in plans.values()], [[p[1]["d", i] for i in range(8)] for p in plans.values()])
    st = Stream()
    for tile in range(4):
        slots, pos, over = plans[0 if tile else DLO]
        base = len(st.mf)
        for kind, q, f in slots:
            qn, qp = (q + 1) % 4, (q - 1) % 4
            sb = S + 16 * ((q + 1) % 2); pb = P + 8 * ((q - 1) % 2)
            if kind == "qk":
                kt, t = divmod(f, 4)
                st.add(f"{MF} {v(sb+4*kt,4)}, {a(kf(kt,t),4)}, {v(qf(qn,t),4)}, {v(NM+4*qn,4) if t == 0 else v(sb+4*kt,4)}")
            elif kind == "pv":
                dt, h = divmod(f, 2)
                st.add(f"{MF} {a(of(dt,qp),4)}, {a(vf(h,dt),4)}, {v(pb+4*h,4)}, {a(of(dt,qp),4)}")
            else:
                st.add(f"{MF} {v(la(qp),4)}, {v(LONE,4)}, {v(pb+4*f,4)}, {v(la(qp),4)}")
        for n, g in sorted(pos.items(), key=lambda x: (x[1], x[0][0] != "e", x[0][1:])):
            g += base
            if n[0] in "eac":
                q, i = n[1:]; sc = S + 16 * (q % 2); pc = P + 8 * (q % 2); l = L + 2 * q + (i & 1)
                st.va[g].append({"e": f"v_exp_f32 {v(sc+i)}, {v(sc+i)}", "a": f"v_add_f32 {v(l)}, {v(l)}, {v(sc+i)}",
                                 "c": f"v_cvt_pk_bf16_f32 {v(pc + i//2)}, {v(sc+i-1)}, {v(sc+i)}"}[n[0]])
            elif n[0] == "v": st.mem[g].append(v_read(tile, n[1] & 1, n[1] >> 1, n[2]))
            elif n[0] == "k": st.mem[g].append(k_read((tile + 1) % 4, n[1] >> 2, n[1] & 3))
            else: st.mem[g].insert(0, v_dma(n[1]) if n[1] < 4 else k_dma(n[1] - 4))
        if tile: st.sc[base + BAR - 1] += ["s_waitcnt vmcnt(16)"]
        st.sc[base + BAR] += ["s_barrier"]
        g = base + pos["d", 0] - 5
        for i, x in enumerate(["s_cmp_lt_u32 s35, 0x80000", "s_cselect_b32 s8, s40, s36", "s_cselect_b32 s9, s41, s37", "s_cselect_b32 s3, 0x4000, s48", v_m0((tile + 3) % 4)]):
            st.sc[g + i].append(x)
        g = base + pos["d", 4] - 6
        for i, x in enumerate(["s_add_u32 s35, s35, s3", "s_cmp_lt_u32 s34, 0x80000", "s_cselect_b32 s4, s38, s42", "s_cselect_b32 s5, s39, s43", "s_cselect_b32 s3, 0x4000, s48", k_m0(tile)]):
            st.sc[g + i].append(x)
        st.sc[base + pos["d", 7] + 1].append("s_add_u32 s34, s34, s3")
    return st

def clear_sums(A):
    for i in range(8): A(f"v_mov_b32 {v(L+i)}, 0")
    for i in range(8): A(f"v_mov_b32 {v(P+8+i)}, 0")
    for q in CONV:
        for i in range(4): A(f"v_mov_b32 {v(la(q)+i)}, 0")
    if CONV:
        for i in range(4): A(f"v_mov_b32 {v(LONE+i)}, 0x3f803f80")

def negm_from_max(A, ms):
    xgroup_multi(A, ms, [T0 + i for i in range(4)], "v_max_f32")
    for q in range(4):
        for r in range(4): A(f"v_sub_f32 {v(NM+4*q+r)}, 0, {v(ms[q])}")

def div_rows(A, d, i, per, magic, stride, t):
    A(f"v_add_u32 {v(t)}, {64*i}, v0", f"v_mul_u32_u24 {v(t+1)}, {magic}, {v(t)}", f"v_lshrrev_b32 {v(t+1)}, 16, {v(t+1)}",
      f"v_mul_u32_u24 {v(t+2)}, {per}, {v(t+1)}", f"v_sub_u32 {v(t+2)}, {v(t)}, {v(t+2)}", f"v_lshlrev_b32 {v(t+2)}, 4, {v(t+2)}",
      f"v_mul_u32_u24 {v(t+1)}, {stride}, {v(t+1)}", f"v_add_u32 {v(d)}, {v(t+1)}, {v(t+2)}")

XRP, XNP = (22, 24, 26, 28, 18), (16, 232, 234, 236, 252)
VXO = 31
XS, WF, GA = J, J + 20, J + 40
DBGV, DBGA = J + 46, J + 47

def side_jobs(A):
    t = T0
    dbg_load = f"buffer_load_dword {v(DBGV)}, {v(DBGA)}, {SDB}, 0 offen sc1"
    A("SIDE:", "s_waitcnt vmcnt(16)")
    for it in (1, 2, 3, 4, 5): A(f"s_cmp_eq_u32 s62, {7-it}", f"s_cbranch_scc1 JOB{it}")
    def two_counters(off): return [f"v_and_b32 {v(DBGA)}, 1, v0", f"v_lshlrev_b32 {v(DBGA)}, 7, {v(DBGA)}", f"v_add_u32 {v(DBGA)}, {off}, {v(DBGA)}", dbg_load]
    A("JOB0:", "s_lshl_b32 s75, s28, 13", f"s_add_u32 s75, s75, {SPARE}")
    div_rows(A, J + 44, 0, 10, 6554, 1280, t)
    srd(A, 68, PWO, 0, 4096 * 1280)
    A("s_lshr_b32 s73, s2, 1", "s_and_b32 s72, s2, 1", "s_lshl_b32 s72, s72, 2", "s_add_u32 s72, s72, s28",
      f"s_mul_i32 s76, s73, {32*1280}", "s_mul_i32 s77, s72, 160", "s_add_u32 s76, s76, s77",
      f"s_mul_i32 s77, s72, {128*5120}", "s_mul_i32 s73, s73, 5120", "s_add_u32 s77, s77, s73")
    for i in range(6):
        A(f"s_add_u32 m0, s75, {i*1024}", "s_nop 0" if i == 0 else f"s_add_u32 s76, s76, {6*1280}", f"buffer_load_dwordx4 {v(J+44)}, {ST}, s76 offen {NT} lds")
    A(*two_counters(DBG_B)); A("s_branch LOOP")
    A("JOB1:", f"v_lshrrev_b32 {v(t)}, 2, v0", f"v_and_b32 {v(t+3)}, 3, v0", f"v_lshl_add_u32 {v(t+3)}, {v(t+3)}, 3, s75")
    for p in range(2):
        if p: A(f"v_add_u32 {v(t)}, 16, {v(t)}")
        A(f"v_mul_u32_u24 {v(t+1)}, 43, {v(t)}", f"v_lshrrev_b32 {v(t+1)}, 8, {v(t+1)}", f"v_mul_u32_u24 {v(t+2)}, 160, {v(t)}",
          f"v_lshl_add_u32 {v(t+2)}, {v(t+1)}, 6, {v(t+2)}", f"v_add_u32 {v(t+4+p)}, {v(t+2)}, {v(t+3)}")
    A("s_waitcnt vmcnt(32)")
    for nt in range(5):
        for p in range(2): A(f"ds_read_b64_tr_b16 {v(WF+4*nt+2*p,2)}, {v(t+4+p)} offset:{nt*32}")
    A("s_movk_i32 s72, 128"); A(*spin("JOB1S", dbg_load, v(DBGV), "s72"))
    A(f"s_mov_b32 s72, {KEY_OFF}")
    for i in range(4): A(f"buffer_load_dwordx4 {v(XS+4*i,4)}, {v(L16)}, {SWS}, s72 offen offset:{1024*i} sc1")
    srd(A, 12, PWS, WOF_OFF, WOF_SIZE)
    A("s_and_b32 s76, s2, 7", "s_mul_i32 s76, s76, 27", "s_lshr_b32 s72, s2, 3", "s_min_u32 s72, s72, 26", "s_add_u32 s76, s76, s72",
      "s_mul_i32 s72, s28, 160", f"v_lshrrev_b32 {v(t)}, 1, v0", f"v_add_u32 {v(t)}, s72, {v(t)}", f"v_mul_u32_u24 {v(t)}, 3456, {v(t)}",
      "s_lshl_b32 s72, s76, 4", f"v_add_u32 {v(t)}, s72, {v(t)}", f"v_and_b32 {v(t+1)}, 1, v0", f"v_cmp_eq_u32 vcc, 1, {v(t+1)}",
      f"v_mov_b32 {v(t+2)}, {s(PG)}", f"v_mov_b32 {v(t+3)}, {s(PU)}", f"v_cndmask_b32 {v(t+2)}, {v(t+2)}, {v(t+3)}, vcc",
      f"v_mov_b32 {v(t+1)}, {s(PG+1)}", f"v_mov_b32 {v(t+3)}, {s(PU+1)}", f"v_cndmask_b32 {v(t+3)}, {v(t+1)}, {v(t+3)}, vcc",
      f"v_add_co_u32 {v(J+44)}, vcc, {v(t+2)}, {v(t)}", "s_nop 1", f"v_addc_co_u32 {v(J+45)}, vcc, 0, {v(t+3)}, vcc",
      "s_waitcnt lgkmcnt(0)")
    for nt in range(5):
        A(f"buffer_store_dwordx4 {v(WF+4*nt,4)}, {v(L16)}, {SW}, s77 offen offset:{1024*(nt%4)} sc1")
        if nt == 3: A("s_add_u32 s77, s77, 4096")
    def gu(first):
        if not first: A("s_add_u32 s77, s77, 1", "s_cmp_eq_u32 s77, 5", "s_cselect_b32 s77, 0, s77")
        A("s_lshl_b32 s72, s77, 10", "s_add_u32 m0, s75, s72", f"s_mul_i32 s72, s77, {32*3456}", "s_mov_b32 s73, 0",
          f"v_lshl_add_u64 {v(t,2)}, {v(J+44,2)}, 0, s[72:73]", f"global_load_lds_dwordx4 {v(t,2)}, off {NT if first else ''}")
    A("s_lshr_b32 s77, s2, 3", "s_and_b32 s77, s77, 7", "s_cmp_ge_u32 s77, 5", "s_cselect_b32 s72, 5, 0", "s_sub_u32 s77, s77, s72")
    gu(True)
    A("s_branch LOOP")
    A("JOB2:", "s_waitcnt vmcnt(32)")
    argmax_keys(A, XS, XS + 16, RBITS)
    A(f"s_and_b32 {s(SEL)}, {s(RBITS)}, 2047", f"s_sub_u32 {s(SEL)}, 2047, {s(SEL)}", f"s_lshr_b32 {s(RBITS)}, {s(RBITS)}, 11",
      f"s_bitcmp1_b32 {s(RBITS)}, 15", "s_mov_b32 s72, 0xffff", "s_cselect_b32 s72, 0x8000, s72", f"s_xor_b32 {s(RBITS)}, {s(RBITS)}, s72", f"s_lshl_b32 {s(RBITS)}, {s(RBITS)}, 16",
      f"s_mul_i32 s73, {s(SEL)}, 1280", "s_mul_i32 s72, s28, 320", "s_add_u32 s73, s73, s72", f"v_and_b32 {v(t)}, 48, v0")
    for i in range(5): A(f"buffer_load_dwordx4 {v(XS+4*i,4)}, {v(t)}, {SWS}, s73 offen offset:{64*i} sc1")
    for i in range(1 if GUS else 4): gu(False)
    A(*w0_only("JOB2W", ["s_and_b32 s72, s2, 1", "s_lshl_b32 s72, s72, 7", f"s_add_u32 s72, s72, {DBG_F}"] + signal("s72"))); A("s_branch LOOP")
    A("JOB3:")
    if GUS: gu(False)
    srd(A, 68, PD, 0, 1728 * 1280)
    A("s_mul_i32 s72, s76, 10240", "s_mul_i32 s73, s28, 2560", "s_add_u32 s72, s72, s73", "s_add_u32 m0, s75, 5120")
    for i in range(3):
        A("s_mov_b64 exec, 0xffffffff" if i == 2 else "s_nop 0", f"buffer_load_dwordx4 {v(L16)}, {ST}, s72 offen offset:{1024*i} {NT} lds")
    A("s_mov_b64 exec, -1")
    oproj_setup_early(A)
    A(f"v_and_b32 {v(t)}, 15, v0", f"v_lshrrev_b32 {v(t+1)}, 4, v0", "s_lshl_b32 s73, s78, 6", "s_lshl_b32 s72, s28, 4", "s_add_u32 s73, s73, s72",
      f"v_add_u32 {v(t)}, s73, {v(t)}", "s_mul_i32 s72, s79, 160", f"v_mul_u32_u24 {v(VXO)}, 1280, {v(t)}",
      f"v_lshl_add_u32 {v(VXO)}, {v(t+1)}, 3, {v(VXO)}", f"v_add_u32 {v(VXO)}, s72, {v(VXO)}")
    for nt in range(5): A(f"buffer_load_dwordx2 {v(XRP[nt],2)}, {v(VXO)}, {SX}, 0 offen offset:{32*nt}")
    A("s_branch LOOP")
    A("JOB4:"); A(*two_counters(DBG_F))
    if GUS: gu(False)
    for nt in range(5): A(f"buffer_load_dwordx2 {v(XNP[nt],2)}, {v(VXO)}, {SWS}, 0 offen offset:{32*nt} sc1")
    A("s_branch LOOP")
    A("JOB5:", "s_waitcnt vmcnt(32)", f"s_movk_i32 s72, {NPACK//2}")
    A(*spin("JOB5S", dbg_load, v(DBGV), "s72"))
    if GUS: gu(False)
    n = 1 << LR
    A("s_lshr_b32 s72, s2, 3", f"s_and_b32 s72, s72, {n-1}", f"v_lshl_add_u32 {v(t)}, v0, {LR}, s72", f"v_lshlrev_b32 {v(t)}, 7, {v(t)}")
    k0 = int(os.environ.get("TK0", 19))
    if k0: A(f"v_add_u32 {v(t)}, {k0*5120}, {v(t)}")
    for i in range(-(-(32 - k0) * 40 // (64 * n))):
        if i: A(f"v_add_u32 {v(t)}, {64*n*128}, {v(t)}")
        A(f"buffer_load_dword {v(DUMMY)}, {v(t)}, {SW}, 0 offen sc1")
    A("s_branch LOOP")

def ffn_part1():
    t = T0; B = Asm()
    B(f"v_lshrrev_b32 {v(t)}, 4, v0", f"v_bfe_u32 {v(t+1)}, v0, 2, 2", f"v_lshl_add_u32 {v(t)}, {v(t)}, 3, {v(t+1)}",
      f"v_and_b32 {v(t+1)}, 3, v0", f"v_lshlrev_b32 {v(t+1)}, 3, {v(t+1)}", f"v_lshl_add_u32 {v(t)}, {v(t)}, 5, {v(t+1)}", f"v_add_u32 {v(t)}, s75, {v(t)}")
    for i in range(5):
        for p in range(2): B(f"ds_read_b64_tr_b16 {v(WF+4*i+2*p,2)}, {v(t)} offset:{i*1024 + p*128}")
    B(f"v_and_b32 {v(t+3)}, 15, v0", f"v_lshlrev_b32 {v(t+1)}, 4, {v(t+3)}", "s_lshl_b32 s72, s28, 2", f"s_add_u32 s72, s72, {FEX}", f"v_add_u32 {v(t+1)}, s72, {v(t+1)}",
      "s_mul_i32 s72, s28, 320", f"s_add_u32 s72, s72, {SPARE}", "s_movk_i32 s73, 1280", "s_waitcnt lgkmcnt(0)")
    for i in range(5): B(f"{MF} {v(GA,4)}, {v(XS+4*i,4)}, {v(WF+4*i,4)}, {v(GA,4) if i else 0}")
    B(f"v_bfe_u32 {v(t)}, v0, 3, 2", f"v_lshlrev_b32 {v(t)}, 13, {v(t)}", f"v_bfe_u32 {v(t+2)}, v0, 2, 1", f"v_mad_u32_u24 {v(t)}, {v(t+2)}, s73, {v(t)}",
      f"v_and_b32 {v(t+2)}, 3, v0", f"v_lshl_add_u32 {v(t)}, {v(t+2)}, 3, {v(t)}", f"v_add_u32 {v(t)}, s72, {v(t)}", "s_nop 0", f"ds_write_b32 {v(t+1)}, {v(GA)}")
    for nt in range(10): B(f"ds_read_b64_tr_b16 {v(WF+2*nt,2)}, {v(t)} offset:{5120 + nt*32}")
    B("s_waitcnt lgkmcnt(0)")
    return B.L

def ffn_part2():
    t = T0; G = GA; B = Asm()
    B(f"v_and_b32 {v(t)}, 7, v0", f"v_lshlrev_b32 {v(t+1)}, 4, {v(t)}", f"v_add_u32 {v(t+1)}, {FEX}, {v(t+1)}",
      f"ds_read_b128 {v(G,4)}, {v(t+1)}", f"ds_read_b128 {v(G+4,4)}, {v(t+1)} offset:128",
      "s_lshl_b32 s72, s28, 5", f"s_add_u32 s72, s72, {FH}", f"v_lshl_add_u32 {v(t+1)}, {v(t)}, 1, s72", f"v_bfe_u32 {v(t)}, v0, 4, 1", f"v_lshl_add_u32 {v(t)}, {v(t)}, 3, s72",
      "s_waitcnt lgkmcnt(0)")
    for m in range(2):
        b = G + 4 * m
        B(f"v_add_f32 {v(b)}, {v(b)}, {v(b+1)}", f"v_add_f32 {v(b+2)}, {v(b+2)}, {v(b+3)}", f"v_add_f32 {v(b)}, {v(b)}, {v(b+2)}")
    B(f"v_cvt_pk_bf16_f32 {v(G)}, {v(G)}, {v(G+4)}", f"v_and_b32 {v(G+4)}, 0xffff0000, {v(G)}", f"v_lshlrev_b32 {v(G)}, 16, {v(G)}",
      f"v_mul_f32 {v(G+1)}, {NLOG2E}, {v(G)}", f"v_exp_f32 {v(G+1)}, {v(G+1)}", "s_nop 0", f"v_add_f32 {v(G+1)}, 1.0, {v(G+1)}",
      f"v_rcp_f32 {v(G+1)}, {v(G+1)}", "s_nop 0", f"v_mul_f32 {v(G)}, {v(G)}, {v(G+1)}",
      f"v_cvt_pk_bf16_f32 {v(G)}, {v(G)}, {v(G)}", f"v_lshlrev_b32 {v(G)}, 16, {v(G)}", f"v_mul_f32 {v(G)}, {v(G)}, {v(G+4)}",
      f"v_cvt_pk_bf16_f32 {v(G)}, {v(G)}, {v(G)}", f"ds_write_b16 {v(t+1)}, {v(G)}", "s_waitcnt lgkmcnt(0)", f"ds_read_b64 {v(G,2)}, {v(t)}",
      "v_cmp_gt_u32 vcc, 32, v0", "s_lshr_b32 s73, s2, 3", "s_cmp_lt_u32 s73, 27", f"s_mov_b32 s73, {WSLO}", f"s_cselect_b32 s73, {Y_OFF}, s73",
      "s_mul_i32 s72, s28, 640", "s_add_u32 s72, s72, s73", "s_and_b32 s73, s2, 15", "s_mul_i32 s73, s73, 2560", "s_add_u32 s72, s72, s73",
      f"v_lshl_add_u32 {v(t+3)}, {v(t+3)}, 2, s72", "s_waitcnt lgkmcnt(0)",
      f"v_cndmask_b32 {v(G)}, 0, {v(G)}, vcc", f"v_cndmask_b32 {v(G+1)}, 0, {v(G+1)}, vcc", "s_nop 1")
    outs = [XS + 4*i for i in range(5)] + [J + 44 + 4*i for i in range(5)]
    for nt in range(10): B(f"v_mfma_f32_16x16x16_bf16 {v(outs[nt],4)}, {v(G,2)}, {v(WF+2*nt,2)}, 0")
    B("s_mov_b64 exec, 0xffff")
    for nt in range(10):
        if nt >= 8: B("s_nop 1")
        B(f"buffer_atomic_add_f32 {v(outs[nt])}, {v(t+3)}, {SWS}, 0 offen offset:{64*nt}")
    B("s_mov_b64 exec, -1")
    return B.L

def weave(A, vm, loads, fill, per):
    fill = list(fill)
    def pop():
        x = fill.pop(0)
        if x.startswith("s_mov_b64 exec, 0x"):
            while True:
                put(A, vm, [x], "fa")
                if x == "s_mov_b64 exec, -1": return
                x = fill.pop(0)
        put(A, vm, [x], "fa")
        while x.startswith(("s_cmp", "s_mov_b32 s73")): x = fill.pop(0); put(A, vm, [x], "fa")
    for lines, tag in loads:
        for x in lines:
            put(A, vm, [x], tag)
            if x.startswith("buffer_"):
                for _ in range(per):
                    if fill: pop()
    while fill: pop()

OACC, OB, OT = 32, 112, 192
NB = 5
def oacc(i, nt): return OACC + 20 * i + 4 * nt
def aslot(k): return (128 + 20 * (k - 6)) if k >= 6 else 20 * k

def oproj_setup_early(A):
    lr = LR
    A("s_and_b32 s72, s2, 7", "s_lshr_b32 s73, s2, 3", f"s_lshr_b32 s78, s72, {lr-2}", f"s_lshl_b32 s78, s78, {lr}", f"s_and_b32 s79, s73, {(1<<lr)-1}", "s_add_u32 s78, s78, s79",
      f"s_and_b32 s72, s72, {(1<<(lr-2))-1}", f"s_lshl_b32 s72, s72, {5-lr}", f"s_lshr_b32 s79, s73, {lr}", "s_add_u32 s79, s79, s72",
      f"s_mul_i32 s72, s79, {128*5120}", f"s_mul_i32 s73, s28, {32*5120}", "s_add_u32 s72, s72, s73", f"s_add_u32 s72, s72, {WOF_OFF}")
    srd(A, 12, PWS, "s72", 32 * 5120)
    A("s_sub_u32 s72, s72, s33", f"s_sub_u32 s72, s72, {0x80000 - 60*1024}", f"s_add_u32 s42, {s(PWS)}, s72", f"s_addc_u32 s43, {s(PWS+1)}, 0",
      "s_add_u32 s36, s42, 16384", "s_addc_u32 s37, s43, 0")

def a_loads(k, slot):
    out = [f"s_mov_b32 s31, {k*5120}", f"s_mov_b32 s32, {k*5120+4096}"]
    for nt in range(5):
        out.append(f"buffer_load_dwordx4 {a(aslot(slot)+4*nt,4)}, {v(L16)}, {SW}, {'s32' if nt == 4 else 's31'} offen offset:{1024*(nt%4)} {WSC}")
    return out

def put(A, vm, lines, tag):
    for x in lines:
        if x.startswith(("buffer_", "global_")):
            A(*vm.room()); A(x); vm.issue(tag)
        else: A(x)

OLEAD = int(os.environ.get('OLEAD', 8))
NL = 7
EARLY = int(os.environ.get("EARLY", 0))
def lds_frag(n):
    if n < 16: return VK, (n >> 2) * 16384 + (n & 3) * 1024
    if n < 28: return VV, ((n - 16) >> 2) * 16384 + (n & 3) * 1024
    return 21, (n - 28) * 1024

def late_loads():
    out = []
    for n in range(28, 35):
        if n in (28, 32): out += [f"s_add_u32 m0, s48, {(n-28)*1024}", f"s_mov_b32 s31, {(60+n)*1024}"]
        out.append(f"buffer_load_dwordx4 {v(L16)}, {SW}, s31 offen offset:{1024*(n & 3)} {WSC} lds")
    return out

def oproj(A, vm, stamps):
    t = T0
    VB, VROW, WX = 3, 7, 9
    RE, VY, VF_ = 12, 13, 14
    G = OT + 20
    XR = [p + h for p in XRP for h in range(2)]; XNR = [p + h for p in XNP for h in range(2)]
    B = Asm()
    B("s_lshl_b32 s72, s78, 9", "s_lshl_b32 s73, s28, 7", "s_add_u32 s72, s72, s73", f"s_add_u32 s72, s72, {FLAG_OFF}",
      f"v_and_b32 {v(VF_)}, 7, v0", f"v_lshl_add_u32 {v(VF_)}, {v(VF_)}, 2, s72")
    for i in range(4):
        B(f"s_add_u32 s72, s28, {i}", "s_and_b32 s72, s72, 3", "s_lshl_b32 s72, s72, 10", f"v_add_u32 {v(VB+i)}, s72, {v(L16)}")
    B(f"v_add_u32 {v(VV)}, {VBASE}, {v(VV)}")
    B(f"v_and_b32 {v(t)}, 15, v0", f"v_lshrrev_b32 {v(t+1)}, 4, v0", "s_lshl_b32 s74, s78, 6", "s_lshl_b32 s72, s28, 4", "s_add_u32 s74, s74, s72",
      f"v_add_u32 {v(VROW)}, s74, {v(t)}",
      "s_mul_i32 s72, s79, 320", f"s_add_u32 s72, s72, {Y_OFF}", f"v_lshl_add_u32 {v(VY)}, {v(t+1)}, 4, s72", f"v_mul_u32_u24 {v(t+2)}, 2560, {v(t)}", f"v_add_u32 {v(VY)}, {v(VY)}, {v(t+2)}")
    for i in range(1, 4):
        B(f"s_sub_u32 s72, s28, {i}", "s_and_b32 s72, s72, 3", "s_lshl_b32 s72, s72, 12", f"v_add_u32 {v(WX+i-1)}, s72, {v(L16)}")
    B(f"v_add_u32 {v(RE)}, s33, {v(L16)}",
      f"s_sub_u32 s75, {s(SEL)}, s74", f"v_mov_b32 {v(t+10)}, {DBG_C}", f"s_mov_b32 s100, {NLOG2E}", "s_mov_b32 s101, 0xffff0000")
    VOT, RA2 = 20, 21
    B(f"v_lshrrev_b32 {v(VOT)}, {LR}, v0", f"v_lshlrev_b32 {v(VOT)}, 17, {v(VOT)}", f"s_lshr_b32 s72, s2, {3+LR}", f"s_lshl_b32 s72, s72, {LR}",
      f"v_and_b32 {v(t)}, {(1<<LR)-1}, v0", f"v_add_u32 {v(t)}, s72, {v(t)}", f"v_lshl_add_u32 {v(VOT)}, {v(t)}, 7, {v(VOT)}")
    A("s_mov_b32 s48, s75")
    B(f"v_add_u32 {v(RA2)}, s48, {v(L16)}")
    order = [0, 1, 2, 3, 4, 5, 6, 7, 8, 9, 10, 11]
    order = [k for k in order if ("a", k) not in vm.q]
    weave(A, vm, [(a_loads(k, k), ("a", k)) for k in order[:2]], ffn_part2(), 8)
    A("s_lshl_b32 s72, s78, 12", "s_lshl_b32 s73, s28, 22", "s_add_u32 s72, s72, s73", f"s_add_u32 s72, s72, {OF_OFF}")
    srd(A, 20, PWS, "s72", 31 * 131072 + 4096)
    srd(A, 4, POUT, 0, 2048 * 1280)
    weave(A, vm, [(a_loads(k, k), ("a", k)) for k in order[2:3]], B.L, 12)
    fpoll = f"buffer_load_dword {v(t+8)}, {v(VF_)}, {SWS}, 0 offen sc1"
    put(A, vm, [fpoll], "flag")
    for k in order[3:]: put(A, vm, a_loads(k, k), ("a", k))
    put(A, vm, late_loads(), "l")
    A(*vm.wait(["flag"]))
    A("s_barrier", *w0_only("OCSIG", ["s_mov_b32 s72, 1", f"s_atomic_add s72, {s(PDBG,2)}, {DBG_C}"]))
    A(*spin("OFLAG", fpoll, v(t+8), "1"))
    stamp(A, "flag", stamps)
    def o_off(k):
        if 'r' in EXP: return [f"s_add_u32 s34, s35, {k*131072}", "s_and_b32 s34, s34, 0x3fffff"]
        return [f"s_mov_b32 s34, {k*131072}"]
    if 'r' in EXP: A(f"s_lshr_b32 s35, s2, {3+LR}", f"s_lshl_b32 s35, s35, {17+LR}")
    def b_load(k, i): return f"buffer_load_dwordx4 {v(OB+16*(k%NB)+4*i,4)}, {v(VB+i)}, {SO}, s34 offen {OSC}"
    for k in range(NB - 1):
        A(*o_off(k))
        put(A, vm, [b_load(k, i) for i in range(4)], ("b", k))
    def asrc(k):
        if k < 12: return lambda nt: a(aslot(k) + 4*nt, 4)
        if k < 12 + NL: return lambda nt: v(OT + 20*(k & 1) + 4*nt, 4)
        return lambda nt: a(aslot((k - 12 - NL) % 12) + 4*nt, 4)
    refill = []
    for i in range(20 - NL):
        for nt in range(5): refill.append((i, nt))
    va = gate_ops(XNR, G)
    state = []
    cpoll = f"buffer_load_dword {v(t+9)}, {v(t+10)}, {SDB}, 0 offen sc1"
    for k in range(32):
        st = Stream()
        for i in ((1, 2, 3, 0) if k == 31 else range(4)):
            for nt in range(5):
                c = v(oacc(i, nt), 4) if k else 0
                st.add(f"{MF} {v(oacc(i,nt),4)}, {asrc(k)(nt)}, {v(OB+16*(k%NB)+4*i,4)}, {c}")
        need = [("b", k)] + ([("a", k)] if k < 12 or k >= 12 + NL else [])
        A(*vm.wait(need))
        if 11 <= k < 11 + NL:
            st.sc[0] += vm.wait(["l"])
            for nt in range(5):
                r, o = lds_frag(5 * (k + 1 - 12) + nt)
                st.mem[1 + nt].append(f"ds_read_b128 {v(OT+20*((k+1)&1)+4*nt,4)}, {v(r)} offset:{o}")
        if k == 22: A("s_cmp_lt_u32 s75, 16", "s_cbranch_scc0 OC3", f"s_waitcnt vmcnt({len(vm.q) - ny})", *route_ops(G, VROW), "OC3:")
        ops = []
        def mem(g, x, tag): ops.append((g, x, tag))
        kb = k + NB - 1
        if kb < 32:
            for i, x in enumerate(o_off(kb)): st.sc[4 + i].append(x)
            for i in range(4): mem(6 + 2*i, b_load(kb, i), ("b", kb))
        n = 3 if k % 4 else 2
        g = 14
        while n and refill and (refill[0][0] if refill[0][0] < 12 else refill[0][0] + NL) < k:
            i, nt = refill.pop(0)
            st.sc[g - 1].append(f"s_mov_b32 s31, {(12+NL+i)*5120 + 1024*nt}")
            mem(g, f"buffer_load_dwordx4 {a(aslot(i % 12)+4*nt,4)}, {v(L16)}, {SW}, s31 offen {WSC}", ("a", 12 + NL + i)); g += 2; n -= 1
        span = 64 >> LR
        if "o" in TOUCH and (k + OLEAD) % span == 0 and k + OLEAD < 32:
            st.sc[2].append(f"s_mov_b32 s32, {(k + OLEAD) * 131072}")
            mem(3, f"buffer_load_dword {v(DUMMY)}, {v(VOT)}, {SO}, s32 offen sc1", "t")
        if k == 15: st.va[19] += ["s_cmp_lt_u32 s75, 16", "s_cbranch_scc0 OC1", cpoll, "OC1:"]; nc = len(vm.q) + len(ops)
        if k == 20:
            for i in range(20): st.va[2 * (i // 2) + (1 if i >= 10 else 0)].append(f"v_mov_b32 {v(G+i)}, 0")
            st.va[19] += ["s_cmp_lt_u32 s75, 16", "s_cbranch_scc0 OC2", f"s_waitcnt vmcnt({len(vm.q) + len(ops) - nc})"] + spin("OCS", cpoll, v(t+9), "s72") + \
                         [f"buffer_load_dwordx4 {v(G+4*nt,4)}, {v(VY)}, {SWS}, 0 offen offset:{64*nt} sc1" for nt in range(5)] + ["OC2:"]
            st.va[18].append("s_movk_i32 s72, 256")
        for g, x, tag in sorted(ops, key=lambda o: o[0]):
            st.sc[g] += vm.room(); st.mem[g].append(x); vm.issue(tag)
        if k == 20: ny = len(vm.q)
        if 23 <= k <= 30:
            for g in range(1, 20):
                if any(x.startswith("buffer") for x in st.mem[g]): continue
                for _ in range(2):
                    if va:
                        x = va.pop(0); st.va[g].append(x)
                        if x.startswith(TRANS): break
        if k == 31:
            assert not va
            for n in range(10): st.mem[9 + n].append(f"ds_write_b128 {v(RE)}, {v(oacc(1 + n // 5, n % 5),4)} offset:{lds_frag(n)[1]}")
        nx0 = regs_of(" ".join(asrc(k + 1)(nt) for nt in range(5))) if k < 31 else set()
        stamp(A, f"g{k}", stamps)
        state = st.emit(A, state, nxt0=nx0)
    assert not refill
    A(*va)
    stamp(A, "gend", stamps)
    for n in range(10, 15): A(f"ds_write_b128 {v(RE)}, {v(oacc(3, n % 5),4)} offset:{lds_frag(n)[1]}")
    XF = OB
    for i in range(10): A(f"v_lshlrev_b32 {v(XF+2*i)}, 16, {v(XR[i])}", f"v_and_b32 {v(XF+2*i+1)}, s101, {v(XR[i])}")
    A("s_waitcnt lgkmcnt(0)", "s_barrier")
    for nt in range(5):
        for i in range(1, 4): A(f"ds_read_b128 {v(oacc(i,nt),4)}, {v(WX+i-1)} offset:{lds_frag(5*(i-1) + nt)[1]}")
    for nt in range(5):
        A(f"s_waitcnt lgkmcnt({3*(4-nt)})")
        for r in range(4): A(f"v_add_f32 {v(oacc(0,nt)+r)}, {v(oacc(0,nt)+r)}, {v(oacc(1,nt)+r)}")
        for r in range(4): A(f"v_add_f32 {v(oacc(2,nt)+r)}, {v(oacc(2,nt)+r)}, {v(oacc(3,nt)+r)}")
        for r in range(4): A(f"v_add_f32 {v(oacc(0,nt)+r)}, {v(oacc(0,nt)+r)}, {v(oacc(2,nt)+r)}")
        for r in range(4): A(f"v_fmac_f32 {v(XF+4*nt+r)}, {v(oacc(0,nt)+r)}, {v(G+4*nt+r)}")
        for h in range(2): A(f"v_cvt_pk_bf16_f32 {v(XR[2*nt+h])}, {v(XF+4*nt+2*h)}, {v(XF+4*nt+2*h+1)}")
        A(f"buffer_store_dwordx2 {v(XRP[nt],2)}, {v(VXO)}, {SK}, 0 offen offset:{32*nt}")

def rb2(x):
    return [f"v_cvt_pk_bf16_f32 {v(x)}, {v(x)}, {v(x+1)}", f"v_and_b32 {v(x+1)}, s101, {v(x)}", f"v_lshlrev_b32 {v(x)}, 16, {v(x)}"]

def route_ops(G, VROW):
    t = T0; o = []
    r = t + 11
    o += [f"v_mov_b32 {v(r)}, {s(RBITS)}", f"v_mul_f32 {v(r)}, s100, {v(r)}", f"v_exp_f32 {v(r)}, {v(r)}", f"v_cmp_eq_u32 vcc, {s(SEL)}, {v(VROW)}", f"v_add_f32 {v(r)}, 1.0, {v(r)}",
          f"v_rcp_f32 {v(r)}, {v(r)}", "s_nop 0", f"v_cvt_pk_bf16_f32 {v(r)}, {v(r)}, {v(r)}", f"v_lshlrev_b32 {v(r)}, 16, {v(r)}"]
    for ror in (8, 4, 2, 1):
        for i in range(20): o.append(f"v_add_f32_dpp {v(G+i)}, {v(G+i)}, {v(G+i)} row_ror:{ror} row_mask:0xf bank_mask:0xf")
    for i in range(10): o += rb2(G + 2*i)
    for i in range(20): o.append(f"v_mul_f32 {v(G+i)}, {v(G+i)}, {v(r)}")
    for i in range(10): o += rb2(G + 2*i)
    for i in range(20): o.append(f"v_cndmask_b32 {v(G+i)}, 0, {v(G+i)}, vcc")
    return o

def gate_ops(XNR, G):
    t = T0; o = []
    for i in range(10):
        o += [f"v_lshlrev_b32 {v(t)}, 16, {v(XNR[i])}", f"v_and_b32 {v(t+1)}, s101, {v(XNR[i])}",
              f"v_add_f32 {v(G+2*i)}, {v(G+2*i)}, {v(t)}", f"v_add_f32 {v(G+2*i+1)}, {v(G+2*i+1)}, {v(t+1)}"]
    for i in range(10): o += rb2(G + 2*i)
    for h in range(4):
        for i in range(5): o.append(f"v_mul_f32 {v(t+i)}, s100, {v(G+5*h+i)}")
        for i in range(5): o.append(f"v_exp_f32 {v(t+i)}, {v(t+i)}")
        for i in range(5): o.append(f"v_add_f32 {v(t+i)}, 1.0, {v(t+i)}")
        for i in range(5): o.append(f"v_rcp_f32 {v(t+i)}, {v(t+i)}")
        for i in range(5): o.append(f"v_mul_f32 {v(G+5*h+i)}, {v(G+5*h+i)}, {v(t+i)}")
    for i in range(10): o += rb2(G + 2*i)
    return o

def gen(stamps=False):
    A = Asm()
    t = T0
    A("s_cmp_ge_u32 s2, 256", "s_cbranch_scc1 END")
    stamp(A, "start", stamps)
    A("s_load_dwordx16 s[36:51], s[0:1], 0", "s_load_dwordx8 s[52:59], s[0:1], 64", "s_load_dwordx2 s[60:61], s[0:1], 96")
    A(f"v_lshrrev_b32 {v(t)}, 6, v0", f"v_lshrrev_b32 {v(ROW)}, 5, v0", f"v_readfirstlane_b32 s28, {v(t)}", f"v_and_b32 {v(PP)}, 31, v0")
    A("s_and_b32 s29, s2, 7", "s_lshl_b32 s29, s29, 2", "s_lshr_b32 s30, s2, 3", "s_and_b32 s31, s30, 3", "s_add_u32 s29, s29, s31", "s_lshr_b32 s63, s30, 2",
      "v_and_b32 v0, 63, v0", "s_lshl_b32 s30, s63, 4", "s_lshl_b32 s31, s28, 2", "s_add_u32 s30, s30, s31", "s_lshl_b32 s33, s28, 12", "s_lshl_b32 s75, s28, 13")
    vm = VM()
    A(f"v_lshrrev_b32 {v(t)}, 3, v0", f"v_and_b32 {v(t+1)}, 7, v0", f"v_lshrrev_b32 {v(t+2)}, 4, v0", "s_lshl_b32 s31, s30, 4", f"v_add_u32 {v(t)}, s31, {v(t)}",
      f"v_mul_u32_u24 {v(t)}, 1280, {v(t)}", f"v_xor_b32 {v(t+3)}, {v(t+1)}, {v(t+2)}", f"v_lshl_add_u32 {v(VX)}, {v(t+3)}, 4, {v(t)}",
      f"v_xor_b32 {v(t+3)}, 4, {v(t+3)}", f"v_lshl_add_u32 {v(VX+1)}, {v(t+3)}, 4, {v(t)}", f"v_add_u32 {v(VX+1)}, {8*1280-1024}, {v(VX+1)}")
    A(f"v_and_b32 {v(t+1)}, 15, v0", "s_lshl_b32 s31, s28, 4", f"v_add_u32 {v(t+4)}, s31, {v(t+2)}",
      f"v_lshlrev_b32 {v(t+3)}, 2, {v(t+2)}", f"v_xor_b32 {v(t+3)}, {v(t+3)}, {v(t+1)}", f"v_lshlrev_b32 {v(t+3)}, 4, {v(t+3)}", f"v_lshl_add_u32 {v(VW)}, {v(t+4)}, 13, {v(t+3)}")
    A("s_waitcnt lgkmcnt(0)")
    srd(A, 16, PX, 0, 2048 * 1280)
    A("s_lshl_b32 s31, s29, 8"); srd(A, 12, PWQ, "s31", 639 * 8192 + 256)
    stamp(A, "karg", stamps)
    def x_dma(kt):
        out = []
        for pr in range(4):
            out += [f"s_add_u32 m0, s75, {(XA, XB)[kt & 1] + 2048*pr}", f"s_mov_b32 s62, {kt*128 + 20480*pr}",
                    f"buffer_load_dwordx4 {v(VX)}, {SX}, s62 offen {XNT} lds", f"buffer_load_dwordx4 {v(VX+1)}, {SX}, s62 offen offset:1024 {XNT} lds"]
        return out
    def wq_dma(kt):
        out = [f"s_add_u32 m0, s33, {VBASE + wslot(kt)*16384}"]
        for i in range(4):
            out += [f"s_mov_b32 s32, {kt*524288 + i*31744}", f"buffer_load_dwordx4 {v(VW)}, {SW}, s32 offen offset:{1024*i} {NT} lds"]
        return out
    def event(e):
        if e == "": return []
        if e[0] == "w": return [(x, ("w", int(e[1]))) for x in wq_dma(int(e[1]))]
        if e[0] == "x": return [(x, ("x", int(e[1]))) for x in x_dma(int(e[1]))]
        if e == "L":
            return [(x, "lx") for x in ["s_lshl_b32 s31, s63, 8", "s_lshl_b32 s32, s29, 3", "s_add_u32 s31, s31, s32", f"v_add_u32 {v(ROW)}, s31, {v(ROW)}",
                    f"v_lshlrev_b32 {v(LWA)}, 3, {v(PP)}", f"v_mul_u32_u24 {v(LXA)}, 1280, {v(ROW)}", f"v_add_u32 {v(LXA)}, {v(LXA)}, {v(LWA)}"] +
                    [f"buffer_load_dwordx2 {v(LX+2*i,2)}, {v(LXA)}, {SX}, 0 offen offset:{256*i}" for i in range(5)]]
        if e == "C":
            return [(x, "code") for x in ["s_getpc_b64 s[72:73]", "CODE0:", "s_lshr_b32 s31, s2, 3", "s_and_b32 s31, s31, 7", "s_lshl_b32 s32, s28, 7", "s_add_u32 s31, s31, s32",
                    f"v_and_b32 {v(t+8)}, 15, v0", f"v_lshl_add_u32 {v(t+8)}, {v(t+8)}, 3, s31", f"v_lshlrev_b32 {v(t+8)}, 7, {v(t+8)}",
                    f"v_min_u32 {v(t+8)}, (CODE1 - CODE0), {v(t+8)}", f"v_mov_b32 {v(t+9)}, 0", f"v_lshl_add_u64 {v(t+8,2)}, {v(t+8,2)}, 0, s[72:73]",
                    f"global_load_dword {v(DUMMY)}, {v(t+8,2)}, off"]]
    for e in PRE:
        for x, tag in event(e): put(A, vm, [x], tag)
    g_, i_, c_, r_ = t + 2, t + 1, t + 5, t + 6
    A(f"v_and_b32 {v(c_)}, 3, v0", f"v_bfe_u32 {v(r_)}, v0, 2, 2")
    for k in range(4): A(f"s_add_u32 s31, s28, {k}", "s_and_b32 s31, s31, 3", f"s_lshl_b32 {s(76+k)}, s31, 2")
    A(f"v_lshl_add_u32 {v(t+8)}, {v(g_)}, 3, {v(r_)}", f"v_lshlrev_b32 {v(t+8)}, 8, {v(t+8)}", f"v_lshl_add_u32 {v(t+8)}, {v(c_)}, 4, {v(t+8)}",
      f"v_add_u32 {v(t+8)}, {VBASE}, {v(t+8)}", f"v_lshlrev_b32 {v(t+7)}, 2, {v(r_)}")
    for k in range(4): A(f"v_xor_b32 {v(t+3)}, {s(76+k)}, {v(t+7)}", f"v_lshl_add_u32 {v(RW+k)}, {v(t+3)}, 4, {v(t+8)}")
    A(f"v_lshrrev_b32 {v(t+3)}, 1, {v(i_)}", f"v_xor_b32 {v(t+3)}, {v(t+3)}, {v(g_)}", f"v_lshlrev_b32 {v(t+8)}, 7, {v(i_)}", f"v_add_u32 {v(t+8)}, s75, {v(t+8)}",
      f"v_lshl_add_u32 {v(t+8)}, {v(t+3)}, 4, {v(t+8)}", f"v_add_u32 {v(RX)}, {XA}, {v(t+8)}", f"v_add_u32 {v(RX+2)}, {XB}, {v(t+8)}",
      f"v_xor_b32 {v(RX+1)}, 64, {v(RX)}", f"v_xor_b32 {v(RX+3)}, 64, {v(RX+2)}")
    for i in range(4): A(f"v_mov_b32 {v(ONES+i)}, 0x3f803f80")
    srd(A, 68, PWR, 0, 1280); srd(A, 24, PWS, 0, WSLO); srd(A, 64, PDBG, 0, 256)
    A("s_mov_b32 s101, 0xffff0000", "s_mov_b32 s100, 0x3acccccd")
    stamp(A, "setup", stamps)
    for e in MID:
        for x, tag in event(e): put(A, vm, [x], tag)
    B = Asm()
    B("s_lshl_b32 s31, s29, 19"); srd(B, 4, PK, "s31", "0x90000"); srd(B, 8, PV, "s31", "0x90000")
    B("s_mov_b64 s[38:39], s[4:5]", "s_mov_b64 s[40:41], s[8:9]", "s_mov_b64 s[42:43], s[4:5]", "s_mov_b64 s[36:37], s[8:9]", "s_movk_i32 s48, 4096")
    sc1 = B.L
    B = Asm()
    B("s_lshl_b32 s31, s30, 10", "s_lshl_b32 s73, s29, 19", "s_add_u32 s31, s31, s73", f"s_add_u32 s31, s31, {OF_OFF}")
    srd(B, 20, PWS, "s31", 3 * 131072 + 4096)
    sc2 = B.L
    sc3 = ["s_lshr_b32 s31, s29, 3", "s_add_u32 s74, s30, s31", "s_lshl_b32 s74, s74, 7", "s_and_b32 s31, s29, 7", "s_lshl_b32 s31, s31, 2", "s_add_u32 s74, s74, s31",
           f"s_add_u32 s74, s74, {FLAG_OFF}"]
    sc4 = ["s_lshl_b32 s31, s2, 2", "s_add_u32 s31, s31, s28", "s_lshl_b32 s31, s31, 8", "s_cmp_lt_u32 s31, 40960", f"s_mov_b32 s47, {WSLO}", f"s_cselect_b32 s47, {Y_OFF}, s47",
           "s_add_u32 s47, s47, s31"]
    B = Asm()
    B(f"v_lshlrev_b32 {v(L16)}, 4, v0", f"v_mov_b32 {v(VXO)}, 0")
    B(f"v_lshl_or_b32 {v(t+3)}, s28, 2, {v(g_)}", f"v_xor_b32 {v(t+3)}, {v(t+3)}, {v(i_)}", f"v_lshlrev_b32 {v(t+3)}, 4, {v(t+3)}", f"v_lshl_add_u32 {v(VK)}, {v(t+4)}, 8, {v(t+3)}")
    B(f"v_lshl_or_b32 {v(t+3)}, s28, 2, {v(g_)}", f"v_and_b32 {v(t+3)}, 7, {v(t+3)}", f"v_lshlrev_b32 {v(t+3)}, 1, {v(t+3)}", f"v_xor_b32 {v(t+3)}, {v(t+3)}, {v(i_)}",
      f"v_lshlrev_b32 {v(t+3)}, 4, {v(t+3)}", f"v_lshl_add_u32 {v(VV)}, {v(t+4)}, 8, {v(t+3)}")
    B(f"v_lshlrev_b32 {v(t+4)}, 8, {v(c_)}", f"v_lshl_add_u32 {v(t+4)}, {v(r_)}, 12, {v(t+4)}")
    for k in range(4): B(f"v_or_b32 {v(t+3)}, {s(76+k)}, {v(g_)}", f"v_xor_b32 {v(t+3)}, {v(t+3)}, {v(i_)}", f"v_lshl_add_u32 {v(RK+k)}, {v(t+3)}, 4, {v(t+4)}")
    B(f"v_lshl_add_u32 {v(t+4)}, {v(g_)}, 4, {v(r_)}", f"v_lshlrev_b32 {v(t+4)}, 8, {v(t+4)}", f"v_lshl_add_u32 {v(t+4)}, {v(c_)}, 3, {v(t+4)}",
      f"v_add_u32 {v(t+4)}, {VBASE}, {v(t+4)}", f"v_and_b32 {v(t+7)}, 1, {v(g_)}", f"v_lshl_or_b32 {v(t+7)}, {v(t+7)}, 2, {v(r_)}")
    for k in range(8): B(f"v_xor_b32 {v(t+3)}, {k}, {v(t+7)}", f"v_lshl_add_u32 {v(RV+k)}, {v(t+3)}, 5, {v(t+4)}")
    rload = [f"buffer_load_dwordx2 {v(LW+2*i,2)}, {v(LWA)}, {ST}, 0 offen offset:{256*i}" for i in range(5)]
    rest = ln_rest()
    k = rest.index(f"v_lshlrev_b32 {v(LS+6)}, 16, {v(LW)}")
    lnr = [(x, "l1") for x in ln_stats()] + [(x, "lw") for x in rload] + [(sc1, None), (sc3, None), (sc4, None)] + [(x, None) for x in B.L] + \
          [(x, "l2") for x in rest[:k]] + [("@lw", None)] + [(x, "l2") for x in rest[k:]] + [(sc2, None)] + \
          [(f"v_accvgpr_write_b32 {a(32 + i)}, 0", None) for i in range(96)]
    def w_read(G, sx, p):
        kt, T = divmod(G, 8)
        return f"ds_read_b64_tr_b16 {a(8*(G%4)+4*sx+2*p,2)}, {v(RW+T//2)} offset:{wslot(kt)*16384 + sx*8192 + p*1024 + 8*(T&1)}"
    def x_read(kt, q, sx): return f"ds_read_b128 {a(xb(kt,q,sx),4)}, {v(RX+2*(kt&1)+sx)} offset:{2048*q}"
    A(*vm.wait([("w", 0), ("x", 0)])); A("s_barrier")
    stamp(A, "q0", stamps)
    for sx in range(2):
        for p in range(2): A(w_read(0, sx, p))
    for q in range(4):
        for sx in range(2): A(x_read(0, q, sx))
    for sx in range(2):
        for p in range(2): A(w_read(1, sx, p))
    A("s_waitcnt lgkmcnt(4)")
    state = [(I(w_read(1, sx, p)).w, -8) for sx in range(2) for p in range(2)]
    apoll = f"buffer_load_dword {v(t+12)}, {v(t+13)}, {SDB}, 0 offen sc1"
    for kt in range(10):
        st = Stream(); pos = {}
        for T in range(8):
            af = 8 * ((kt * 8 + T) % 4)
            for q in range(4):
                for sx in range(2):
                    c = 0 if (kt == 0 and sx == 0) else v(acc(q, T), 4)
                    pos[T, 2*q + sx] = st.add(f"{MF} {v(acc(q,T),4)}, {a(af+4*sx,4)}, {a(xb(kt,q,sx),4)}, {c}")
            if T < 2:
                for sx in range(2):
                    c = 0 if (kt == 0 and sx == 0) else v(CSA + 4*T, 4)
                    pos[T, 8 + sx] = st.add(f"{MF} {v(CSA+4*T,4)}, {a(af+4*sx,4)}, {v(ONES,4)}, {c}")
        last = len(st.mf) - 1
        for T in range(8):
            G = kt * 8 + T + 2
            if G < 80:
                for k in range(4): st.mem[pos[T, 2 * k if QS else 1 + k]].append(w_read(G, k >> 1, k & 1))
        def place(ops, slots, tag):
            for (m0, so, x), g in zip(ops, slots):
                assert not {g - 1, g, g + 1} & set(st.tagq), (kt, g)
                st.sc[max(g - 1, 0)].append(m0)
                st.sc[g].append(so if so else "s_nop 0")
                st.mem[g].append(x); st.tagq.setdefault(g, []).append(tag)
        def x_ops(k):
            return [(f"s_add_u32 m0, s75, {(XA, XB)[k & 1] + 2048*(i >> 1)}", f"s_mov_b32 s62, {k*128 + 20480*(i >> 1)}",
                     f"buffer_load_dwordx4 {v(VX + (i & 1))}, {SX}, s62 offen offset:{1024*(i & 1)} {XNT} lds") for i in range(8)]
        def w_ops(k):
            return [(f"s_add_u32 m0, s33, {VBASE + wslot(k)*16384}", f"s_mov_b32 s32, {k*524288 + i*31744}",
                     f"buffer_load_dwordx4 {v(VW)}, {SW}, s32 offen offset:{1024*i} {NT} lds") for i in range(4)]
        def v_ops(j): return [(v_m0(j), f"s_mov_b32 s35, {16384*j}", v_dma(i)) for i in range(4)]
        def k_ops(j): return [(k_m0(j), f"s_mov_b32 s34, {16384*j}", k_dma(i)) for i in range(4)]
        m = kt + 1
        def ring(mm):
            return (w_ops(mm + 2), ("w", mm + 2)) if mm <= 7 else (v_ops(mm - 8), ("v", mm - 8))
        if kt == 0:
            place(x_ops(2), [0, 3, 8, 11, 17, 19, 21, 23] if QS else [0, 2, 4, 10, 18, 20, 22, 25], ("x", 2))
            place(w_ops(2), [5, 13, 25, 31] if QS else [7, 13, 15, 30], ("w", 2))
        else:
            ops, tag = ring(kt); place(ops[2:], [8, 17] if QS else [0, 10], tag)
        kk = {6: 0, 7: 1, 9: 2}.get(kt)
        if kk is not None: place(k_ops(kk), [19, 21, 23, 25] if QS else [18, 20, 22, 25], ("k", kk))
        if kt < 9:
            st.pre[pos[0, 4]].append([("x", kt + 1)] + (["lx"] if kt == 0 else []))
            sx_ = [5, 7, 9, 11, 13, 15, 18, 19] if QS else [pos[0, k] for k in range(5, 10)] + [pos[1, k] for k in range(5, 8)]
            xr = set()
            for k in range(8):
                x = x_read(kt + 1, k >> 1, k & 1); st.mem[sx_[k]].append(x); xr |= I(x).w
            st.force[25] = xr
        if kt + 3 < 10: place(x_ops(kt + 3), [29, 33, 37, 41, 45, 49, 57, 65] if QS else [27, 33, 36, 41, 44, 49, 57, 62], ("x", kt + 3))
        need = ([("w", m)] if m < 10 else []) + ([("k", 0)] if m == 9 else []) + (["l1"] if m == ASIG else []) + (["l2"] if m == 10 else [])
        gb = pos[5, 7]
        ops, tag = ring(m)
        place(ops[:2] if m < 10 else ops, ([53, 61] if QS else [53, 60]) if m < 10 else [53, 55, 57, 59], tag)
        if m == 10:
            place(k_ops(3), [61, 63, 65, 67], ("k", 3))
            st.va[last] += ["s_mov_b32 s34, 0x10000", "s_mov_b32 s35, 0xc000"]
        for g in range(pos[0, 5] if kt == 0 else 0, last + 1):
            if any(x.startswith("buffer") for x in st.mem[g]): continue
            n = len(st.mem[g])
            while lnr and n < 2:
                x, tag = lnr.pop(0)
                if isinstance(x, list): st.va[g] += x; break
                if x == "@lw": st.va[g].append(["lw"]); continue
                st.va[g].append(x); n += 0 if x.startswith("s_nop") else 1
                if x.startswith("buffer"): st.tag[x] = tag; break
        if kt == 5: assert not any(x in B.L for x, tag in lnr if isinstance(x, str))
        if m == 8: st.va[gb] += w0_only("APOLLW", ["@poll"] + spin("APOLL", apoll, v(t+12), "32"))
        st.va[gb] += stampl(f"q{kt}b", stamps)
        if need: st.va[gb].append(need)
        st.va[gb] += stampl(f"q{kt}c", stamps)
        st.va[gb].append("s_barrier")
        if m == ASIG:
            assert not any(tag == "l1" for x, tag in lnr)
            st.va[gb] += ["s_lshr_b32 s72, s63, 2", "s_mul_i32 s72, s72, 112", "s_lshl_b32 s73, s63, 2", "s_add_u32 s72, s72, s73", f"v_mov_b32 {v(t+13)}, s72"] + \
                         w0_only("ASIGW", ["s_mov_b32 s73, 1", f"s_atomic_add s73, {s(PDBG,2)}, s72"])
        if m == 7: st.va[gb] += w0_only("APOL0W", [apoll, "@mark"])
        if m == 10:
            assert not lnr
            st.va[gb] += w0_only("BSIGW", ["s_and_b32 s72, s2, 1", "s_lshl_b32 s72, s72, 7", f"s_add_u32 s72, s72, {DBG_B}"] + signal("s72"))
        if m == 8:
            st.va[54] += [f"v_and_b32 {v(t+12)}, 15, v0", f"v_lshlrev_b32 {v(t+12)}, 3, {v(t+12)}"]
            st.sc[55] += ["s_lshl_b32 s72, s30, 7", f"s_add_u32 s72, s72, {STAT_OFF}"]
            for q, g in enumerate((57, 59, 65, 67)):
                x = f"buffer_load_dwordx2 {v(STT+2*q,2)}, {v(t+12)}, {SWS}, s72 offen offset:{128*q} sc1"
                st.mem[g].append(x); st.tag[x] = "st"
        if kt == 9:
            sl = [pos[T, k] for T in range(6) for k in ((1, 3, 7) if QS else (5, 6, 7))]
            for k in range(16): st.mem[sl[k]].append(k_read(0, k >> 2, k & 3))
        st.resolve(vm)
        if kt: stamp(A, f"q{kt}", stamps)
        state = st.emit(A, state, nxt0=regs_of(a(0, 4)) | regs_of(a(xb(kt + 1, 0, 0), 4)))
    stamp(A, "q10", stamps)
    A(f"v_lshrrev_b32 {v(t+12)}, 4, v0", f"v_lshlrev_b32 {v(t+12)}, 4, {v(t+12)}", "s_lshl_b32 s72, s28, 7", f"s_add_u32 s72, s72, {FCS}",
      f"v_add_u32 {v(t+13)}, s72, {v(t+12)}", f"v_mov_b32 {v(t+14)}, {FVOTE}", f"v_mov_b32 {v(t+15)}, 0",
      f"ds_write_b128 {v(t+13)}, {v(CSA,4)}", f"ds_write_b128 {v(t+13)}, {v(CSA+4,4)} offset:64", f"ds_write_b32 {v(t+14)}, {v(t+15)}")
    for k in range(4): A(f"s_lshl_b32 s72, {s(76+k)}, 5", f"s_add_u32 s72, s72, {FCS}", f"v_add_u32 {v(ONES+k)}, s72, {v(t+12)}")
    A(*vm.wait(["st"])); A("s_waitcnt lgkmcnt(0)", "s_barrier")
    def cs_read(T): return f"ds_read_b128 {v(CSR+4*(T%3),4)}, {v(ONES+T//2)} offset:{64*(T&1)}"
    A(cs_read(0), cs_read(1))
    for T in range(8):
        if T + 2 < 8: A(cs_read(T + 2))
        A(f"s_waitcnt lgkmcnt({min(2, 7-T)})")
        c = CSR + 4 * (T % 3)
        for q in range(4):
            for h in range(2): A(f"v_pk_mul_f32 {v(t+12+2*h,2)}, {v(c+2*h,2)}, {v(STT+2*q,2)} op_sel:[0,1] op_sel_hi:[1,1]")
            for h in range(2): A(f"v_pk_fma_f32 {v(acc(q,T)+2*h,2)}, {v(acc(q,T)+2*h,2)}, {v(STT+2*q,2)}, {v(t+12+2*h,2)} op_sel_hi:[1,0,1]")
        for q in range(4):
            for h in range(2): A(f"v_cvt_pk_bf16_f32 {v(Q+16*q+2*T+h)}, {v(acc(q,T)+2*h)}, {v(acc(q,T)+2*h+1)}")
    TMP = J
    for q in range(4):
        for tt in range(4):
            A(f"{MF} {v(TMP+4*q,4)}, {a(kf(0,tt),4)}, {v(qf(q,tt),4)}, {v(TMP+4*q,4) if tt else 0}")
            for i in range(2): A(f"v_accvgpr_write_b32 {a(8*q + 2*tt + i)}, 0")
    clear_sums(A)
    for q in range(4):
        A(f"v_max3_f32 {v(TMP+4*q)}, {v(TMP+4*q)}, {v(TMP+4*q+1)}, {v(TMP+4*q+2)}", f"v_max_f32 {v(TMP+4*q)}, {v(TMP+4*q)}, {v(TMP+4*q+3)}")
    negm_from_max(A, [TMP + 4*q for q in range(4)])
    A("s_movk_i32 s49, 0xfc", "s_mov_b32 s63, 0")
    A("ATT:", "s_nop 1")
    for kt in range(4):
        for tt in range(4):
            A(f"{MF} {v(S+4*kt,4)}, {a(kf(kt,tt),4)}, {v(qf(0,tt),4)}, {v(S+4*kt,4) if tt else v(NM,4)}")
    A("s_mov_b32 s62, 8")
    stamp(A, "att", stamps)
    if stamps: A("s_memtime s[96:97]")
    st = main_loop()
    state = st.emit(None, [])
    A(".p2align 5", "LOOPW:", "s_waitcnt vmcnt(16)", "LOOP:")
    b0 = len(A.L)
    assert state == st.emit(A, state)
    A("s_sub_u32 s62, s62, 1", "s_cmp_eq_u32 s62, 0", "s_cbranch_scc1 LOOPX", "s_bitcmp1_b32 s49, s62", "s_cbranch_scc0 LOOPW", "s_branch SIDE", "LOOPX:")
    body = A.L[b0:]
    stamp(A, "loopx", stamps)
    if stamps: A("s_memtime s[98:99]")
    vm = VM(24)
    tail = []
    for dt in range(8):
        for h in range(2): tail.append(f"{MF} {a(of(dt,3),4)}, {a(vf(h,dt),4)}, {v(P+8+4*h,4)}, {a(of(dt,3),4)}")
    ls = [L + 2*q for q in range(4)]
    B = Asm()
    if 3 in CONV:
        tail = [f"{MF} {v(la(3),4)}, {v(LONE,4)}, {v(P+8+4*h,4)}, {v(la(3),4)}" for h in range(2)] + tail
        B("s_nop 0", "s_nop 0", "s_nop 0", "s_nop 0", "s_nop 0", "s_nop 0", "s_nop 0", "s_nop 0", "s_nop 0")
    for q in range(4): B(f"v_mov_b32 {v(ls[q])}, {v(la(q))}" if q in CONV else f"v_add_f32 {v(ls[q])}, {v(ls[q])}, {v(ls[q]+1)}")
    xgroup_multi(B, [ls[q] for q in range(4) if q not in CONV], [t + i for i in range(4)], "v_add_f32")
    B(f"v_add_f32 {v(t+1)}, {v(ls[0])}, {v(ls[1])}", f"v_add_f32 {v(t+2)}, {v(ls[2])}, {v(ls[3])}", f"v_add_f32 {v(t+1)}, {v(t+1)}, {v(t+2)}",
      f"s_mov_b32 s72, {LMAX}", f"v_cmp_nge_f32 vcc, s72, {v(t+1)}", f"v_mov_b32 {v(t+2)}, {FVOTE}", f"v_mov_b32 {v(t+3)}, 1")
    for q in range(4): B(f"v_rcp_f32 {v(ls[q])}, {v(ls[q])}")
    for i, m in enumerate(tail):
        A(m); A(*B.L[3*i:3*i+3])
    assert len(B.L) <= 3 * len(tail)
    A("s_and_saveexec_b64 s[72:73], vcc", f"ds_write_b32 {v(t+2)}, {v(t+3)}", "s_mov_b64 exec, s[72:73]")
    early = [(x, ("a", k)) for k in range(6, 6 + EARLY) for x in a_loads(k, k)]
    for e in range(4):
        A(f"s_mov_b32 s72, {e*131072}")
        for q in range(4):
            w = S + 12 * (q & 1)
            for b in range(2):
                for r in range(4): A(f"v_accvgpr_read_b32 {v(w+4*b+r)}, {a(of(2*e+b,q)+r)}")
            for i in range(4): A(f"v_pk_mul_f32 {v(w+2*i,2)}, {v(w+2*i,2)}, {v(ls[q],2)} op_sel_hi:[1,0]")
            for i in range(4): A(f"v_cvt_pk_bf16_f32 {v(w+8+i)}, {v(w+2*i)}, {v(w+2*i+1)}")
            put(A, vm, [f"buffer_store_dwordx4 {v(w+8,4)}, {v(L16)}, {SO}, s72 offen offset:{1024*q} sc1"], "o")
            while early:
                x, tag = early.pop(0); put(A, vm, [x], tag)
                if x.startswith("buffer"): break
        if e == 0: A("s_waitcnt lgkmcnt(0)", "s_barrier", f"ds_read_b32 {v(t+3)}, {v(t+2)}")
    stamp(A, "ost", stamps)
    A("s_waitcnt lgkmcnt(0)", f"v_readfirstlane_b32 s72, {v(t+3)}", f"v_mov_b32 {v(t+8)}, 1", f"v_mov_b32 {v(t+9)}, s74",
      "s_andn2_b32 s72, s72, s63", "s_cmp_lg_u32 s72, 0", "s_cbranch_scc1 REDO")
    stamp(A, "vote", stamps)
    assert not early
    weave(A, vm, [(a_loads(k, k), ("a", k)) for k in range(6)], ffn_part1(), 2)
    A("s_barrier")
    A(*vm.wait(["o"]))
    stamp(A, "drain", stamps)
    A("s_mov_b64 exec, 1"); put(A, vm, [f"buffer_store_dword {v(t+8)}, {v(t+9)}, {SWS}, 0 offen sc1"], "f"); A("s_mov_b64 exec, -1")
    oproj(A, vm, stamps)
    if stamps:
        A("s_memrealtime s[62:63]", "s_waitcnt lgkmcnt(0)", "s_sub_u32 s96, s98, s96")
        srd(A, 68, PWS, STAMP_OFF, 0x10000)
        A("s_lshl_b32 s72, s2, 2", "s_add_u32 s72, s72, s28", "s_lshl_b32 s72, s72, 6", f"v_mov_b32 {v(t)}, s72", "s_mov_b64 exec, 1")
        for i, r in enumerate([80 + 2*k for k in range(8)] + [62, 96]):
            A(f"v_mov_b32 {v(t+1)}, {s(r)}", f"buffer_store_dword {v(t+1)}, {v(t)}, {ST}, 0 offen offset:{4*i}", "s_nop 1")
    A("END:", "s_endpgm")
    B = Asm(); side_jobs(B)
    cur = None
    for x in B.L:
        if x in ("s_branch LOOP", "s_branch CHK") and cur: stamp(A, cur + "x", stamps)
        A(x)
        if x.endswith(":") and x[:-1] in [f"JOB{i}" for i in range(7)]:
            cur = x[:-1]; stamp(A, cur, stamps)
    A("REDO:", "s_mov_b32 s63, 1", "s_mov_b32 s49, 0", "s_mov_b32 s34, 0", "s_mov_b64 s[4:5], s[38:39]", "s_mov_b64 s[8:9], s[40:41]", "s_waitcnt vmcnt(0)")
    TMP = J + 20
    M = TMP + 16
    for q in range(4): A(f"v_mov_b32 {v(M+q)}, 0xff800000")
    A("MAXL:", "s_barrier", k_m0(0), "s_nop 0")
    for i in range(4): A(k_dma(i))
    A("s_add_u32 s34, s34, 16384", "s_waitcnt vmcnt(0)", "s_barrier")
    for kt in range(4):
        for tt in range(4): A(k_read(0, kt, tt))
        if kt == 1: A("s_waitcnt lgkmcnt(0)")
    A("s_waitcnt lgkmcnt(0)")
    for q in range(4):
        for kt in range(4):
            for tt in range(4): A(f"{MF} {v(TMP+4*kt,4)}, {a(kf(kt,tt),4)}, {v(qf(q,tt),4)}, {v(TMP+4*kt,4) if tt else 0}")
        A("s_nop 7")
        for i in range(8): A(f"v_max3_f32 {v(M+q)}, {v(M+q)}, {v(TMP+2*i)}, {v(TMP+2*i+1)}")
    A("s_cmp_lt_u32 s34, 0x80000", "s_cbranch_scc1 MAXL")
    negm_from_max(A, [M + q for q in range(4)])
    for i in range(128): A(f"v_accvgpr_write_b32 {a(i)}, 0")
    clear_sums(A)
    A("s_mov_b32 s34, 0", "s_mov_b32 s35, 0", "s_barrier")
    for j in range(4):
        if j > 0:
            A(v_m0(j - 1), "s_nop 0")
            for i in range(4): A(v_dma(i))
            A("s_add_u32 s35, s35, 16384")
        A(k_m0(j), "s_nop 0")
        for i in range(4): A(k_dma(i))
        A("s_add_u32 s34, s34, 16384")
    A("s_waitcnt vmcnt(24)", "s_barrier")
    for kt in range(4):
        for tt in range(4): A(k_read(0, kt, tt))
        if kt == 1: A("s_waitcnt lgkmcnt(0)")
    A("s_waitcnt lgkmcnt(0)", "CODE1:", "s_branch ATT")
    return A, body
```

```python
import random, math

def schedule(conv, lat=8, seed=1, iters=400000, bar=0, wds=0.35, dlo=0):
    slots = []; qk = {}; pv = {}; w0 = {}; wend = {}
    for q in range(4):
        w0[q] = len(slots)
        for f in range(16): qk[q, f] = len(slots); slots.append(("qk", q, f))
        for f in range(16): pv[q, f] = len(slots); slots.append(("pv", q, f))
        if (q - 1) % 4 in conv:
            for h in range(2): slots.append(("l", q, h))
        wend[q] = len(slots) - 1
    N = len(slots)
    items = {}
    for q in range(4):
        for i in range(16):
            items["e", q, i] = [w0[q], wend[q] - 1, 2, [("e", q, i - 1)] if i else []]
            if q not in conv: items["a", q, i] = [w0[q] + 1, wend[q], 1, [("e", q, i)]]
            if i & 1: items["c", q, i] = [w0[q] + 1, wend[q], 1, [("e", q, i)]]
    for f in range(16):
        for p in range(2): items["v", f, p] = [max(pv[0, f], bar + 1), pv[1, f] - lat, 1, []]
        items["k", f] = [qk[2, f], qk[3, f] - lat, 1, []]
    for i in range(8): items["d", i] = [max(bar + 6, dlo), N - 2, 2, [("d", i - 1)] if i else []]
    gapreq = {}
    for n, it in items.items():
        for a in it[3]: gapreq[a, n] = 1
    for i in range(1, 8): gapreq[("d", i - 1), ("d", i)] = 7 if i == 4 else 3
    succ = {n: [] for n in items}
    for (a, b) in gapreq: succ[a].append(b)
    pos = {}
    for q in range(4):
        for i in range(16):
            pos["e", q, i] = w0[q] + 2 * i
            if q not in conv: pos["a", q, i] = w0[q] + 2 * i + 1
            if i & 1: pos["c", q, i] = w0[q] + 2 * i + 1
    for f in range(16):
        for p in range(2): pos["v", f, p] = min(items["v", f, p][1], pv[0, 0] + 1 + 2 * f + p)
        pos["k", f] = min(items["k", f][1], qk[2, 0] + 1 + 2 * f)
    for i in range(8): pos["d", i] = max(bar + 6, dlo) + 7 * i
    load = [0] * N; nds = [0] * N
    def wt(n): return {'v': 1, 'k': 2}.get(n[0], 0)
    for n, g in pos.items():
        load[g] += items[n][2]
        nds[g] += wt(n)
    def pair(g): return wds * max(0, nds[g] + nds[g - 1] - 2)
    def gcost(g): return max(0, load[g] - 2)
    def local(g0, g1): return gcost(g0) + gcost(g1) + sum(pair(g % N) for g in {g0, (g0 + 1) % N, g1, (g1 + 1) % N})
    rnd = random.Random(seed); names = list(items)
    cost = sum(gcost(g) + pair(g) for g in range(N)); best = (cost, dict(pos))
    for it in range(iters):
        T = 0.6 * (1 - it / iters) + 0.02
        n = rnd.choice(names); lo, hi, u, aft = items[n]
        for a in aft: lo = max(lo, pos[a] + gapreq[a, n])
        for b in succ[n]: hi = min(hi, pos[b] - gapreq[n, b])
        if hi <= lo: continue
        g0 = pos[n]; g1 = rnd.randint(lo, hi)
        if g1 == g0: continue
        c0 = local(g0, g1)
        load[g0] -= u; load[g1] += u
        nds[g0] -= wt(n); nds[g1] += wt(n)
        d = local(g0, g1) - c0 + (0.004 * (g1 - g0) if n[0] == "d" else 0)
        if d <= 0 or rnd.random() < math.exp(-d / T):
            pos[n] = g1; cost += d
            if cost < best[0] - 1e-9: best = (cost, dict(pos))
        else:
            load[g0] += u; load[g1] -= u
            nds[g0] += wt(n); nds[g1] -= wt(n)
    load = [0] * N
    for n, g in best[1].items(): load[g] += items[n][2]
    return slots, best[1], sum(max(0, x - 2) for x in load)

if __name__ == "__main__":
    for conv in ((), (0,), (1,), (0, 1), (1, 2), (0, 2), (0, 1, 2), (0, 1, 2, 3)):
        s, p, c = schedule(conv, iters=200000)
        print(conv, len(s), "overflow", c, "cycles", 16 * len(s) + 4 * c)
```

```python
import os
from core import *
from layout import *
from common import argmax_keys, xgroup_multi
import sched

MF = "v_mfma_f32_16x16x32_bf16"
NAME = "recurrent_scan__mha_block_cached__moe_arch_mod__prompt_kernel"
PX, PK, PV, PWQ, PWO, PWR, PG, PU, PD, POUT, PDBG, PWS = 36, 38, 40, 42, 44, 48, 50, 52, 54, 56, 58, 60
SK, SV, SW, SX, SO, SWS, SDB, ST = "s[4:7]", "s[8:11]", "s[12:15]", "s[16:19]", "s[20:23]", "s[24:27]", "s[64:67]", "s[68:71]"
VK, VV, VW = 1, 2, 3
RK, RV, RW = 4, 8, 16
VX, RX = 20, 22
ONES = 26
L16 = 30
Q, ACC = 32, 96
S, P, NM, L = 96, 128, 144, 160
J = 168
T0 = 240
CSA, CSR, STT = 224, 232, 244
KF, VF = 128, 192
VBASE, SPARE = 65536, 131072
XA, XB = SPARE, 32768
FEX, FH, FVOTE, FCS = SPARE + 7680, SPARE + 8192 + 7680, SPARE + 16384 + 7680, SPARE + 24576 + 7680
LDS = 163840
NFFN, NPACK = 216, 256
SEL, RBITS = 46, 47
ASIG = int(os.environ.get('ASIG', 4))
QS = int(os.environ.get('QS', 1))
QSCALE = 0x3e0293ee
LMAX = 0x5d800000
NLOG2E = 0xbfb8aa3b
DBG_F, DBG_C, DBG_B = 32, 36, 40
LR = int(os.environ.get("MAPLR", 3))
DUMMY = 239
VT = 31
STO = "s[36:39]"
TOUCH = os.environ.get("TOUCH", "a")
PRE = os.environ.get("PRE", "x0,w0,x1,L,C").split(",")
MID = os.environ.get("MID", "w1").split(",")
TPOL = os.environ.get("TPOL", "")

def qf(q, t): return Q + 16 * q + 4 * t
def acc(q, T): return ACC + 32 * q + 4 * T
def kf(kt, t): return KF + 16 * kt + 4 * t
def vf(h, dt): return VF + 32 * h + 4 * dt
def of(dt, q): return 16 * dt + 4 * q
def xb(kt, q, sx): return 192 + 32 * (kt & 1) + 8 * q + 4 * sx
def wslot(kt): return (kt + 2) % 4
KVPOL = os.environ.get("KVPOL", "sc1")
EXP = os.environ.get("EXP", "")
NT = os.environ.get("NT", "")
XNT = os.environ.get("XNT", "")
WSC = os.environ.get("WSC", "sc1")
OSC = os.environ.get("OSC", "sc1")
def k_read(slot, kt, t): return f"ds_read_b128 {a(kf(kt,t),4)}, {v(RK+t)} offset:{slot*16384 + kt*1024}"
def v_read(slot, h, dt, p): return f"ds_read_b64_tr_b16 {a(vf(h,dt)+2*p,2)}, {v(RV+dt)} offset:{slot*16384 + (2*h+p)*1024}"
def k_dma(i): return f"buffer_load_dwordx4 {v(VK)}, {SK}, s34 offen offset:{1024*i} {KVPOL} lds"
def v_dma(i): return f"buffer_load_dwordx4 {v(VV)}, {SV}, s35 offen offset:{1024*i} {KVPOL} lds"
def kv_touch(): return f"buffer_load_dword {v(DUMMY)}, {v(VT)}, {STO}, 0 offen {TPOL}"
def k_m0(slot): return f"s_add_u32 m0, s33, {slot*16384}"
def v_m0(slot): return f"s_add_u32 m0, s33, {VBASE + slot*16384}"

class VM:
    def __init__(self, older=0):
        self.q = [None] * older; self.done = 0
    def issue(self, tag): self.q.append(tag)
    def n_after(self, tags):
        return len(self.q) - 1 - max(i for i, t in enumerate(self.q) if t in tags)
    def wait(self, tags):
        n = self.n_after(tags)
        if len(self.q) - self.done <= n: return []
        self.done = len(self.q) - n
        return [f"s_waitcnt vmcnt({n})"]
    def room(self):
        if len(self.q) - self.done < 62: return []
        self.done = len(self.q) - 56
        return ["s_waitcnt vmcnt(56)"]

class Stream:
    def __init__(self):
        self.mf = []; self.sc = []; self.mem = []; self.va = []; self.force = {}
        self.pre = []; self.tag = {}; self.tagq = {}
    def add(self, m):
        self.mf.append(m); self.sc.append([]); self.mem.append([]); self.va.append([]); self.pre.append([])
        return len(self.mf) - 1
    def resolve(self, vm):
        for g in range(len(self.mf)):
            for need in self.pre[g]: self.sc[g] = vm.wait(need) + self.sc[g]
            tq = list(self.tagq.get(g, []))
            for x in self.mem[g]:
                if x.startswith("buffer"): vm.issue(self.tag[x] if x in self.tag else tq.pop(0))
            out = []
            for x in self.va[g]:
                if isinstance(x, list): out += vm.wait(x)
                elif x == "@mark": vm.mark = len(vm.q)
                elif x == "@poll": out.append(f"s_waitcnt vmcnt({len(vm.q) - vm.mark})")
                else:
                    out.append(x)
                    if x in self.tag: vm.issue(self.tag[x])
            self.va[g] = out
    def emit(self, A, state=None, lag=6, nxt0=None):
        pend = list(state) if state else []
        n = len(self.mf); out = []
        for i in range(n):
            out.append(self.mf[i])
            pre = list(self.sc[i])
            nxt = I(self.mf[i + 1]).ab if i + 1 < n else (I(self.mf[0]).ab if nxt0 is None else nxt0)
            nxt = nxt | self.force.get(i, set())
            hit = [k for k, (rg, t) in enumerate(pend) if rg & nxt]
            if hit:
                k = max(hit)
                while k + 1 < len(pend) and i - pend[k + 1][1] >= lag: k += 1
                left = len(pend) - 1 - k
                assert left <= 15
                pre.insert(0, f"s_waitcnt lgkmcnt({left})")
                pend = pend[k + 1:]
            out += pre
            for m in self.mem[i]:
                out.append(m)
                if m.startswith("ds_read"): pend.append((I(m).w, i))
            out += self.va[i]
        if A is not None: A(*out)
        return [(rg, t - n) for rg, t in pend]

def stamp(A, k, on):
    A(*stampl(k, on))

def stampl(k, on):
    return [f"{'s_memtime' if os.environ.get('CYC') else 's_memrealtime'} {s(80+2*on.index(k),2)}"] if on and k in on else []

def allred32(A, x, t, op):
    for r in (8, 4, 2, 1):
        A("s_nop 1", f"{op}_dpp {v(x)}, {v(x)}, {v(x)} row_ror:{r} row_mask:0xf bank_mask:0xf")
    A(f"v_mov_b32 {v(t)}, {v(x)}", "s_nop 1", f"v_permlane16_swap_b32 {v(x)}, {v(t)}", "s_nop 1", f"{op} {v(x)}, {v(x)}, {v(t)}")

def rbf(A, x):
    A(f"v_cvt_pk_bf16_f32 {v(x)}, {v(x)}, {v(x)}", f"v_lshlrev_b32 {v(x)}, 16, {v(x)}")

def w0_only(label, lines):
    return ["s_cmp_lg_u32 s28, 0", f"s_cbranch_scc1 {label}"] + lines + [f"{label}:"]

def signal(off):
    return ["s_mov_b64 exec, 1", f"v_mov_b32 {v(T0+14)}, 1", f"v_mov_b32 {v(T0+15)}, {off}",
            f"buffer_atomic_add {v(T0+14)}, {v(T0+15)}, {SDB}, 0 offen sc1", "s_mov_b64 exec, -1"]

def spin(label, reload_, val, expect, mask=None):
    m = [f"s_and_b64 vcc, vcc, {mask}"] if mask else []
    return [f"s_mov_b32 s32, {os.environ.get('SPINCAP', '0x100000')}", f"{label}:", f"v_cmp_gt_u32 vcc, {expect}, {val}", "s_sub_u32 s32, s32, 1", f"s_cbranch_scc1 {label}_OK"] + m + \
           [f"s_cbranch_vccz {label}_OK", "s_sleep 1", reload_, "s_waitcnt vmcnt(0)", f"s_branch {label}", f"{label}_OK:"]

ROW, PP, LXA, LWA, LSA = 32, 33, 34, 35, 36
LX, LW, LF, LS, LD = 40, 50, 60, 80, 90

def ln_unpack(d, x):
    o = []
    for i in range(10): o += [f"v_lshlrev_b32 {v(d+2*i)}, 16, {v(x+i)}", f"v_and_b32 {v(d+2*i+1)}, s101, {v(x+i)}"]
    return o

def ln_stats():
    t = 37
    B = Asm()
    B(*ln_unpack(LF, LX))
    for i in range(10): B(f"v_add_f32 {v(LS+i)}, {v(LF+2*i)}, {v(LF+2*i+1)}")
    for i in range(5): B(f"v_add_f32 {v(LS+i)}, {v(LS+i)}, {v(LS+5+i)}")
    B(f"v_add_f32 {v(LS)}, {v(LS)}, {v(LS+1)}", f"v_add_f32 {v(LS+2)}, {v(LS+2)}, {v(LS+3)}", f"v_add_f32 {v(LS)}, {v(LS)}, {v(LS+4)}", f"v_add_f32 {v(LS)}, {v(LS)}, {v(LS+2)}")
    allred32(B, LS, LS + 1, "v_add_f32")
    M, R = LS, LS + 2
    B(f"v_mul_f32 {v(M)}, s100, {v(M)}")
    for i in range(0, 20, 4):
        for k in range(4): B(f"v_sub_f32 {v(LD+k)}, {v(LF+i+k)}, {v(M)}")
        for k in range(4): B(f"{'v_fmac_f32' if i else 'v_mul_f32'} {v(R+k)}, {v(LD+k)}, {v(LD+k)}")
    B(f"v_add_f32 {v(R)}, {v(R)}, {v(R+1)}", f"v_add_f32 {v(R+2)}, {v(R+2)}, {v(R+3)}", f"v_add_f32 {v(R)}, {v(R)}, {v(R+2)}")
    allred32(B, R, R + 1, "v_add_f32")
    B(f"v_mul_f32 {v(R)}, s100, {v(R)}")
    rbf(B, M); rbf(B, R)
    B(f"v_add_f32 {v(R)}, 0x3727c5ac, {v(R)}"); rbf(B, R)
    B(f"v_sqrt_f32 {v(R)}, {v(R)}", "s_nop 0"); rbf(B, R)
    B(f"v_rcp_f32 {v(R)}, {v(R)}", f"v_lshlrev_b32 {v(t)}, 3, {v(ROW)}", f"v_add_u32 {v(t)}, {STAT_OFF}, {v(t)}")
    B(f"v_mul_f32 {v(LS+6)}, {QSCALE}, {v(R)}", f"v_mul_f32 {v(LS+7)}, {v(M)}, {v(LS+6)}", f"v_sub_f32 {v(LS+7)}, 0, {v(LS+7)}")
    B(f"buffer_store_dwordx2 {v(LS+6,2)}, {v(t)}, {SWS}, 0 offen sc1")
    return B.L

def ln_rest():
    t = 37
    M, R = LS, LS + 2
    B = Asm()
    for i in range(20): B(f"v_sub_f32 {v(LF+i)}, {v(LF+i)}, {v(M)}")
    for i in range(10): B(f"v_cvt_pk_bf16_f32 {v(LX+i)}, {v(LF+2*i)}, {v(LF+2*i+1)}")
    B(*ln_unpack(LF, LX))
    for i in range(20): B(f"v_mul_f32 {v(LF+i)}, {v(LF+i)}, {v(R)}")
    for i in range(10): B(f"v_cvt_pk_bf16_f32 {v(LX+i)}, {v(LF+2*i)}, {v(LF+2*i+1)}")
    un = ln_unpack(LF, LX)
    for i in range(5): B(f"buffer_store_dwordx2 {v(LX+2*i,2)}, {v(LXA)}, {SWS}, 0 offen offset:{256*i} sc1", *un[4*i:4*i+4])
    u = LS + 6
    for i in range(10):
        B(f"v_lshlrev_b32 {v(u)}, 16, {v(LW+i)}", f"v_and_b32 {v(u+1)}, s101, {v(LW+i)}")
        op = "v_mul_f32" if i < 2 else "v_fmac_f32"
        B(f"{op} {v(R+2*(i&1))}, {v(LF+2*i)}, {v(u)}", f"{op} {v(R+2*(i&1)+1)}, {v(LF+2*i+1)}, {v(u+1)}")
    B(f"v_add_f32 {v(R)}, {v(R)}, {v(R+1)}", f"v_add_f32 {v(R+2)}, {v(R+2)}, {v(R+3)}", f"v_add_f32 {v(R)}, {v(R)}, {v(R+2)}")
    allred32(B, R, R + 1, "v_add_f32")
    k, u = R, R + 1
    B(f"v_cvt_pk_bf16_f32 {v(k)}, {v(k)}, {v(k)}", f"v_ashrrev_i32 {v(u)}, 31, {v(k)}", f"v_and_b32 {v(u)}, 0x7fff, {v(u)}", f"v_or_b32 {v(u)}, 0x8000, {v(u)}",
      f"v_and_b32 {v(k)}, 0xffff, {v(k)}", f"v_xor_b32 {v(k)}, {v(k)}, {v(u)}", f"v_sub_u32 {v(u)}, 2047, {v(ROW)}", f"v_lshl_or_b32 {v(k)}, {v(k)}, 11, {v(u)}",
      f"v_mov_b32 {v(u)}, {v(k)}", f"v_lshrrev_b32 {v(t)}, 1, {v(ROW)}", f"v_lshlrev_b32 {v(t)}, 2, {v(t)}", f"v_permlane32_swap_b32 {v(k)}, {v(u)}",
      f"v_add_u32 {v(t)}, {KEY_OFF}, {v(t)}", "s_nop 0", f"v_max_u32 {v(k)}, {v(k)}, {v(u)}", f"buffer_store_dword {v(k)}, {v(t)}, {SWS}, 0 offen sc1")
    B(f"v_mov_b32 {v(u)}, 0", f"v_mov_b32 {v(t)}, s74", f"buffer_store_dword {v(u)}, {v(t)}, {SWS}, 0 offen sc1")
    B(f"v_lshl_add_u32 {v(t)}, v0, 2, s47", f"buffer_store_dword {v(u)}, {v(t)}, {SWS}, 0 offen sc1")
    return B.L

CONV = tuple(int(c) for c in os.environ.get("CONV", "01"))
LONE, LA = J + 40, J + 48
DLO = int(os.environ.get("DLO", 64))
GUS = int(os.environ.get("GUS", 1))
BAR = int(os.environ.get("BAR", 16))
def la(q): return LA + 4 * CONV.index(q)

def main_loop():
    plans = {dlo: sched.schedule(CONV, lat=int(os.environ.get("LAT", 8)), bar=BAR, seed=int(os.environ.get("SEED", 1)), wds=float(os.environ.get("WDS", 0.9)), dlo=dlo)
             for dlo in {0, DLO}}
    print("loop overflow units", [p[2] for p in plans.values()], [[p[1]["d", i] for i in range(8)] for p in plans.values()])
    st = Stream()
    for tile in range(4):
        slots, pos, over = plans[0 if tile else DLO]
        base = len(st.mf)
        for kind, q, f in slots:
            qn, qp = (q + 1) % 4, (q - 1) % 4
            sb = S + 16 * ((q + 1) % 2); pb = P + 8 * ((q - 1) % 2)
            if kind == "qk":
                kt, t = divmod(f, 4)
                st.add(f"{MF} {v(sb+4*kt,4)}, {a(kf(kt,t),4)}, {v(qf(qn,t),4)}, {v(NM+4*qn,4) if t == 0 else v(sb+4*kt,4)}")
            elif kind == "pv":
                dt, h = divmod(f, 2)
                st.add(f"{MF} {a(of(dt,qp),4)}, {a(vf(h,dt),4)}, {v(pb+4*h,4)}, {a(of(dt,qp),4)}")
            else:
                st.add(f"{MF} {v(la(qp),4)}, {v(LONE,4)}, {v(pb+4*f,4)}, {v(la(qp),4)}")
        for n, g in sorted(pos.items(), key=lambda x: (x[1], x[0][0] != "e", x[0][1:])):
            g += base
            if n[0] in "eac":
                q, i = n[1:]; sc = S + 16 * (q % 2); pc = P + 8 * (q % 2); l = L + 2 * q + (i & 1)
                st.va[g].append({"e": f"v_exp_f32 {v(sc+i)}, {v(sc+i)}", "a": f"v_add_f32 {v(l)}, {v(l)}, {v(sc+i)}",
                                 "c": f"v_cvt_pk_bf16_f32 {v(pc + i//2)}, {v(sc+i-1)}, {v(sc+i)}"}[n[0]])
            elif n[0] == "v": st.mem[g].append(v_read(tile, n[1] & 1, n[1] >> 1, n[2]))
            elif n[0] == "k": st.mem[g].append(k_read((tile + 1) % 4, n[1] >> 2, n[1] & 3))
            else: st.mem[g].insert(0, v_dma(n[1]) if n[1] < 4 else k_dma(n[1] - 4))
        if tile: st.sc[base + BAR - 1] += ["s_waitcnt vmcnt(16)"]
        st.sc[base + BAR] += ["s_barrier"]
        g = base + pos["d", 0] - 5
        for i, x in enumerate(["s_cmp_lt_u32 s35, 0x80000", "s_cselect_b32 s8, s40, s36", "s_cselect_b32 s9, s41, s37", "s_cselect_b32 s3, 0x4000, s48", v_m0((tile + 3) % 4)]):
            st.sc[g + i].append(x)
        g = base + pos["d", 4] - 6
        for i, x in enumerate(["s_add_u32 s35, s35, s3", "s_cmp_lt_u32 s34, 0x80000", "s_cselect_b32 s4, s38, s42", "s_cselect_b32 s5, s39, s43", "s_cselect_b32 s3, 0x4000, s48", k_m0(tile)]):
            st.sc[g + i].append(x)
        st.sc[base + pos["d", 7] + 1].append("s_add_u32 s34, s34, s3")
    return st

def clear_sums(A):
    for i in range(8): A(f"v_mov_b32 {v(L+i)}, 0")
    for i in range(8): A(f"v_mov_b32 {v(P+8+i)}, 0")
    for q in CONV:
        for i in range(4): A(f"v_mov_b32 {v(la(q)+i)}, 0")
    if CONV:
        for i in range(4): A(f"v_mov_b32 {v(LONE+i)}, 0x3f803f80")

def negm_from_max(A, ms):
    xgroup_multi(A, ms, [T0 + i for i in range(4)], "v_max_f32")
    for q in range(4):
        for r in range(4): A(f"v_sub_f32 {v(NM+4*q+r)}, 0, {v(ms[q])}")

def div_rows(A, d, i, per, magic, stride, t):
    A(f"v_add_u32 {v(t)}, {64*i}, v0", f"v_mul_u32_u24 {v(t+1)}, {magic}, {v(t)}", f"v_lshrrev_b32 {v(t+1)}, 16, {v(t+1)}",
      f"v_mul_u32_u24 {v(t+2)}, {per}, {v(t+1)}", f"v_sub_u32 {v(t+2)}, {v(t)}, {v(t+2)}", f"v_lshlrev_b32 {v(t+2)}, 4, {v(t+2)}",
      f"v_mul_u32_u24 {v(t+1)}, {stride}, {v(t+1)}", f"v_add_u32 {v(d)}, {v(t+1)}, {v(t+2)}")

XRP, XNP = (22, 24, 26, 28, 18), (16, 232, 234, 236, 252)
VXO = 31
XS, WF, GA = J, J + 20, J + 40
DBGV, DBGA = J + 46, J + 47

def side_jobs(A):
    t = T0
    dbg_load = f"buffer_load_dword {v(DBGV)}, {v(DBGA)}, {SDB}, 0 offen sc1"
    A("SIDE:", "s_waitcnt vmcnt(16)")
    for it in (1, 2, 3, 4, 5): A(f"s_cmp_eq_u32 s62, {7-it}", f"s_cbranch_scc1 JOB{it}")
    def two_counters(off): return [f"v_and_b32 {v(DBGA)}, 1, v0", f"v_lshlrev_b32 {v(DBGA)}, 7, {v(DBGA)}", f"v_add_u32 {v(DBGA)}, {off}, {v(DBGA)}", dbg_load]
    A("JOB0:", "s_lshl_b32 s75, s28, 13", f"s_add_u32 s75, s75, {SPARE}")
    div_rows(A, J + 44, 0, 10, 6554, 1280, t)
    srd(A, 68, PWO, 0, 4096 * 1280)
    A("s_lshr_b32 s73, s2, 1", "s_and_b32 s72, s2, 1", "s_lshl_b32 s72, s72, 2", "s_add_u32 s72, s72, s28",
      f"s_mul_i32 s76, s73, {32*1280}", "s_mul_i32 s77, s72, 160", "s_add_u32 s76, s76, s77",
      f"s_mul_i32 s77, s72, {128*5120}", "s_mul_i32 s73, s73, 5120", "s_add_u32 s77, s77, s73")
    for i in range(6):
        A(f"s_add_u32 m0, s75, {i*1024}", "s_nop 0" if i == 0 else f"s_add_u32 s76, s76, {6*1280}", f"buffer_load_dwordx4 {v(J+44)}, {ST}, s76 offen {NT} lds")
    A(*two_counters(DBG_B)); A("s_branch LOOP")
    A("JOB1:", f"v_lshrrev_b32 {v(t)}, 2, v0", f"v_and_b32 {v(t+3)}, 3, v0", f"v_lshl_add_u32 {v(t+3)}, {v(t+3)}, 3, s75")
    for p in range(2):
        if p: A(f"v_add_u32 {v(t)}, 16, {v(t)}")
        A(f"v_mul_u32_u24 {v(t+1)}, 43, {v(t)}", f"v_lshrrev_b32 {v(t+1)}, 8, {v(t+1)}", f"v_mul_u32_u24 {v(t+2)}, 160, {v(t)}",
          f"v_lshl_add_u32 {v(t+2)}, {v(t+1)}, 6, {v(t+2)}", f"v_add_u32 {v(t+4+p)}, {v(t+2)}, {v(t+3)}")
    A("s_waitcnt vmcnt(32)")
    for nt in range(5):
        for p in range(2): A(f"ds_read_b64_tr_b16 {v(WF+4*nt+2*p,2)}, {v(t+4+p)} offset:{nt*32}")
    A("s_movk_i32 s72, 128"); A(*spin("JOB1S", dbg_load, v(DBGV), "s72"))
    A(f"s_mov_b32 s72, {KEY_OFF}")
    for i in range(4): A(f"buffer_load_dwordx4 {v(XS+4*i,4)}, {v(L16)}, {SWS}, s72 offen offset:{1024*i} sc1")
    srd(A, 12, PWS, WOF_OFF, WOF_SIZE)
    A("s_and_b32 s76, s2, 7", "s_mul_i32 s76, s76, 27", "s_lshr_b32 s72, s2, 3", "s_min_u32 s72, s72, 26", "s_add_u32 s76, s76, s72",
      "s_mul_i32 s72, s28, 160", f"v_lshrrev_b32 {v(t)}, 1, v0", f"v_add_u32 {v(t)}, s72, {v(t)}", f"v_mul_u32_u24 {v(t)}, 3456, {v(t)}",
      "s_lshl_b32 s72, s76, 4", f"v_add_u32 {v(t)}, s72, {v(t)}", f"v_and_b32 {v(t+1)}, 1, v0", f"v_cmp_eq_u32 vcc, 1, {v(t+1)}",
      f"v_mov_b32 {v(t+2)}, {s(PG)}", f"v_mov_b32 {v(t+3)}, {s(PU)}", f"v_cndmask_b32 {v(t+2)}, {v(t+2)}, {v(t+3)}, vcc",
      f"v_mov_b32 {v(t+1)}, {s(PG+1)}", f"v_mov_b32 {v(t+3)}, {s(PU+1)}", f"v_cndmask_b32 {v(t+3)}, {v(t+1)}, {v(t+3)}, vcc",
      f"v_add_co_u32 {v(J+44)}, vcc, {v(t+2)}, {v(t)}", "s_nop 1", f"v_addc_co_u32 {v(J+45)}, vcc, 0, {v(t+3)}, vcc",
      "s_waitcnt lgkmcnt(0)")
    for nt in range(5):
        A(f"buffer_store_dwordx4 {v(WF+4*nt,4)}, {v(L16)}, {SW}, s77 offen offset:{1024*(nt%4)} sc1")
        if nt == 3: A("s_add_u32 s77, s77, 4096")
    def gu(first):
        if not first: A("s_add_u32 s77, s77, 1", "s_cmp_eq_u32 s77, 5", "s_cselect_b32 s77, 0, s77")
        A("s_lshl_b32 s72, s77, 10", "s_add_u32 m0, s75, s72", f"s_mul_i32 s72, s77, {32*3456}", "s_mov_b32 s73, 0",
          f"v_lshl_add_u64 {v(t,2)}, {v(J+44,2)}, 0, s[72:73]", f"global_load_lds_dwordx4 {v(t,2)}, off {NT if first else ''}")
    A("s_lshr_b32 s77, s2, 3", "s_and_b32 s77, s77, 7", "s_cmp_ge_u32 s77, 5", "s_cselect_b32 s72, 5, 0", "s_sub_u32 s77, s77, s72")
    gu(True)
    A("s_branch LOOP")
    A("JOB2:", "s_waitcnt vmcnt(32)")
    argmax_keys(A, XS, XS + 16, RBITS)
    A(f"s_and_b32 {s(SEL)}, {s(RBITS)}, 2047", f"s_sub_u32 {s(SEL)}, 2047, {s(SEL)}", f"s_lshr_b32 {s(RBITS)}, {s(RBITS)}, 11",
      f"s_bitcmp1_b32 {s(RBITS)}, 15", "s_mov_b32 s72, 0xffff", "s_cselect_b32 s72, 0x8000, s72", f"s_xor_b32 {s(RBITS)}, {s(RBITS)}, s72", f"s_lshl_b32 {s(RBITS)}, {s(RBITS)}, 16",
      f"s_mul_i32 s73, {s(SEL)}, 1280", "s_mul_i32 s72, s28, 320", "s_add_u32 s73, s73, s72", f"v_and_b32 {v(t)}, 48, v0")
    for i in range(5): A(f"buffer_load_dwordx4 {v(XS+4*i,4)}, {v(t)}, {SWS}, s73 offen offset:{64*i} sc1")
    for i in range(1 if GUS else 4): gu(False)
    A(*w0_only("JOB2W", ["s_and_b32 s72, s2, 1", "s_lshl_b32 s72, s72, 7", f"s_add_u32 s72, s72, {DBG_F}"] + signal("s72"))); A("s_branch LOOP")
    A("JOB3:")
    if GUS: gu(False)
    srd(A, 68, PD, 0, 1728 * 1280)
    A("s_mul_i32 s72, s76, 10240", "s_mul_i32 s73, s28, 2560", "s_add_u32 s72, s72, s73", "s_add_u32 m0, s75, 5120")
    for i in range(3):
        A("s_mov_b64 exec, 0xffffffff" if i == 2 else "s_nop 0", f"buffer_load_dwordx4 {v(L16)}, {ST}, s72 offen offset:{1024*i} {NT} lds")
    A("s_mov_b64 exec, -1")
    oproj_setup_early(A)
    A(f"v_and_b32 {v(t)}, 15, v0", f"v_lshrrev_b32 {v(t+1)}, 4, v0", "s_lshl_b32 s73, s78, 6", "s_lshl_b32 s72, s28, 4", "s_add_u32 s73, s73, s72",
      f"v_add_u32 {v(t)}, s73, {v(t)}", "s_mul_i32 s72, s79, 160", f"v_mul_u32_u24 {v(VXO)}, 1280, {v(t)}",
      f"v_lshl_add_u32 {v(VXO)}, {v(t+1)}, 3, {v(VXO)}", f"v_add_u32 {v(VXO)}, s72, {v(VXO)}")
    for nt in range(5): A(f"buffer_load_dwordx2 {v(XRP[nt],2)}, {v(VXO)}, {SX}, 0 offen offset:{32*nt}")
    A("s_branch LOOP")
    A("JOB4:"); A(*two_counters(DBG_F))
    if GUS: gu(False)
    for nt in range(5): A(f"buffer_load_dwordx2 {v(XNP[nt],2)}, {v(VXO)}, {SWS}, 0 offen offset:{32*nt} sc1")
    A("s_branch LOOP")
    A("JOB5:", "s_waitcnt vmcnt(32)", f"s_movk_i32 s72, {NPACK//2}")
    A(*spin("JOB5S", dbg_load, v(DBGV), "s72"))
    if GUS: gu(False)
    n = 1 << LR
    A("s_lshr_b32 s72, s2, 3", f"s_and_b32 s72, s72, {n-1}", f"v_lshl_add_u32 {v(t)}, v0, {LR}, s72", f"v_lshlrev_b32 {v(t)}, 7, {v(t)}")
    k0 = int(os.environ.get("TK0", 19))
    if k0: A(f"v_add_u32 {v(t)}, {k0*5120}, {v(t)}")
    for i in range(-(-(32 - k0) * 40 // (64 * n))):
        if i: A(f"v_add_u32 {v(t)}, {64*n*128}, {v(t)}")
        A(f"buffer_load_dword {v(DUMMY)}, {v(t)}, {SW}, 0 offen sc1")
    A("s_branch LOOP")

def ffn_part1():
    t = T0; B = Asm()
    B(f"v_lshrrev_b32 {v(t)}, 4, v0", f"v_bfe_u32 {v(t+1)}, v0, 2, 2", f"v_lshl_add_u32 {v(t)}, {v(t)}, 3, {v(t+1)}",
      f"v_and_b32 {v(t+1)}, 3, v0", f"v_lshlrev_b32 {v(t+1)}, 3, {v(t+1)}", f"v_lshl_add_u32 {v(t)}, {v(t)}, 5, {v(t+1)}", f"v_add_u32 {v(t)}, s75, {v(t)}")
    for i in range(5):
        for p in range(2): B(f"ds_read_b64_tr_b16 {v(WF+4*i+2*p,2)}, {v(t)} offset:{i*1024 + p*128}")
    B(f"v_and_b32 {v(t+3)}, 15, v0", f"v_lshlrev_b32 {v(t+1)}, 4, {v(t+3)}", "s_lshl_b32 s72, s28, 2", f"s_add_u32 s72, s72, {FEX}", f"v_add_u32 {v(t+1)}, s72, {v(t+1)}",
      "s_mul_i32 s72, s28, 320", f"s_add_u32 s72, s72, {SPARE}", "s_movk_i32 s73, 1280", "s_waitcnt lgkmcnt(0)")
    for i in range(5): B(f"{MF} {v(GA,4)}, {v(XS+4*i,4)}, {v(WF+4*i,4)}, {v(GA,4) if i else 0}")
    B(f"v_bfe_u32 {v(t)}, v0, 3, 2", f"v_lshlrev_b32 {v(t)}, 13, {v(t)}", f"v_bfe_u32 {v(t+2)}, v0, 2, 1", f"v_mad_u32_u24 {v(t)}, {v(t+2)}, s73, {v(t)}",
      f"v_and_b32 {v(t+2)}, 3, v0", f"v_lshl_add_u32 {v(t)}, {v(t+2)}, 3, {v(t)}", f"v_add_u32 {v(t)}, s72, {v(t)}", "s_nop 0", f"ds_write_b32 {v(t+1)}, {v(GA)}")
    for nt in range(10): B(f"ds_read_b64_tr_b16 {v(WF+2*nt,2)}, {v(t)} offset:{5120 + nt*32}")
    B("s_waitcnt lgkmcnt(0)")
    return B.L

def ffn_part2():
    t = T0; G = GA; B = Asm()
    B(f"v_and_b32 {v(t)}, 7, v0", f"v_lshlrev_b32 {v(t+1)}, 4, {v(t)}", f"v_add_u32 {v(t+1)}, {FEX}, {v(t+1)}",
      f"ds_read_b128 {v(G,4)}, {v(t+1)}", f"ds_read_b128 {v(G+4,4)}, {v(t+1)} offset:128",
      "s_lshl_b32 s72, s28, 5", f"s_add_u32 s72, s72, {FH}", f"v_lshl_add_u32 {v(t+1)}, {v(t)}, 1, s72", f"v_bfe_u32 {v(t)}, v0, 4, 1", f"v_lshl_add_u32 {v(t)}, {v(t)}, 3, s72",
      "s_waitcnt lgkmcnt(0)")
    for m in range(2):
        b = G + 4 * m
        B(f"v_add_f32 {v(b)}, {v(b)}, {v(b+1)}", f"v_add_f32 {v(b+2)}, {v(b+2)}, {v(b+3)}", f"v_add_f32 {v(b)}, {v(b)}, {v(b+2)}")
    B(f"v_cvt_pk_bf16_f32 {v(G)}, {v(G)}, {v(G+4)}", f"v_and_b32 {v(G+4)}, 0xffff0000, {v(G)}", f"v_lshlrev_b32 {v(G)}, 16, {v(G)}",
      f"v_mul_f32 {v(G+1)}, {NLOG2E}, {v(G)}", f"v_exp_f32 {v(G+1)}, {v(G+1)}", "s_nop 0", f"v_add_f32 {v(G+1)}, 1.0, {v(G+1)}",
      f"v_rcp_f32 {v(G+1)}, {v(G+1)}", "s_nop 0", f"v_mul_f32 {v(G)}, {v(G)}, {v(G+1)}",
      f"v_cvt_pk_bf16_f32 {v(G)}, {v(G)}, {v(G)}", f"v_lshlrev_b32 {v(G)}, 16, {v(G)}", f"v_mul_f32 {v(G)}, {v(G)}, {v(G+4)}",
      f"v_cvt_pk_bf16_f32 {v(G)}, {v(G)}, {v(G)}", f"ds_write_b16 {v(t+1)}, {v(G)}", "s_waitcnt lgkmcnt(0)", f"ds_read_b64 {v(G,2)}, {v(t)}",
      "v_cmp_gt_u32 vcc, 32, v0", "s_lshr_b32 s73, s2, 3", "s_cmp_lt_u32 s73, 27", f"s_mov_b32 s73, {WSLO}", f"s_cselect_b32 s73, {Y_OFF}, s73",
      "s_mul_i32 s72, s28, 640", "s_add_u32 s72, s72, s73", "s_and_b32 s73, s2, 15", "s_mul_i32 s73, s73, 2560", "s_add_u32 s72, s72, s73",
      f"v_lshl_add_u32 {v(t+3)}, {v(t+3)}, 2, s72", "s_waitcnt lgkmcnt(0)",
      f"v_cndmask_b32 {v(G)}, 0, {v(G)}, vcc", f"v_cndmask_b32 {v(G+1)}, 0, {v(G+1)}, vcc", "s_nop 1")
    outs = [XS + 4*i for i in range(5)] + [J + 44 + 4*i for i in range(5)]
    for nt in range(10): B(f"v_mfma_f32_16x16x16_bf16 {v(outs[nt],4)}, {v(G,2)}, {v(WF+2*nt,2)}, 0")
    B("s_mov_b64 exec, 0xffff")
    for nt in range(10):
        if nt >= 8: B("s_nop 1")
        B(f"buffer_atomic_add_f32 {v(outs[nt])}, {v(t+3)}, {SWS}, 0 offen offset:{64*nt}")
    B("s_mov_b64 exec, -1")
    return B.L

def weave(A, vm, loads, fill, per):
    fill = list(fill)
    def pop():
        x = fill.pop(0)
        if x.startswith("s_mov_b64 exec, 0x"):
            while True:
                put(A, vm, [x], "fa")
                if x == "s_mov_b64 exec, -1": return
                x = fill.pop(0)
        put(A, vm, [x], "fa")
        while x.startswith(("s_cmp", "s_mov_b32 s73")): x = fill.pop(0); put(A, vm, [x], "fa")
    for lines, tag in loads:
        for x in lines:
            put(A, vm, [x], tag)
            if x.startswith("buffer_"):
                for _ in range(per):
                    if fill: pop()
    while fill: pop()

OACC, OB, OT = 32, 112, 192
NB = 5
def oacc(i, nt): return OACC + 20 * i + 4 * nt
def aslot(k): return (128 + 20 * (k - 6)) if k >= 6 else 20 * k

def oproj_setup_early(A):
    lr = LR
    A("s_and_b32 s72, s2, 7", "s_lshr_b32 s73, s2, 3", f"s_lshr_b32 s78, s72, {lr-2}", f"s_lshl_b32 s78, s78, {lr}", f"s_and_b32 s79, s73, {(1<<lr)-1}", "s_add_u32 s78, s78, s79",
      f"s_and_b32 s72, s72, {(1<<(lr-2))-1}", f"s_lshl_b32 s72, s72, {5-lr}", f"s_lshr_b32 s79, s73, {lr}", "s_add_u32 s79, s79, s72",
      f"s_mul_i32 s72, s79, {128*5120}", f"s_mul_i32 s73, s28, {32*5120}", "s_add_u32 s72, s72, s73", f"s_add_u32 s72, s72, {WOF_OFF}")
    srd(A, 12, PWS, "s72", 32 * 5120)
    A("s_sub_u32 s72, s72, s33", f"s_sub_u32 s72, s72, {0x80000 - 60*1024}", f"s_add_u32 s42, {s(PWS)}, s72", f"s_addc_u32 s43, {s(PWS+1)}, 0",
      "s_add_u32 s36, s42, 16384", "s_addc_u32 s37, s43, 0")

def a_loads(k, slot):
    out = [f"s_mov_b32 s31, {k*5120}", f"s_mov_b32 s32, {k*5120+4096}"]
    for nt in range(5):
        out.append(f"buffer_load_dwordx4 {a(aslot(slot)+4*nt,4)}, {v(L16)}, {SW}, {'s32' if nt == 4 else 's31'} offen offset:{1024*(nt%4)} {WSC}")
    return out

def put(A, vm, lines, tag):
    for x in lines:
        if x.startswith(("buffer_", "global_")):
            A(*vm.room()); A(x); vm.issue(tag)
        else: A(x)

OLEAD = int(os.environ.get('OLEAD', 8))
NL = 7
EARLY = int(os.environ.get("EARLY", 0))
def lds_frag(n):
    if n < 16: return VK, (n >> 2) * 16384 + (n & 3) * 1024
    if n < 28: return VV, ((n - 16) >> 2) * 16384 + (n & 3) * 1024
    return 21, (n - 28) * 1024

def late_loads():
    out = []
    for n in range(28, 35):
        if n in (28, 32): out += [f"s_add_u32 m0, s48, {(n-28)*1024}", f"s_mov_b32 s31, {(60+n)*1024}"]
        out.append(f"buffer_load_dwordx4 {v(L16)}, {SW}, s31 offen offset:{1024*(n & 3)} {WSC} lds")
    return out

def oproj(A, vm, stamps):
    t = T0
    VB, VROW, WX = 3, 7, 9
    RE, VY, VF_ = 12, 13, 14
    G = OT + 20
    XR = [p + h for p in XRP for h in range(2)]; XNR = [p + h for p in XNP for h in range(2)]
    B = Asm()
    B("s_lshl_b32 s72, s78, 9", "s_lshl_b32 s73, s28, 7", "s_add_u32 s72, s72, s73", f"s_add_u32 s72, s72, {FLAG_OFF}",
      f"v_and_b32 {v(VF_)}, 7, v0", f"v_lshl_add_u32 {v(VF_)}, {v(VF_)}, 2, s72")
    for i in range(4):
        B(f"s_add_u32 s72, s28, {i}", "s_and_b32 s72, s72, 3", "s_lshl_b32 s72, s72, 10", f"v_add_u32 {v(VB+i)}, s72, {v(L16)}")
    B(f"v_add_u32 {v(VV)}, {VBASE}, {v(VV)}")
    B(f"v_and_b32 {v(t)}, 15, v0", f"v_lshrrev_b32 {v(t+1)}, 4, v0", "s_lshl_b32 s74, s78, 6", "s_lshl_b32 s72, s28, 4", "s_add_u32 s74, s74, s72",
      f"v_add_u32 {v(VROW)}, s74, {v(t)}",
      "s_mul_i32 s72, s79, 320", f"s_add_u32 s72, s72, {Y_OFF}", f"v_lshl_add_u32 {v(VY)}, {v(t+1)}, 4, s72", f"v_mul_u32_u24 {v(t+2)}, 2560, {v(t)}", f"v_add_u32 {v(VY)}, {v(VY)}, {v(t+2)}")
    for i in range(1, 4):
        B(f"s_sub_u32 s72, s28, {i}", "s_and_b32 s72, s72, 3", "s_lshl_b32 s72, s72, 12", f"v_add_u32 {v(WX+i-1)}, s72, {v(L16)}")
    B(f"v_add_u32 {v(RE)}, s33, {v(L16)}",
      f"s_sub_u32 s75, {s(SEL)}, s74", f"v_mov_b32 {v(t+10)}, {DBG_C}", f"s_mov_b32 s100, {NLOG2E}", "s_mov_b32 s101, 0xffff0000")
    VOT, RA2 = 20, 21
    B(f"v_lshrrev_b32 {v(VOT)}, {LR}, v0", f"v_lshlrev_b32 {v(VOT)}, 17, {v(VOT)}", f"s_lshr_b32 s72, s2, {3+LR}", f"s_lshl_b32 s72, s72, {LR}",
      f"v_and_b32 {v(t)}, {(1<<LR)-1}, v0", f"v_add_u32 {v(t)}, s72, {v(t)}", f"v_lshl_add_u32 {v(VOT)}, {v(t)}, 7, {v(VOT)}")
    A("s_mov_b32 s48, s75")
    B(f"v_add_u32 {v(RA2)}, s48, {v(L16)}")
    order = [0, 1, 2, 3, 4, 5, 6, 7, 8, 9, 10, 11]
    order = [k for k in order if ("a", k) not in vm.q]
    weave(A, vm, [(a_loads(k, k), ("a", k)) for k in order[:2]], ffn_part2(), 8)
    A("s_lshl_b32 s72, s78, 12", "s_lshl_b32 s73, s28, 22", "s_add_u32 s72, s72, s73", f"s_add_u32 s72, s72, {OF_OFF}")
    srd(A, 20, PWS, "s72", 31 * 131072 + 4096)
    srd(A, 4, POUT, 0, 2048 * 1280)
    weave(A, vm, [(a_loads(k, k), ("a", k)) for k in order[2:3]], B.L, 12)
    fpoll = f"buffer_load_dword {v(t+8)}, {v(VF_)}, {SWS}, 0 offen sc1"
    put(A, vm, [fpoll], "flag")
    for k in order[3:]: put(A, vm, a_loads(k, k), ("a", k))
    put(A, vm, late_loads(), "l")
    A(*vm.wait(["flag"]))
    A("s_barrier", *w0_only("OCSIG", ["s_mov_b32 s72, 1", f"s_atomic_add s72, {s(PDBG,2)}, {DBG_C}"]))
    A(*spin("OFLAG", fpoll, v(t+8), "1"))
    stamp(A, "flag", stamps)
    def o_off(k):
        if 'r' in EXP: return [f"s_add_u32 s34, s35, {k*131072}", "s_and_b32 s34, s34, 0x3fffff"]
        return [f"s_mov_b32 s34, {k*131072}"]
    if 'r' in EXP: A(f"s_lshr_b32 s35, s2, {3+LR}", f"s_lshl_b32 s35, s35, {17+LR}")
    def b_load(k, i): return f"buffer_load_dwordx4 {v(OB+16*(k%NB)+4*i,4)}, {v(VB+i)}, {SO}, s34 offen {OSC}"
    for k in range(NB - 1):
        A(*o_off(k))
        put(A, vm, [b_load(k, i) for i in range(4)], ("b", k))
    def asrc(k):
        if k < 12: return lambda nt: a(aslot(k) + 4*nt, 4)
        if k < 12 + NL: return lambda nt: v(OT + 20*(k & 1) + 4*nt, 4)
        return lambda nt: a(aslot((k - 12 - NL) % 12) + 4*nt, 4)
    refill = []
    for i in range(20 - NL):
        for nt in range(5): refill.append((i, nt))
    va = gate_ops(XNR, G)
    state = []
    cpoll = f"buffer_load_dword {v(t+9)}, {v(t+10)}, {SDB}, 0 offen sc1"
    for k in range(32):
        st = Stream()
        for i in ((1, 2, 3, 0) if k == 31 else range(4)):
            for nt in range(5):
                c = v(oacc(i, nt), 4) if k else 0
                st.add(f"{MF} {v(oacc(i,nt),4)}, {asrc(k)(nt)}, {v(OB+16*(k%NB)+4*i,4)}, {c}")
        need = [("b", k)] + ([("a", k)] if k < 12 or k >= 12 + NL else [])
        A(*vm.wait(need))
        if 11 <= k < 11 + NL:
            st.sc[0] += vm.wait(["l"])
            for nt in range(5):
                r, o = lds_frag(5 * (k + 1 - 12) + nt)
                st.mem[1 + nt].append(f"ds_read_b128 {v(OT+20*((k+1)&1)+4*nt,4)}, {v(r)} offset:{o}")
        if k == 22: A("s_cmp_lt_u32 s75, 16", "s_cbranch_scc0 OC3", f"s_waitcnt vmcnt({len(vm.q) - ny})", *route_ops(G, VROW), "OC3:")
        ops = []
        def mem(g, x, tag): ops.append((g, x, tag))
        kb = k + NB - 1
        if kb < 32:
            for i, x in enumerate(o_off(kb)): st.sc[4 + i].append(x)
            for i in range(4): mem(6 + 2*i, b_load(kb, i), ("b", kb))
        n = 3 if k % 4 else 2
        g = 14
        while n and refill and (refill[0][0] if refill[0][0] < 12 else refill[0][0] + NL) < k:
            i, nt = refill.pop(0)
            st.sc[g - 1].append(f"s_mov_b32 s31, {(12+NL+i)*5120 + 1024*nt}")
            mem(g, f"buffer_load_dwordx4 {a(aslot(i % 12)+4*nt,4)}, {v(L16)}, {SW}, s31 offen {WSC}", ("a", 12 + NL + i)); g += 2; n -= 1
        span = 64 >> LR
        if "o" in TOUCH and (k + OLEAD) % span == 0 and k + OLEAD < 32:
            st.sc[2].append(f"s_mov_b32 s32, {(k + OLEAD) * 131072}")
            mem(3, f"buffer_load_dword {v(DUMMY)}, {v(VOT)}, {SO}, s32 offen sc1", "t")
        if k == 15: st.va[19] += ["s_cmp_lt_u32 s75, 16", "s_cbranch_scc0 OC1", cpoll, "OC1:"]; nc = len(vm.q) + len(ops)
        if k == 20:
            for i in range(20): st.va[2 * (i // 2) + (1 if i >= 10 else 0)].append(f"v_mov_b32 {v(G+i)}, 0")
            st.va[19] += ["s_cmp_lt_u32 s75, 16", "s_cbranch_scc0 OC2", f"s_waitcnt vmcnt({len(vm.q) + len(ops) - nc})"] + spin("OCS", cpoll, v(t+9), "s72") + \
                         [f"buffer_load_dwordx4 {v(G+4*nt,4)}, {v(VY)}, {SWS}, 0 offen offset:{64*nt} sc1" for nt in range(5)] + ["OC2:"]
            st.va[18].append("s_movk_i32 s72, 256")
        for g, x, tag in sorted(ops, key=lambda o: o[0]):
            st.sc[g] += vm.room(); st.mem[g].append(x); vm.issue(tag)
        if k == 20: ny = len(vm.q)
        if 23 <= k <= 30:
            for g in range(1, 20):
                if any(x.startswith("buffer") for x in st.mem[g]): continue
                for _ in range(2):
                    if va:
                        x = va.pop(0); st.va[g].append(x)
                        if x.startswith(TRANS): break
        if k == 31:
            assert not va
            for n in range(10): st.mem[9 + n].append(f"ds_write_b128 {v(RE)}, {v(oacc(1 + n // 5, n % 5),4)} offset:{lds_frag(n)[1]}")
        nx0 = regs_of(" ".join(asrc(k + 1)(nt) for nt in range(5))) if k < 31 else set()
        stamp(A, f"g{k}", stamps)
        state = st.emit(A, state, nxt0=nx0)
    assert not refill
    A(*va)
    stamp(A, "gend", stamps)
    for n in range(10, 15): A(f"ds_write_b128 {v(RE)}, {v(oacc(3, n % 5),4)} offset:{lds_frag(n)[1]}")
    XF = OB
    for i in range(10): A(f"v_lshlrev_b32 {v(XF+2*i)}, 16, {v(XR[i])}", f"v_and_b32 {v(XF+2*i+1)}, s101, {v(XR[i])}")
    A("s_waitcnt lgkmcnt(0)", "s_barrier")
    for nt in range(5):
        for i in range(1, 4): A(f"ds_read_b128 {v(oacc(i,nt),4)}, {v(WX+i-1)} offset:{lds_frag(5*(i-1) + nt)[1]}")
    for nt in range(5):
        A(f"s_waitcnt lgkmcnt({3*(4-nt)})")
        for r in range(4): A(f"v_add_f32 {v(oacc(0,nt)+r)}, {v(oacc(0,nt)+r)}, {v(oacc(1,nt)+r)}")
        for r in range(4): A(f"v_add_f32 {v(oacc(2,nt)+r)}, {v(oacc(2,nt)+r)}, {v(oacc(3,nt)+r)}")
        for r in range(4): A(f"v_add_f32 {v(oacc(0,nt)+r)}, {v(oacc(0,nt)+r)}, {v(oacc(2,nt)+r)}")
        for r in range(4): A(f"v_fmac_f32 {v(XF+4*nt+r)}, {v(oacc(0,nt)+r)}, {v(G+4*nt+r)}")
        for h in range(2): A(f"v_cvt_pk_bf16_f32 {v(XR[2*nt+h])}, {v(XF+4*nt+2*h)}, {v(XF+4*nt+2*h+1)}")
        A(f"buffer_store_dwordx2 {v(XRP[nt],2)}, {v(VXO)}, {SK}, 0 offen offset:{32*nt}")

def rb2(x):
    return [f"v_cvt_pk_bf16_f32 {v(x)}, {v(x)}, {v(x+1)}", f"v_and_b32 {v(x+1)}, s101, {v(x)}", f"v_lshlrev_b32 {v(x)}, 16, {v(x)}"]

def route_ops(G, VROW):
    t = T0; o = []
    r = t + 11
    o += [f"v_mov_b32 {v(r)}, {s(RBITS)}", f"v_mul_f32 {v(r)}, s100, {v(r)}", f"v_exp_f32 {v(r)}, {v(r)}", f"v_cmp_eq_u32 vcc, {s(SEL)}, {v(VROW)}", f"v_add_f32 {v(r)}, 1.0, {v(r)}",
          f"v_rcp_f32 {v(r)}, {v(r)}", "s_nop 0", f"v_cvt_pk_bf16_f32 {v(r)}, {v(r)}, {v(r)}", f"v_lshlrev_b32 {v(r)}, 16, {v(r)}"]
    for ror in (8, 4, 2, 1):
        for i in range(20): o.append(f"v_add_f32_dpp {v(G+i)}, {v(G+i)}, {v(G+i)} row_ror:{ror} row_mask:0xf bank_mask:0xf")
    for i in range(10): o += rb2(G + 2*i)
    for i in range(20): o.append(f"v_mul_f32 {v(G+i)}, {v(G+i)}, {v(r)}")
    for i in range(10): o += rb2(G + 2*i)
    for i in range(20): o.append(f"v_cndmask_b32 {v(G+i)}, 0, {v(G+i)}, vcc")
    return o

def gate_ops(XNR, G):
    t = T0; o = []
    for i in range(10):
        o += [f"v_lshlrev_b32 {v(t)}, 16, {v(XNR[i])}", f"v_and_b32 {v(t+1)}, s101, {v(XNR[i])}",
              f"v_add_f32 {v(G+2*i)}, {v(G+2*i)}, {v(t)}", f"v_add_f32 {v(G+2*i+1)}, {v(G+2*i+1)}, {v(t+1)}"]
    for i in range(10): o += rb2(G + 2*i)
    for h in range(4):
        for i in range(5): o.append(f"v_mul_f32 {v(t+i)}, s100, {v(G+5*h+i)}")
        for i in range(5): o.append(f"v_exp_f32 {v(t+i)}, {v(t+i)}")
        for i in range(5): o.append(f"v_add_f32 {v(t+i)}, 1.0, {v(t+i)}")
        for i in range(5): o.append(f"v_rcp_f32 {v(t+i)}, {v(t+i)}")
        for i in range(5): o.append(f"v_mul_f32 {v(G+5*h+i)}, {v(G+5*h+i)}, {v(t+i)}")
    for i in range(10): o += rb2(G + 2*i)
    return o

def gen(stamps=False):
    A = Asm()
    t = T0
    A("s_cmp_ge_u32 s2, 256", "s_cbranch_scc1 END")
    stamp(A, "start", stamps)
    A("s_load_dwordx16 s[36:51], s[0:1], 0", "s_load_dwordx8 s[52:59], s[0:1], 64", "s_load_dwordx2 s[60:61], s[0:1], 96")
    A(f"v_lshrrev_b32 {v(t)}, 6, v0", f"v_lshrrev_b32 {v(ROW)}, 5, v0", f"v_readfirstlane_b32 s28, {v(t)}", f"v_and_b32 {v(PP)}, 31, v0")
    A("s_and_b32 s29, s2, 7", "s_lshl_b32 s29, s29, 2", "s_lshr_b32 s30, s2, 3", "s_and_b32 s31, s30, 3", "s_add_u32 s29, s29, s31", "s_lshr_b32 s63, s30, 2",
      "v_and_b32 v0, 63, v0", "s_lshl_b32 s30, s63, 4", "s_lshl_b32 s31, s28, 2", "s_add_u32 s30, s30, s31", "s_lshl_b32 s33, s28, 12", "s_lshl_b32 s75, s28, 13")
    vm = VM()
    A(f"v_lshrrev_b32 {v(t)}, 3, v0", f"v_and_b32 {v(t+1)}, 7, v0", f"v_lshrrev_b32 {v(t+2)}, 4, v0", "s_lshl_b32 s31, s30, 4", f"v_add_u32 {v(t)}, s31, {v(t)}",
      f"v_mul_u32_u24 {v(t)}, 1280, {v(t)}", f"v_xor_b32 {v(t+3)}, {v(t+1)}, {v(t+2)}", f"v_lshl_add_u32 {v(VX)}, {v(t+3)}, 4, {v(t)}",
      f"v_xor_b32 {v(t+3)}, 4, {v(t+3)}", f"v_lshl_add_u32 {v(VX+1)}, {v(t+3)}, 4, {v(t)}", f"v_add_u32 {v(VX+1)}, {8*1280-1024}, {v(VX+1)}")
    A(f"v_and_b32 {v(t+1)}, 15, v0", "s_lshl_b32 s31, s28, 4", f"v_add_u32 {v(t+4)}, s31, {v(t+2)}",
      f"v_lshlrev_b32 {v(t+3)}, 2, {v(t+2)}", f"v_xor_b32 {v(t+3)}, {v(t+3)}, {v(t+1)}", f"v_lshlrev_b32 {v(t+3)}, 4, {v(t+3)}", f"v_lshl_add_u32 {v(VW)}, {v(t+4)}, 13, {v(t+3)}")
    A("s_waitcnt lgkmcnt(0)")
    srd(A, 16, PX, 0, 2048 * 1280)
    A("s_lshl_b32 s31, s29, 8"); srd(A, 12, PWQ, "s31", 639 * 8192 + 256)
    stamp(A, "karg", stamps)
    def x_dma(kt):
        out = []
        for pr in range(4):
            out += [f"s_add_u32 m0, s75, {(XA, XB)[kt & 1] + 2048*pr}", f"s_mov_b32 s62, {kt*128 + 20480*pr}",
                    f"buffer_load_dwordx4 {v(VX)}, {SX}, s62 offen {XNT} lds", f"buffer_load_dwordx4 {v(VX+1)}, {SX}, s62 offen offset:1024 {XNT} lds"]
        return out
    def wq_dma(kt):
        out = [f"s_add_u32 m0, s33, {VBASE + wslot(kt)*16384}"]
        for i in range(4):
            out += [f"s_mov_b32 s32, {kt*524288 + i*31744}", f"buffer_load_dwordx4 {v(VW)}, {SW}, s32 offen offset:{1024*i} {NT} lds"]
        return out
    def event(e):
        if e == "": return []
        if e[0] == "w": return [(x, ("w", int(e[1]))) for x in wq_dma(int(e[1]))]
        if e[0] == "x": return [(x, ("x", int(e[1]))) for x in x_dma(int(e[1]))]
        if e == "L":
            return [(x, "lx") for x in ["s_lshl_b32 s31, s63, 8", "s_lshl_b32 s32, s29, 3", "s_add_u32 s31, s31, s32", f"v_add_u32 {v(ROW)}, s31, {v(ROW)}",
                    f"v_lshlrev_b32 {v(LWA)}, 3, {v(PP)}", f"v_mul_u32_u24 {v(LXA)}, 1280, {v(ROW)}", f"v_add_u32 {v(LXA)}, {v(LXA)}, {v(LWA)}"] +
                    [f"buffer_load_dwordx2 {v(LX+2*i,2)}, {v(LXA)}, {SX}, 0 offen offset:{256*i}" for i in range(5)]]
        if e == "C":
            return [(x, "code") for x in ["s_getpc_b64 s[72:73]", "CODE0:", "s_lshr_b32 s31, s2, 3", "s_and_b32 s31, s31, 7", "s_lshl_b32 s32, s28, 7", "s_add_u32 s31, s31, s32",
                    f"v_and_b32 {v(t+8)}, 15, v0", f"v_lshl_add_u32 {v(t+8)}, {v(t+8)}, 3, s31", f"v_lshlrev_b32 {v(t+8)}, 7, {v(t+8)}",
                    f"v_min_u32 {v(t+8)}, (CODE1 - CODE0), {v(t+8)}", f"v_mov_b32 {v(t+9)}, 0", f"v_lshl_add_u64 {v(t+8,2)}, {v(t+8,2)}, 0, s[72:73]",
                    f"global_load_dword {v(DUMMY)}, {v(t+8,2)}, off"]]
    for e in PRE:
        for x, tag in event(e): put(A, vm, [x], tag)
    g_, i_, c_, r_ = t + 2, t + 1, t + 5, t + 6
    A(f"v_and_b32 {v(c_)}, 3, v0", f"v_bfe_u32 {v(r_)}, v0, 2, 2")
    for k in range(4): A(f"s_add_u32 s31, s28, {k}", "s_and_b32 s31, s31, 3", f"s_lshl_b32 {s(76+k)}, s31, 2")
    A(f"v_lshl_add_u32 {v(t+8)}, {v(g_)}, 3, {v(r_)}", f"v_lshlrev_b32 {v(t+8)}, 8, {v(t+8)}", f"v_lshl_add_u32 {v(t+8)}, {v(c_)}, 4, {v(t+8)}",
      f"v_add_u32 {v(t+8)}, {VBASE}, {v(t+8)}", f"v_lshlrev_b32 {v(t+7)}, 2, {v(r_)}")
    for k in range(4): A(f"v_xor_b32 {v(t+3)}, {s(76+k)}, {v(t+7)}", f"v_lshl_add_u32 {v(RW+k)}, {v(t+3)}, 4, {v(t+8)}")
    A(f"v_lshrrev_b32 {v(t+3)}, 1, {v(i_)}", f"v_xor_b32 {v(t+3)}, {v(t+3)}, {v(g_)}", f"v_lshlrev_b32 {v(t+8)}, 7, {v(i_)}", f"v_add_u32 {v(t+8)}, s75, {v(t+8)}",
      f"v_lshl_add_u32 {v(t+8)}, {v(t+3)}, 4, {v(t+8)}", f"v_add_u32 {v(RX)}, {XA}, {v(t+8)}", f"v_add_u32 {v(RX+2)}, {XB}, {v(t+8)}",
      f"v_xor_b32 {v(RX+1)}, 64, {v(RX)}", f"v_xor_b32 {v(RX+3)}, 64, {v(RX+2)}")
    for i in range(4): A(f"v_mov_b32 {v(ONES+i)}, 0x3f803f80")
    srd(A, 68, PWR, 0, 1280); srd(A, 24, PWS, 0, WSLO); srd(A, 64, PDBG, 0, 256)
    A("s_mov_b32 s101, 0xffff0000", "s_mov_b32 s100, 0x3acccccd")
    stamp(A, "setup", stamps)
    for e in MID:
        for x, tag in event(e): put(A, vm, [x], tag)
    B = Asm()
    B("s_lshl_b32 s31, s29, 19"); srd(B, 4, PK, "s31", "0x90000"); srd(B, 8, PV, "s31", "0x90000")
    B("s_mov_b64 s[38:39], s[4:5]", "s_mov_b64 s[40:41], s[8:9]", "s_mov_b64 s[42:43], s[4:5]", "s_mov_b64 s[36:37], s[8:9]", "s_movk_i32 s48, 4096")
    sc1 = B.L
    B = Asm()
    B("s_lshl_b32 s31, s30, 10", "s_lshl_b32 s73, s29, 19", "s_add_u32 s31, s31, s73", f"s_add_u32 s31, s31, {OF_OFF}")
    srd(B, 20, PWS, "s31", 3 * 131072 + 4096)
    sc2 = B.L
    sc3 = ["s_lshr_b32 s31, s29, 3", "s_add_u32 s74, s30, s31", "s_lshl_b32 s74, s74, 7", "s_and_b32 s31, s29, 7", "s_lshl_b32 s31, s31, 2", "s_add_u32 s74, s74, s31",
           f"s_add_u32 s74, s74, {FLAG_OFF}"]
    sc4 = ["s_lshl_b32 s31, s2, 2", "s_add_u32 s31, s31, s28", "s_lshl_b32 s31, s31, 8", "s_cmp_lt_u32 s31, 40960", f"s_mov_b32 s47, {WSLO}", f"s_cselect_b32 s47, {Y_OFF}, s47",
           "s_add_u32 s47, s47, s31"]
    B = Asm()
    B(f"v_lshlrev_b32 {v(L16)}, 4, v0", f"v_mov_b32 {v(VXO)}, 0")
    B(f"v_lshl_or_b32 {v(t+3)}, s28, 2, {v(g_)}", f"v_xor_b32 {v(t+3)}, {v(t+3)}, {v(i_)}", f"v_lshlrev_b32 {v(t+3)}, 4, {v(t+3)}", f"v_lshl_add_u32 {v(VK)}, {v(t+4)}, 8, {v(t+3)}")
    B(f"v_lshl_or_b32 {v(t+3)}, s28, 2, {v(g_)}", f"v_and_b32 {v(t+3)}, 7, {v(t+3)}", f"v_lshlrev_b32 {v(t+3)}, 1, {v(t+3)}", f"v_xor_b32 {v(t+3)}, {v(t+3)}, {v(i_)}",
      f"v_lshlrev_b32 {v(t+3)}, 4, {v(t+3)}", f"v_lshl_add_u32 {v(VV)}, {v(t+4)}, 8, {v(t+3)}")
    B(f"v_lshlrev_b32 {v(t+4)}, 8, {v(c_)}", f"v_lshl_add_u32 {v(t+4)}, {v(r_)}, 12, {v(t+4)}")
    for k in range(4): B(f"v_or_b32 {v(t+3)}, {s(76+k)}, {v(g_)}", f"v_xor_b32 {v(t+3)}, {v(t+3)}, {v(i_)}", f"v_lshl_add_u32 {v(RK+k)}, {v(t+3)}, 4, {v(t+4)}")
    B(f"v_lshl_add_u32 {v(t+4)}, {v(g_)}, 4, {v(r_)}", f"v_lshlrev_b32 {v(t+4)}, 8, {v(t+4)}", f"v_lshl_add_u32 {v(t+4)}, {v(c_)}, 3, {v(t+4)}",
      f"v_add_u32 {v(t+4)}, {VBASE}, {v(t+4)}", f"v_and_b32 {v(t+7)}, 1, {v(g_)}", f"v_lshl_or_b32 {v(t+7)}, {v(t+7)}, 2, {v(r_)}")
    for k in range(8): B(f"v_xor_b32 {v(t+3)}, {k}, {v(t+7)}", f"v_lshl_add_u32 {v(RV+k)}, {v(t+3)}, 5, {v(t+4)}")
    rload = [f"buffer_load_dwordx2 {v(LW+2*i,2)}, {v(LWA)}, {ST}, 0 offen offset:{256*i}" for i in range(5)]
    rest = ln_rest()
    k = rest.index(f"v_lshlrev_b32 {v(LS+6)}, 16, {v(LW)}")
    lnr = [(x, "l1") for x in ln_stats()] + [(x, "lw") for x in rload] + [(sc1, None), (sc3, None), (sc4, None)] + [(x, None) for x in B.L] + \
          [(x, "l2") for x in rest[:k]] + [("@lw", None)] + [(x, "l2") for x in rest[k:]] + [(sc2, None)] + \
          [(f"v_accvgpr_write_b32 {a(32 + i)}, 0", None) for i in range(96)]
    def w_read(G, sx, p):
        kt, T = divmod(G, 8)
        return f"ds_read_b64_tr_b16 {a(8*(G%4)+4*sx+2*p,2)}, {v(RW+T//2)} offset:{wslot(kt)*16384 + sx*8192 + p*1024 + 8*(T&1)}"
    def x_read(kt, q, sx): return f"ds_read_b128 {a(xb(kt,q,sx),4)}, {v(RX+2*(kt&1)+sx)} offset:{2048*q}"
    A(*vm.wait([("w", 0), ("x", 0)])); A("s_barrier")
    stamp(A, "q0", stamps)
    for sx in range(2):
        for p in range(2): A(w_read(0, sx, p))
    for q in range(4):
        for sx in range(2): A(x_read(0, q, sx))
    for sx in range(2):
        for p in range(2): A(w_read(1, sx, p))
    A("s_waitcnt lgkmcnt(4)")
    state = [(I(w_read(1, sx, p)).w, -8) for sx in range(2) for p in range(2)]
    apoll = f"buffer_load_dword {v(t+12)}, {v(t+13)}, {SDB}, 0 offen sc1"
    for kt in range(10):
        st = Stream(); pos = {}
        for T in range(8):
            af = 8 * ((kt * 8 + T) % 4)
            for q in range(4):
                for sx in range(2):
                    c = 0 if (kt == 0 and sx == 0) else v(acc(q, T), 4)
                    pos[T, 2*q + sx] = st.add(f"{MF} {v(acc(q,T),4)}, {a(af+4*sx,4)}, {a(xb(kt,q,sx),4)}, {c}")
            if T < 2:
                for sx in range(2):
                    c = 0 if (kt == 0 and sx == 0) else v(CSA + 4*T, 4)
                    pos[T, 8 + sx] = st.add(f"{MF} {v(CSA+4*T,4)}, {a(af+4*sx,4)}, {v(ONES,4)}, {c}")
        last = len(st.mf) - 1
        for T in range(8):
            G = kt * 8 + T + 2
            if G < 80:
                for k in range(4): st.mem[pos[T, 2 * k if QS else 1 + k]].append(w_read(G, k >> 1, k & 1))
        def place(ops, slots, tag):
            for (m0, so, x), g in zip(ops, slots):
                assert not {g - 1, g, g + 1} & set(st.tagq), (kt, g)
                st.sc[max(g - 1, 0)].append(m0)
                st.sc[g].append(so if so else "s_nop 0")
                st.mem[g].append(x); st.tagq.setdefault(g, []).append(tag)
        def x_ops(k):
            return [(f"s_add_u32 m0, s75, {(XA, XB)[k & 1] + 2048*(i >> 1)}", f"s_mov_b32 s62, {k*128 + 20480*(i >> 1)}",
                     f"buffer_load_dwordx4 {v(VX + (i & 1))}, {SX}, s62 offen offset:{1024*(i & 1)} {XNT} lds") for i in range(8)]
        def w_ops(k):
            return [(f"s_add_u32 m0, s33, {VBASE + wslot(k)*16384}", f"s_mov_b32 s32, {k*524288 + i*31744}",
                     f"buffer_load_dwordx4 {v(VW)}, {SW}, s32 offen offset:{1024*i} {NT} lds") for i in range(4)]
        def v_ops(j): return [(v_m0(j), f"s_mov_b32 s35, {16384*j}", v_dma(i)) for i in range(4)]
        def k_ops(j): return [(k_m0(j), f"s_mov_b32 s34, {16384*j}", k_dma(i)) for i in range(4)]
        m = kt + 1
        def ring(mm):
            return (w_ops(mm + 2), ("w", mm + 2)) if mm <= 7 else (v_ops(mm - 8), ("v", mm - 8))
        if kt == 0:
            place(x_ops(2), [0, 3, 8, 11, 17, 19, 21, 23] if QS else [0, 2, 4, 10, 18, 20, 22, 25], ("x", 2))
            place(w_ops(2), [5, 13, 25, 31] if QS else [7, 13, 15, 30], ("w", 2))
        else:
            ops, tag = ring(kt); place(ops[2:], [8, 17] if QS else [0, 10], tag)
        kk = {6: 0, 7: 1, 9: 2}.get(kt)
        if kk is not None: place(k_ops(kk), [19, 21, 23, 25] if QS else [18, 20, 22, 25], ("k", kk))
        if kt < 9:
            st.pre[pos[0, 4]].append([("x", kt + 1)] + (["lx"] if kt == 0 else []))
            sx_ = [5, 7, 9, 11, 13, 15, 18, 19] if QS else [pos[0, k] for k in range(5, 10)] + [pos[1, k] for k in range(5, 8)]
            xr = set()
            for k in range(8):
                x = x_read(kt + 1, k >> 1, k & 1); st.mem[sx_[k]].append(x); xr |= I(x).w
            st.force[25] = xr
        if kt + 3 < 10: place(x_ops(kt + 3), [29, 33, 37, 41, 45, 49, 57, 65] if QS else [27, 33, 36, 41, 44, 49, 57, 62], ("x", kt + 3))
        need = ([("w", m)] if m < 10 else []) + ([("k", 0)] if m == 9 else []) + (["l1"] if m == ASIG else []) + (["l2"] if m == 10 else [])
        gb = pos[5, 7]
        ops, tag = ring(m)
        place(ops[:2] if m < 10 else ops, ([53, 61] if QS else [53, 60]) if m < 10 else [53, 55, 57, 59], tag)
        if m == 10:
            place(k_ops(3), [61, 63, 65, 67], ("k", 3))
            st.va[last] += ["s_mov_b32 s34, 0x10000", "s_mov_b32 s35, 0xc000"]
        for g in range(pos[0, 5] if kt == 0 else 0, last + 1):
            if any(x.startswith("buffer") for x in st.mem[g]): continue
            n = len(st.mem[g])
            while lnr and n < 2:
                x, tag = lnr.pop(0)
                if isinstance(x, list): st.va[g] += x; break
                if x == "@lw": st.va[g].append(["lw"]); continue
                st.va[g].append(x); n += 0 if x.startswith("s_nop") else 1
                if x.startswith("buffer"): st.tag[x] = tag; break
        if kt == 5: assert not any(x in B.L for x, tag in lnr if isinstance(x, str))
        if m == 8: st.va[gb] += w0_only("APOLLW", ["@poll"] + spin("APOLL", apoll, v(t+12), "32"))
        st.va[gb] += stampl(f"q{kt}b", stamps)
        if need: st.va[gb].append(need)
        st.va[gb] += stampl(f"q{kt}c", stamps)
        st.va[gb].append("s_barrier")
        if m == ASIG:
            assert not any(tag == "l1" for x, tag in lnr)
            st.va[gb] += ["s_lshr_b32 s72, s63, 2", "s_mul_i32 s72, s72, 112", "s_lshl_b32 s73, s63, 2", "s_add_u32 s72, s72, s73", f"v_mov_b32 {v(t+13)}, s72"] + \
                         w0_only("ASIGW", ["s_mov_b32 s73, 1", f"s_atomic_add s73, {s(PDBG,2)}, s72"])
        if m == 7: st.va[gb] += w0_only("APOL0W", [apoll, "@mark"])
        if m == 10:
            assert not lnr
            st.va[gb] += w0_only("BSIGW", ["s_and_b32 s72, s2, 1", "s_lshl_b32 s72, s72, 7", f"s_add_u32 s72, s72, {DBG_B}"] + signal("s72"))
        if m == 8:
            st.va[54] += [f"v_and_b32 {v(t+12)}, 15, v0", f"v_lshlrev_b32 {v(t+12)}, 3, {v(t+12)}"]
            st.sc[55] += ["s_lshl_b32 s72, s30, 7", f"s_add_u32 s72, s72, {STAT_OFF}"]
            for q, g in enumerate((57, 59, 65, 67)):
                x = f"buffer_load_dwordx2 {v(STT+2*q,2)}, {v(t+12)}, {SWS}, s72 offen offset:{128*q} sc1"
                st.mem[g].append(x); st.tag[x] = "st"
        if kt == 9:
            sl = [pos[T, k] for T in range(6) for k in ((1, 3, 7) if QS else (5, 6, 7))]
            for k in range(16): st.mem[sl[k]].append(k_read(0, k >> 2, k & 3))
        st.resolve(vm)
        if kt: stamp(A, f"q{kt}", stamps)
        state = st.emit(A, state, nxt0=regs_of(a(0, 4)) | regs_of(a(xb(kt + 1, 0, 0), 4)))
    stamp(A, "q10", stamps)
    A(f"v_lshrrev_b32 {v(t+12)}, 4, v0", f"v_lshlrev_b32 {v(t+12)}, 4, {v(t+12)}", "s_lshl_b32 s72, s28, 7", f"s_add_u32 s72, s72, {FCS}",
      f"v_add_u32 {v(t+13)}, s72, {v(t+12)}", f"v_mov_b32 {v(t+14)}, {FVOTE}", f"v_mov_b32 {v(t+15)}, 0",
      f"ds_write_b128 {v(t+13)}, {v(CSA,4)}", f"ds_write_b128 {v(t+13)}, {v(CSA+4,4)} offset:64", f"ds_write_b32 {v(t+14)}, {v(t+15)}")
    for k in range(4): A(f"s_lshl_b32 s72, {s(76+k)}, 5", f"s_add_u32 s72, s72, {FCS}", f"v_add_u32 {v(ONES+k)}, s72, {v(t+12)}")
    A(*vm.wait(["st"])); A("s_waitcnt lgkmcnt(0)", "s_barrier")
    def cs_read(T): return f"ds_read_b128 {v(CSR+4*(T%3),4)}, {v(ONES+T//2)} offset:{64*(T&1)}"
    A(cs_read(0), cs_read(1))
    for T in range(8):
        if T + 2 < 8: A(cs_read(T + 2))
        A(f"s_waitcnt lgkmcnt({min(2, 7-T)})")
        c = CSR + 4 * (T % 3)
        for q in range(4):
            for h in range(2): A(f"v_pk_mul_f32 {v(t+12+2*h,2)}, {v(c+2*h,2)}, {v(STT+2*q,2)} op_sel:[0,1] op_sel_hi:[1,1]")
            for h in range(2): A(f"v_pk_fma_f32 {v(acc(q,T)+2*h,2)}, {v(acc(q,T)+2*h,2)}, {v(STT+2*q,2)}, {v(t+12+2*h,2)} op_sel_hi:[1,0,1]")
        for q in range(4):
            for h in range(2): A(f"v_cvt_pk_bf16_f32 {v(Q+16*q+2*T+h)}, {v(acc(q,T)+2*h)}, {v(acc(q,T)+2*h+1)}")
    TMP = J
    for q in range(4):
        for tt in range(4):
            A(f"{MF} {v(TMP+4*q,4)}, {a(kf(0,tt),4)}, {v(qf(q,tt),4)}, {v(TMP+4*q,4) if tt else 0}")
            for i in range(2): A(f"v_accvgpr_write_b32 {a(8*q + 2*tt + i)}, 0")
    clear_sums(A)
    for q in range(4):
        A(f"v_max3_f32 {v(TMP+4*q)}, {v(TMP+4*q)}, {v(TMP+4*q+1)}, {v(TMP+4*q+2)}", f"v_max_f32 {v(TMP+4*q)}, {v(TMP+4*q)}, {v(TMP+4*q+3)}")
    negm_from_max(A, [TMP + 4*q for q in range(4)])
    A("s_movk_i32 s49, 0xfc", "s_mov_b32 s63, 0")
    A("ATT:", "s_nop 1")
    for kt in range(4):
        for tt in range(4):
            A(f"{MF} {v(S+4*kt,4)}, {a(kf(kt,tt),4)}, {v(qf(0,tt),4)}, {v(S+4*kt,4) if tt else v(NM,4)}")
    A("s_mov_b32 s62, 8")
    stamp(A, "att", stamps)
    if stamps: A("s_memtime s[96:97]")
    st = main_loop()
    state = st.emit(None, [])
    A(".p2align 5", "LOOPW:", "s_waitcnt vmcnt(16)", "LOOP:")
    b0 = len(A.L)
    assert state == st.emit(A, state)
    A("s_sub_u32 s62, s62, 1", "s_cmp_eq_u32 s62, 0", "s_cbranch_scc1 LOOPX", "s_bitcmp1_b32 s49, s62", "s_cbranch_scc0 LOOPW", "s_branch SIDE", "LOOPX:")
    body = A.L[b0:]
    stamp(A, "loopx", stamps)
    if stamps: A("s_memtime s[98:99]")
    vm = VM(24)
    tail = []
    for dt in range(8):
        for h in range(2): tail.append(f"{MF} {a(of(dt,3),4)}, {a(vf(h,dt),4)}, {v(P+8+4*h,4)}, {a(of(dt,3),4)}")
    ls = [L + 2*q for q in range(4)]
    B = Asm()
    if 3 in CONV:
        tail = [f"{MF} {v(la(3),4)}, {v(LONE,4)}, {v(P+8+4*h,4)}, {v(la(3),4)}" for h in range(2)] + tail
        B("s_nop 0", "s_nop 0", "s_nop 0", "s_nop 0", "s_nop 0", "s_nop 0", "s_nop 0", "s_nop 0", "s_nop 0")
    for q in range(4): B(f"v_mov_b32 {v(ls[q])}, {v(la(q))}" if q in CONV else f"v_add_f32 {v(ls[q])}, {v(ls[q])}, {v(ls[q]+1)}")
    xgroup_multi(B, [ls[q] for q in range(4) if q not in CONV], [t + i for i in range(4)], "v_add_f32")
    B(f"v_add_f32 {v(t+1)}, {v(ls[0])}, {v(ls[1])}", f"v_add_f32 {v(t+2)}, {v(ls[2])}, {v(ls[3])}", f"v_add_f32 {v(t+1)}, {v(t+1)}, {v(t+2)}",
      f"s_mov_b32 s72, {LMAX}", f"v_cmp_nge_f32 vcc, s72, {v(t+1)}", f"v_mov_b32 {v(t+2)}, {FVOTE}", f"v_mov_b32 {v(t+3)}, 1")
    for q in range(4): B(f"v_rcp_f32 {v(ls[q])}, {v(ls[q])}")
    for i, m in enumerate(tail):
        A(m); A(*B.L[3*i:3*i+3])
    assert len(B.L) <= 3 * len(tail)
    A("s_and_saveexec_b64 s[72:73], vcc", f"ds_write_b32 {v(t+2)}, {v(t+3)}", "s_mov_b64 exec, s[72:73]")
    early = [(x, ("a", k)) for k in range(6, 6 + EARLY) for x in a_loads(k, k)]
    for e in range(4):
        A(f"s_mov_b32 s72, {e*131072}")
        for q in range(4):
            w = S + 12 * (q & 1)
            for b in range(2):
                for r in range(4): A(f"v_accvgpr_read_b32 {v(w+4*b+r)}, {a(of(2*e+b,q)+r)}")
            for i in range(4): A(f"v_pk_mul_f32 {v(w+2*i,2)}, {v(w+2*i,2)}, {v(ls[q],2)} op_sel_hi:[1,0]")
            for i in range(4): A(f"v_cvt_pk_bf16_f32 {v(w+8+i)}, {v(w+2*i)}, {v(w+2*i+1)}")
            put(A, vm, [f"buffer_store_dwordx4 {v(w+8,4)}, {v(L16)}, {SO}, s72 offen offset:{1024*q} sc1"], "o")
            while early:
                x, tag = early.pop(0); put(A, vm, [x], tag)
                if x.startswith("buffer"): break
        if e == 0: A("s_waitcnt lgkmcnt(0)", "s_barrier", f"ds_read_b32 {v(t+3)}, {v(t+2)}")
    stamp(A, "ost", stamps)
    A("s_waitcnt lgkmcnt(0)", f"v_readfirstlane_b32 s72, {v(t+3)}", f"v_mov_b32 {v(t+8)}, 1", f"v_mov_b32 {v(t+9)}, s74",
      "s_andn2_b32 s72, s72, s63", "s_cmp_lg_u32 s72, 0", "s_cbranch_scc1 REDO")
    stamp(A, "vote", stamps)
    assert not early
    weave(A, vm, [(a_loads(k, k), ("a", k)) for k in range(6)], ffn_part1(), 2)
    A("s_barrier")
    A(*vm.wait(["o"]))
    stamp(A, "drain", stamps)
    A("s_mov_b64 exec, 1"); put(A, vm, [f"buffer_store_dword {v(t+8)}, {v(t+9)}, {SWS}, 0 offen sc1"], "f"); A("s_mov_b64 exec, -1")
    oproj(A, vm, stamps)
    if stamps:
        A("s_memrealtime s[62:63]", "s_waitcnt lgkmcnt(0)", "s_sub_u32 s96, s98, s96")
        srd(A, 68, PWS, STAMP_OFF, 0x10000)
        A("s_lshl_b32 s72, s2, 2", "s_add_u32 s72, s72, s28", "s_lshl_b32 s72, s72, 6", f"v_mov_b32 {v(t)}, s72", "s_mov_b64 exec, 1")
        for i, r in enumerate([80 + 2*k for k in range(8)] + [62, 96]):
            A(f"v_mov_b32 {v(t+1)}, {s(r)}", f"buffer_store_dword {v(t+1)}, {v(t)}, {ST}, 0 offen offset:{4*i}", "s_nop 1")
    if stamps and os.environ.get("DBGOUT"):
        A("s_not_b32 s72, s80", "s_sub_u32 s73, s88, s86", "s_sub_u32 s31, s84, s80", "s_sub_u32 s32, s62, s88")
        for i, r in enumerate((72, 62, 73, 96, 31, 32)):
            A(f"v_mov_b32 {v(t+1)}, {s(r)}", f"v_mov_b32 {v(t)}, {44 + 4*i if i < 5 else 16}", f"buffer_atomic_umax {v(t+1)}, {v(t)}, {SDB}, 0 offen sc1", "s_nop 1")
    A("END:", "s_endpgm")
    B = Asm(); side_jobs(B)
    cur = None
    for x in B.L:
        if x in ("s_branch LOOP", "s_branch CHK") and cur: stamp(A, cur + "x", stamps)
        A(x)
        if x.endswith(":") and x[:-1] in [f"JOB{i}" for i in range(7)]:
            cur = x[:-1]; stamp(A, cur, stamps)
    A("REDO:", "s_mov_b32 s63, 1", "s_mov_b32 s49, 0", "s_mov_b32 s34, 0", "s_mov_b64 s[4:5], s[38:39]", "s_mov_b64 s[8:9], s[40:41]", "s_waitcnt vmcnt(0)")
    TMP = J + 20
    M = TMP + 16
    for q in range(4): A(f"v_mov_b32 {v(M+q)}, 0xff800000")
    A("MAXL:", "s_barrier", k_m0(0), "s_nop 0")
    for i in range(4): A(k_dma(i))
    A("s_add_u32 s34, s34, 16384", "s_waitcnt vmcnt(0)", "s_barrier")
    for kt in range(4):
        for tt in range(4): A(k_read(0, kt, tt))
        if kt == 1: A("s_waitcnt lgkmcnt(0)")
    A("s_waitcnt lgkmcnt(0)")
    for q in range(4):
        for kt in range(4):
            for tt in range(4): A(f"{MF} {v(TMP+4*kt,4)}, {a(kf(kt,tt),4)}, {v(qf(q,tt),4)}, {v(TMP+4*kt,4) if tt else 0}")
        A("s_nop 7")
        for i in range(8): A(f"v_max3_f32 {v(M+q)}, {v(M+q)}, {v(TMP+2*i)}, {v(TMP+2*i+1)}")
    A("s_cmp_lt_u32 s34, 0x80000", "s_cbranch_scc1 MAXL")
    negm_from_max(A, [M + q for q in range(4)])
    for i in range(128): A(f"v_accvgpr_write_b32 {a(i)}, 0")
    clear_sums(A)
    A("s_mov_b32 s34, 0", "s_mov_b32 s35, 0", "s_barrier")
    for j in range(4):
        if j > 0:
            A(v_m0(j - 1), "s_nop 0")
            for i in range(4): A(v_dma(i))
            A("s_add_u32 s35, s35, 16384")
        A(k_m0(j), "s_nop 0")
        for i in range(4): A(k_dma(i))
        A("s_add_u32 s34, s34, 16384")
    A("s_waitcnt vmcnt(24)", "s_barrier")
    for kt in range(4):
        for tt in range(4): A(k_read(0, kt, tt))
        if kt == 1: A("s_waitcnt lgkmcnt(0)")
    A("s_waitcnt lgkmcnt(0)", "CODE1:", "s_branch ATT")
    return A, body
```

```python
from core import *
from layout import *

def argmax_keys(A, k0, t, sdst):
    A(f"v_max3_u32 {v(k0)}, {v(k0)}, {v(k0+1)}, {v(k0+2)}", f"v_max_u32 {v(k0)}, {v(k0)}, {v(k0+3)}")
    for r in (8, 4, 2, 1):
        A("s_nop 1", f"v_max_u32_dpp {v(k0)}, {v(k0)}, {v(k0)} row_ror:{r} row_mask:0xf bank_mask:0xf")
    A("s_nop 0")
    for i in range(4): A(f"v_readlane_b32 {s(t+i)}, {v(k0)}, {16*i}")
    A(f"s_max_u32 {s(t)}, {s(t)}, {s(t+1)}", f"s_max_u32 {s(t+2)}, {s(t+2)}, {s(t+3)}", f"s_max_u32 {s(sdst)}, {s(t)}, {s(t+2)}")

def xgroup(A, x, t, op):
    A(f"v_mov_b32 {v(t)}, {v(x)}", "s_nop 1", f"v_permlane16_swap_b32 {v(x)}, {v(t)}", "s_nop 1", f"{op} {v(x)}, {v(x)}, {v(t)}",
      f"v_mov_b32 {v(t)}, {v(x)}", "s_nop 1", f"v_permlane32_swap_b32 {v(x)}, {v(t)}", "s_nop 1", f"{op} {v(x)}, {v(x)}, {v(t)}")

def xgroup_multi(A, xs, ts, op):
    for sw in ("v_permlane16_swap_b32", "v_permlane32_swap_b32"):
        for x, t in zip(xs, ts): A(f"v_mov_b32 {v(t)}, {v(x)}")
        if len(xs) < 3: A("s_nop 1")
        for x, t in zip(xs, ts): A(f"{sw} {v(x)}, {v(t)}")
        if len(xs) < 3: A("s_nop 1")
        for x, t in zip(xs, ts): A(f"{op} {v(x)}, {v(x)}, {v(t)}")

class VM:
    def __init__(self): self.q = []
    def issue(self, tag): self.q.append(tag)
    def n_after(self, tags):
        idx = max(i for i, t in enumerate(self.q) if t in tags)
        return len(self.q) - 1 - idx

def stamp(A, slot, on):
    if on: A(f"s_memrealtime {s(80+2*slot,2)}")

def cstamp(A, k, on):
    if on: A(f"s_memtime {s(66+2*k,2)}")

def stamp_store(A, on, base_pair, kid, nslots, vt):
    if not on: return
    A("s_waitcnt lgkmcnt(0)")
    srd(A, 72, base_pair, STAMP_OFF + kid * 0x10000, 0x10000)
    A(f"s_lshl_b32 s76, s2, 6", f"v_mov_b32 {v(vt)}, s76", "s_mov_b64 exec, 1")
    for i in range(nslots):
        A(f"v_mov_b32 {v(vt+1)}, {s(80+2*i)}", f"buffer_store_dword {v(vt+1)}, {v(vt)}, s[72:75], 0 offen offset:{4*i}", "s_nop 1")
    A("s_sub_u32 s66, s68, s66", f"v_mov_b32 {v(vt+1)}, s66", f"buffer_store_dword {v(vt+1)}, {v(vt)}, s[72:75], 0 offen offset:60")
    A("s_mov_b64 exec, -1")
```

```python
import os
from core import *
from layout import *
from common import argmax_keys, xgroup_multi
import sched

MF = "v_mfma_f32_16x16x32_bf16"
NAME = "recurrent_scan__mha_block_cached__moe_arch_mod__prompt_kernel"
PX, PK, PV, PWQ, PWO, PWR, PG, PU, PD, POUT, PDBG, PWS = 36, 38, 40, 42, 44, 48, 50, 52, 54, 56, 58, 60
SK, SV, SW, SX, SO, SWS, SDB, ST = "s[4:7]", "s[8:11]", "s[12:15]", "s[16:19]", "s[20:23]", "s[24:27]", "s[64:67]", "s[68:71]"
VK, VV, VW = 1, 2, 3
RK, RV, RW = 4, 8, 16
VX, RX = 20, 22
ONES = 26
L16 = 30
Q, ACC = 32, 96
S, P, NM, L = 96, 128, 144, 160
J = 168
T0 = 240
CSA, CSR, STT = 224, 232, 244
KF, VF = 128, 192
VBASE, SPARE = 65536, 131072
XA, XB = SPARE, 32768
FEX, FH, FVOTE, FCS = SPARE + 7680, SPARE + 8192 + 7680, SPARE + 16384 + 7680, SPARE + 24576 + 7680
FKEY = 16384
LDS = 163840
NFFN, NPACK = 216, 256
SEL, RBITS = 46, 47
QR = int(os.environ.get('QR', 1))
ASIG = int(os.environ.get('ASIG', 4))
QS = int(os.environ.get('QS', 1))
QSCALE = 0x3e0293ee
LMAX = 0x5d800000
NLOG2E = 0xbfb8aa3b
DBG_F, DBG_C, DBG_B = 32, 36, 40
LR = int(os.environ.get("MAPLR", 3))
DUMMY = 239
VT = 31
STO = "s[36:39]"
TOUCH = os.environ.get("TOUCH", "a")
PRE = os.environ.get("PRE", "x0,w0,x1,L,C").split(",")
MID = os.environ.get("MID", "w1").split(",")
TPOL = os.environ.get("TPOL", "")

def qf(q, t): return Q + 16 * q + 4 * t
def acc(q, T): return ACC + 32 * q + 4 * T
def kf(kt, t): return KF + 16 * kt + 4 * t
def vf(h, dt): return VF + 32 * h + 4 * dt
def of(dt, q): return 16 * dt + 4 * q
def xb(kt, q, sx): return 192 + 32 * (kt & 1) + 8 * q + 4 * sx
def wslot(kt): return (kt + 2) % 4
KVPOL = os.environ.get("KVPOL", "sc1")
EXP = os.environ.get("EXP", "")
NT = os.environ.get("NT", "")
XNT = os.environ.get("XNT", "")
WSC = os.environ.get("WSC", "sc1")
OSC = os.environ.get("OSC", "sc1")
def k_read(slot, kt, t): return f"ds_read_b128 {a(kf(kt,t),4)}, {v(RK+t)} offset:{slot*16384 + kt*1024}"
def v_read(slot, h, dt, p): return f"ds_read_b64_tr_b16 {a(vf(h,dt)+2*p,2)}, {v(RV+dt)} offset:{slot*16384 + (2*h+p)*1024}"
def k_dma(i): return f"buffer_load_dwordx4 {v(VK)}, {SK}, s34 offen offset:{1024*i} {KVPOL} lds"
def v_dma(i): return f"buffer_load_dwordx4 {v(VV)}, {SV}, s35 offen offset:{1024*i} {KVPOL} lds"
def kv_touch(): return f"buffer_load_dword {v(DUMMY)}, {v(VT)}, {STO}, 0 offen {TPOL}"
def k_m0(slot): return f"s_add_u32 m0, s33, {slot*16384}"
def v_m0(slot): return f"s_add_u32 m0, s33, {VBASE + slot*16384}"

class VM:
    def __init__(self, older=0):
        self.q = [None] * older; self.done = 0
    def issue(self, tag): self.q.append(tag)
    def n_after(self, tags):
        return len(self.q) - 1 - max(i for i, t in enumerate(self.q) if t in tags)
    def wait(self, tags):
        n = self.n_after(tags)
        if len(self.q) - self.done <= n: return []
        self.done = len(self.q) - n
        return [f"s_waitcnt vmcnt({n})"]
    def room(self):
        if len(self.q) - self.done < 62: return []
        self.done = len(self.q) - 56
        return ["s_waitcnt vmcnt(56)"]

class Stream:
    def __init__(self):
        self.mf = []; self.sc = []; self.mem = []; self.va = []; self.force = {}
        self.pre = []; self.tag = {}; self.tagq = {}
    def add(self, m):
        self.mf.append(m); self.sc.append([]); self.mem.append([]); self.va.append([]); self.pre.append([])
        return len(self.mf) - 1
    def resolve(self, vm):
        for g in range(len(self.mf)):
            for need in self.pre[g]: self.sc[g] = vm.wait(need) + self.sc[g]
            tq = list(self.tagq.get(g, []))
            for x in self.mem[g]:
                if x.startswith("buffer"): vm.issue(self.tag[x] if x in self.tag else tq.pop(0))
            out = []
            for x in self.va[g]:
                if isinstance(x, list): out += vm.wait(x)
                elif x == "@mark": vm.mark = len(vm.q)
                elif x == "@poll": out.append(f"s_waitcnt vmcnt({len(vm.q) - vm.mark})")
                else:
                    out.append(x)
                    if x in self.tag: vm.issue(self.tag[x])
            self.va[g] = out
    def emit(self, A, state=None, lag=6, nxt0=None):
        pend = list(state) if state else []
        n = len(self.mf); out = []
        for i in range(n):
            out.append(self.mf[i])
            pre = list(self.sc[i])
            nxt = I(self.mf[i + 1]).ab if i + 1 < n else (I(self.mf[0]).ab if nxt0 is None else nxt0)
            nxt = nxt | self.force.get(i, set())
            hit = [k for k, (rg, t) in enumerate(pend) if rg & nxt]
            if hit:
                k = max(hit)
                while k + 1 < len(pend) and i - pend[k + 1][1] >= lag: k += 1
                left = len(pend) - 1 - k
                assert left <= 15
                pre.insert(0, f"s_waitcnt lgkmcnt({left})")
                pend = pend[k + 1:]
            out += pre
            for m in self.mem[i]:
                out.append(m)
                if m.startswith("ds_read"): pend.append((I(m).w, i))
            out += self.va[i]
        if A is not None: A(*out)
        return [(rg, t - n) for rg, t in pend]

def stamp(A, k, on):
    A(*stampl(k, on))

def stampl(k, on):
    return [f"{'s_memtime' if os.environ.get('CYC') else 's_memrealtime'} {s(80+2*on.index(k),2)}"] if on and k in on else []

def allred32(A, x, t, op):
    for r in (8, 4, 2, 1):
        A("s_nop 1", f"{op}_dpp {v(x)}, {v(x)}, {v(x)} row_ror:{r} row_mask:0xf bank_mask:0xf")
    A(f"v_mov_b32 {v(t)}, {v(x)}", "s_nop 1", f"v_permlane16_swap_b32 {v(x)}, {v(t)}", "s_nop 1", f"{op} {v(x)}, {v(x)}, {v(t)}")

def rbf(A, x):
    A(f"v_cvt_pk_bf16_f32 {v(x)}, {v(x)}, {v(x)}", f"v_lshlrev_b32 {v(x)}, 16, {v(x)}")

def w0_only(label, lines):
    return ["s_cmp_lg_u32 s28, 0", f"s_cbranch_scc1 {label}"] + lines + [f"{label}:"]

def signal(off, r=T0 + 14):
    return ["s_mov_b64 exec, 1", f"v_mov_b32 {v(r)}, 1", f"v_mov_b32 {v(r+1)}, {off}",
            f"buffer_atomic_add {v(r)}, {v(r+1)}, {SDB}, 0 offen sc1", "s_mov_b64 exec, -1"]

def spin(label, reload_, val, expect, mask=None, pre=()):
    m = [f"s_and_b64 vcc, vcc, {mask}"] if mask else []
    return [f"s_mov_b32 s32, {os.environ.get('SPINCAP', '0x100000')}", f"{label}:", *pre, f"v_cmp_gt_u32 vcc, {expect}, {val}", "s_sub_u32 s32, s32, 1", f"s_cbranch_scc1 {label}_OK"] + m + \
           [f"s_cbranch_vccz {label}_OK", "s_sleep 1", reload_, "s_waitcnt vmcnt(0)", f"s_branch {label}", f"{label}_OK:"]

ROW, PP, LXA, LWA, LSA = 32, 33, 34, 35, 36
LX, LW, LF, LS, LD, KEYR = 40, 50, 60, 80, 90, 94

def ln_unpack(d, x):
    o = []
    for i in range(10): o += [f"v_lshlrev_b32 {v(d+2*i)}, 16, {v(x+i)}", f"v_and_b32 {v(d+2*i+1)}, s101, {v(x+i)}"]
    return o

def ln_stats():
    t = 37
    B = Asm()
    B(*ln_unpack(LF, LX))
    for i in range(10): B(f"v_add_f32 {v(LS+i)}, {v(LF+2*i)}, {v(LF+2*i+1)}")
    for i in range(5): B(f"v_add_f32 {v(LS+i)}, {v(LS+i)}, {v(LS+5+i)}")
    B(f"v_add_f32 {v(LS)}, {v(LS)}, {v(LS+1)}", f"v_add_f32 {v(LS+2)}, {v(LS+2)}, {v(LS+3)}", f"v_add_f32 {v(LS)}, {v(LS)}, {v(LS+4)}", f"v_add_f32 {v(LS)}, {v(LS)}, {v(LS+2)}")
    allred32(B, LS, LS + 1, "v_add_f32")
    M, R = LS, LS + 2
    B(f"v_mul_f32 {v(M)}, s100, {v(M)}")
    for i in range(0, 20, 4):
        for k in range(4): B(f"v_sub_f32 {v(LD+k)}, {v(LF+i+k)}, {v(M)}")
        for k in range(4): B(f"{'v_fmac_f32' if i else 'v_mul_f32'} {v(R+k)}, {v(LD+k)}, {v(LD+k)}")
    B(f"v_add_f32 {v(R)}, {v(R)}, {v(R+1)}", f"v_add_f32 {v(R+2)}, {v(R+2)}, {v(R+3)}", f"v_add_f32 {v(R)}, {v(R)}, {v(R+2)}")
    allred32(B, R, R + 1, "v_add_f32")
    B(f"v_mul_f32 {v(R)}, s100, {v(R)}")
    rbf(B, M); rbf(B, R)
    B(f"v_add_f32 {v(R)}, 0x3727c5ac, {v(R)}"); rbf(B, R)
    B(f"v_sqrt_f32 {v(R)}, {v(R)}", "s_nop 0"); rbf(B, R)
    B(f"v_rcp_f32 {v(R)}, {v(R)}", f"v_lshlrev_b32 {v(t)}, 4, {v(ROW)}", f"v_add_u32 {v(t)}, {STAT_OFF}, {v(t)}")
    B(f"v_mul_f32 {v(LS+6)}, {QSCALE}, {v(R)}", f"v_mul_f32 {v(LS+7)}, {v(M)}, {v(LS+6)}", f"v_sub_f32 {v(LS+7)}, 0, {v(LS+7)}")
    B(f"buffer_store_dwordx2 {v(LS+6,2)}, {v(t)}, {SWS}, 0 offen sc1")
    return B.L

def ln_rest():
    t = 37
    M, R = LS, LS + 2
    B = Asm()
    for i in range(20): B(f"v_sub_f32 {v(LF+i)}, {v(LF+i)}, {v(M)}")
    for i in range(10): B(f"v_cvt_pk_bf16_f32 {v(LX+i)}, {v(LF+2*i)}, {v(LF+2*i+1)}")
    B(*ln_unpack(LF, LX))
    for i in range(20): B(f"v_mul_f32 {v(LF+i)}, {v(LF+i)}, {v(R)}")
    for i in range(10): B(f"v_cvt_pk_bf16_f32 {v(LX+i)}, {v(LF+2*i)}, {v(LF+2*i+1)}")
    un = ln_unpack(LF, LX)
    for i in range(5): B(f"buffer_store_dwordx2 {v(LX+2*i,2)}, {v(LXA)}, {SWS}, 0 offen offset:{256*i} sc1", *un[4*i:4*i+4])
    u = LS + 6
    for i in range(10):
        B(f"v_lshlrev_b32 {v(u)}, 16, {v(LW+i)}", f"v_and_b32 {v(u+1)}, s101, {v(LW+i)}")
        op = "v_mul_f32" if i < 2 else "v_fmac_f32"
        B(f"{op} {v(R+2*(i&1))}, {v(LF+2*i)}, {v(u)}", f"{op} {v(R+2*(i&1)+1)}, {v(LF+2*i+1)}, {v(u+1)}")
    B(f"v_add_f32 {v(R)}, {v(R)}, {v(R+1)}", f"v_add_f32 {v(R+2)}, {v(R+2)}, {v(R+3)}", f"v_add_f32 {v(R)}, {v(R)}, {v(R+2)}")
    allred32(B, R, R + 1, "v_add_f32")
    k, u = R, R + 1
    B(f"v_cvt_pk_bf16_f32 {v(k)}, {v(k)}, {v(k)}", f"v_ashrrev_i32 {v(u)}, 31, {v(k)}", f"v_and_b32 {v(u)}, 0x7fff, {v(u)}", f"v_or_b32 {v(u)}, 0x8000, {v(u)}",
      f"v_and_b32 {v(k)}, 0xffff, {v(k)}", f"v_xor_b32 {v(k)}, {v(k)}, {v(u)}", f"v_sub_u32 {v(u)}, 2047, {v(ROW)}", f"v_lshl_or_b32 {v(k)}, {v(k)}, 11, {v(u)}",
      f"v_mov_b32 {v(t)}, {FKEY}", "s_mov_b64 exec, s[44:45]", f"ds_max_u32 {v(t)}, {v(k)}", "s_mov_b64 exec, -1", f"v_mov_b32 {v(u)}, 0")
    B(f"v_lshl_add_u32 {v(t)}, v0, 2, s47", f"buffer_store_dword {v(u)}, {v(t)}, {SWS}, 0 offen sc1")
    return B.L

CONV = tuple(int(c) for c in os.environ.get("CONV", "01"))
LONE, LA = J + 40, J + 48
DLO = int(os.environ.get("DLO", 64))
GUS = int(os.environ.get("GUS", 1))
BAR = int(os.environ.get("BAR", 16))
assert len(CONV) <= 3
def la(q): return LA + 4 * CONV.index(q)

def main_loop():
    plans = {dlo: sched.schedule(CONV, lat=int(os.environ.get("LAT", 8)), bar=BAR, seed=int(os.environ.get("SEED", 2)), wds=float(os.environ.get("WDS", 0.9)), dlo=dlo)
             for dlo in {0, DLO}}
    print("loop overflow units", [p[2] for p in plans.values()], [[p[1]["d", i] for i in range(8)] for p in plans.values()])
    st = Stream()
    for tile in range(4):
        slots, pos, over = plans[0 if tile else DLO]
        base = len(st.mf)
        for kind, q, f in slots:
            qn, qp = (q + 1) % 4, (q - 1) % 4
            sb = S + 16 * ((q + 1) % 2); pb = P + 8 * ((q - 1) % 2)
            if kind == "qk":
                kt, t = divmod(f, 4)
                st.add(f"{MF} {v(sb+4*kt,4)}, {a(kf(kt,t),4)}, {v(qf(qn,t),4)}, {v(NM+4*qn,4) if t == 0 else v(sb+4*kt,4)}")
            elif kind == "pv":
                dt, h = divmod(f, 2)
                st.add(f"{MF} {a(of(dt,qp),4)}, {a(vf(h,dt),4)}, {v(pb+4*h,4)}, {a(of(dt,qp),4)}")
            else:
                st.add(f"{MF} {v(la(qp),4)}, {v(LONE,4)}, {v(pb+4*f,4)}, {v(la(qp),4)}")
        for n, g in sorted(pos.items(), key=lambda x: (x[1], x[0][0] != "e", x[0][1:])):
            g += base
            if n[0] in "eac":
                q, i = n[1:]; sc = S + 16 * (q % 2); pc = P + 8 * (q % 2); l = L + 2 * q + (i & 1)
                st.va[g].append({"e": f"v_exp_f32 {v(sc+i)}, {v(sc+i)}", "a": f"v_add_f32 {v(l)}, {v(l)}, {v(sc+i)}",
                                 "c": f"v_cvt_pk_bf16_f32 {v(pc + i//2)}, {v(sc+i-1)}, {v(sc+i)}"}[n[0]])
            elif n[0] == "v": st.mem[g].append(v_read(tile, n[1] & 1, n[1] >> 1, n[2]))
            elif n[0] == "k": st.mem[g].append(k_read((tile + 1) % 4, n[1] >> 2, n[1] & 3))
            else: st.mem[g].insert(0, v_dma(n[1]) if n[1] < 4 else k_dma(n[1] - 4))
        if tile: st.sc[base + BAR - 1] += ["s_waitcnt vmcnt(16)"]
        st.sc[base + BAR] += ["s_barrier"]
        g = base + pos["d", 0] - 5
        for i, x in enumerate(["s_cmp_lt_u32 s35, 0x80000", "s_cselect_b32 s8, s40, s36", "s_cselect_b32 s9, s41, s37", "s_cselect_b32 s3, 0x4000, s48", v_m0((tile + 3) % 4)]):
            st.sc[g + i].append(x)
        g = base + pos["d", 4] - 6
        for i, x in enumerate(["s_add_u32 s35, s35, s3", "s_cmp_lt_u32 s34, 0x80000", "s_cselect_b32 s4, s38, s42", "s_cselect_b32 s5, s39, s43", "s_cselect_b32 s3, 0x4000, s48", k_m0(tile)]):
            st.sc[g + i].append(x)
        st.sc[base + pos["d", 7] + 1].append("s_add_u32 s34, s34, s3")
    return st

def clear_sums(A):
    for i in range(8): A(f"v_mov_b32 {v(L+i)}, 0")
    for i in range(8): A(f"v_mov_b32 {v(P+8+i)}, 0")
    for q in CONV:
        for i in range(4): A(f"v_mov_b32 {v(la(q)+i)}, 0")
    if CONV:
        for i in range(4): A(f"v_mov_b32 {v(LONE+i)}, 0x3f803f80")

def negm_from_max(A, ms):
    xgroup_multi(A, ms, [T0 + i for i in range(4)], "v_max_f32")
    for q in range(4):
        for r in range(4): A(f"v_sub_f32 {v(NM+4*q+r)}, 0, {v(ms[q])}")

def div_rows(A, d, i, per, magic, stride, t):
    A(f"v_add_u32 {v(t)}, {64*i}, v0", f"v_mul_u32_u24 {v(t+1)}, {magic}, {v(t)}", f"v_lshrrev_b32 {v(t+1)}, 16, {v(t+1)}",
      f"v_mul_u32_u24 {v(t+2)}, {per}, {v(t+1)}", f"v_sub_u32 {v(t+2)}, {v(t)}, {v(t+2)}", f"v_lshlrev_b32 {v(t+2)}, 4, {v(t+2)}",
      f"v_mul_u32_u24 {v(t+1)}, {stride}, {v(t+1)}", f"v_add_u32 {v(d)}, {v(t+1)}, {v(t+2)}")

XRP, XNP = (22, 24, 26, 28, 18), (232, 234, 252, 254, 236)
VXO, VXO2 = 31, 16

def row_io(op, regs, srd_, pol=""):
    return [f"buffer_{op}_dwordx4 {v(regs[2*e],4)}, {v(VXO)}, {srd_}, 0 offen offset:{64*e} {pol}" for e in range(2)] + \
           [f"buffer_{op}_dwordx2 {v(regs[4],2)}, {v(VXO2)}, {srd_}, 0 offen offset:128 {pol}"]

XS, WF, GA = J, J + 20, J + 40
DBGV, DBGA, FFV = J + 46, J + 47, J + 60

def side_jobs(A):
    t = T0
    dbg_load = f"buffer_load_dword {v(DBGV)}, {v(DBGA)}, {SDB}, 0 offen sc1"
    A("SIDE:", "s_waitcnt vmcnt(16)")
    for it in (1, 2, 3, 4, 5, 6): A(f"s_cmp_eq_u32 s62, {7-it}", f"s_cbranch_scc1 JOB{it}")
    def two_counters(off): return [f"v_and_b32 {v(DBGA)}, 1, v0", f"v_lshlrev_b32 {v(DBGA)}, 7, {v(DBGA)}", f"v_add_u32 {v(DBGA)}, {off}, {v(DBGA)}", dbg_load]
    A("JOB0:", "s_lshl_b32 s75, s28, 13", f"s_add_u32 s75, s75, {SPARE}")
    div_rows(A, J + 44, 0, 10, 6554, 1280, t)
    srd(A, 68, PWO, 0, 4096 * 1280)
    A("s_lshr_b32 s73, s2, 1", "s_and_b32 s72, s2, 1", "s_lshl_b32 s72, s72, 2", "s_add_u32 s72, s72, s28",
      f"s_mul_i32 s76, s73, {32*1280}", "s_mul_i32 s77, s72, 160", "s_add_u32 s76, s76, s77",
      f"s_mul_i32 s77, s72, {128*5120}", "s_mul_i32 s73, s73, 5120", "s_add_u32 s77, s77, s73")
    for i in range(6):
        A(f"s_add_u32 m0, s75, {i*1024}", "s_nop 0" if i == 0 else f"s_add_u32 s76, s76, {6*1280}", f"buffer_load_dwordx4 {v(J+44)}, {ST}, s76 offen {NT} lds")
    A(*two_counters(DBG_B)); A("s_branch LOOP")
    A("JOB1:", f"v_lshrrev_b32 {v(t)}, 2, v0", f"v_and_b32 {v(t+8)}, 3, v0", f"v_lshlrev_b32 {v(t+8)}, 3, {v(t+8)}", f"v_add_u32 {v(t+3)}, s75, {v(t+8)}")
    for p in range(2):
        if p: A(f"v_add_u32 {v(t)}, 16, {v(t)}")
        A(f"v_mul_u32_u24 {v(t+1)}, 43, {v(t)}", f"v_lshrrev_b32 {v(t+1)}, 8, {v(t+1)}", f"v_mul_u32_u24 {v(t+2)}, 160, {v(t)}",
          f"v_lshl_add_u32 {v(t+2)}, {v(t+1)}, 6, {v(t+2)}", f"v_add_u32 {v(t+4+p)}, {v(t+2)}, {v(t+3)}", f"v_add_u32 {v(t+6+p)}, {v(t+4+p)}, {v(t+8)}")
    A("s_waitcnt vmcnt(32)")
    for nt in range(5):
        for p in range(2): A(f"ds_read_b64_tr_b16 {v(WF+4*nt+2*p,2)}, {v(t+6+p if nt < 4 else t+4+p)} offset:{64*(nt>>1) + 8*(nt&1)}")
    A("s_movk_i32 s72, 128"); A(*spin("JOB1S", dbg_load, v(DBGV), "s72"))
    A(f"v_lshrrev_b32 {v(DBGA)}, 1, v0", f"v_lshlrev_b32 {v(DBGA)}, 7, {v(DBGA)}", f"v_and_b32 {v(t)}, 1, v0", f"v_lshl_add_u32 {v(DBGA)}, {v(t)}, 4, {v(DBGA)}",
      f"s_mov_b32 s72, {KEY_OFF}", f"buffer_load_dwordx4 {v(XS,4)}, {v(DBGA)}, {SWS}, s72 offen sc1")
    srd(A, 12, PWS, WOF_OFF, WOF_SIZE)
    A("s_and_b32 s76, s2, 7", "s_mul_i32 s76, s76, 27", "s_lshr_b32 s72, s2, 3", "s_min_u32 s72, s72, 26", "s_add_u32 s76, s76, s72",
      "s_mul_i32 s72, s28, 160", f"v_lshrrev_b32 {v(t)}, 1, v0", f"v_add_u32 {v(t)}, s72, {v(t)}", f"v_mul_u32_u24 {v(t)}, 3456, {v(t)}",
      "s_lshl_b32 s72, s76, 4", f"v_add_u32 {v(t)}, s72, {v(t)}", f"v_and_b32 {v(t+1)}, 1, v0", f"v_cmp_eq_u32 vcc, 1, {v(t+1)}",
      f"v_mov_b32 {v(t+2)}, {s(PG)}", f"v_mov_b32 {v(t+3)}, {s(PU)}", f"v_cndmask_b32 {v(t+2)}, {v(t+2)}, {v(t+3)}, vcc",
      f"v_mov_b32 {v(t+1)}, {s(PG+1)}", f"v_mov_b32 {v(t+3)}, {s(PU+1)}", f"v_cndmask_b32 {v(t+3)}, {v(t+1)}, {v(t+3)}, vcc",
      f"v_add_co_u32 {v(J+44)}, vcc, {v(t+2)}, {v(t)}", "s_nop 1", f"v_addc_co_u32 {v(J+45)}, vcc, 0, {v(t+3)}, vcc",
      "s_waitcnt lgkmcnt(0)")
    for nt in range(5):
        A(f"buffer_store_dwordx4 {v(WF+4*nt,4)}, {v(L16)}, {SW}, s77 offen offset:{1024*(nt%4)} sc1")
        if nt == 3: A("s_add_u32 s77, s77, 4096")
    def gu(first):
        if not first: A("s_add_u32 s77, s77, 1", "s_cmp_eq_u32 s77, 5", "s_cselect_b32 s77, 0, s77")
        A("s_lshl_b32 s72, s77, 10", "s_add_u32 m0, s75, s72", f"s_mul_i32 s72, s77, {32*3456}", "s_mov_b32 s73, 0",
          f"v_lshl_add_u64 {v(t,2)}, {v(J+44,2)}, 0, s[72:73]", f"global_load_lds_dwordx4 {v(t,2)}, off {NT if first else ''}")
    A("s_lshr_b32 s77, s2, 3", "s_and_b32 s77, s77, 7", "s_cmp_ge_u32 s77, 5", "s_cselect_b32 s72, 5, 0", "s_sub_u32 s77, s77, s72")
    gu(True)
    A("s_branch LOOP")
    A("JOB2:", "s_waitcnt vmcnt(32)")
    argmax_keys(A, XS, 68, RBITS)
    A(f"s_and_b32 {s(SEL)}, {s(RBITS)}, 2047", f"s_sub_u32 {s(SEL)}, 2047, {s(SEL)}", f"s_lshr_b32 {s(RBITS)}, {s(RBITS)}, 11",
      f"s_bitcmp1_b32 {s(RBITS)}, 15", "s_mov_b32 s72, 0xffff", "s_cselect_b32 s72, 0x8000, s72", f"s_xor_b32 {s(RBITS)}, {s(RBITS)}, s72", f"s_lshl_b32 {s(RBITS)}, {s(RBITS)}, 16",
      f"s_mul_i32 s73, {s(SEL)}, 1280", "s_mul_i32 s72, s28, 320", "s_add_u32 s73, s73, s72", f"v_and_b32 {v(t)}, 48, v0")
    for i in range(5): A(f"buffer_load_dwordx4 {v(XS+4*i,4)}, {v(t)}, {SWS}, s73 offen offset:{64*i} sc1")
    A(*w0_only("JOB2W", ["s_lshr_b32 s72, s2, 3", "s_lshl_b32 s72, s72, 5", "s_and_b32 s73, s2, 7", "s_add_u32 s72, s72, s73", "s_lshl_b32 s72, s72, 2",
                         f"s_add_u32 s72, s72, {FF_OFF}", f"v_mov_b32 {v(t+14)}, 1", f"v_mov_b32 {v(t+15)}, s72", f"buffer_store_dword {v(t+14)}, {v(t+15)}, {SWS}, 0 offen sc1"]))
    gu(False); A("s_branch LOOP")
    A("JOB3:")
    srd(A, 68, PD, 0, 1728 * 1280)
    A("s_mul_i32 s72, s76, 10240", "s_mul_i32 s73, s28, 2560", "s_add_u32 s72, s72, s73", "s_add_u32 m0, s75, 5120")
    for i in range(3):
        A("s_mov_b64 exec, 0xffffffff" if i == 2 else "s_nop 0", f"buffer_load_dwordx4 {v(L16)}, {ST}, s72 offen offset:{1024*i} {NT} lds")
    A("s_mov_b64 exec, -1")
    oproj_setup_early(A)
    A(f"v_and_b32 {v(t)}, 15, v0", f"v_lshrrev_b32 {v(t+1)}, 4, v0", "s_lshl_b32 s73, s78, 6", "s_lshl_b32 s72, s28, 4", "s_add_u32 s73, s73, s72",
      f"v_add_u32 {v(t)}, s73, {v(t)}", "s_mul_i32 s72, s79, 160", f"v_mul_u32_u24 {v(t)}, 1280, {v(t)}", f"v_add_u32 {v(t)}, s72, {v(t)}",
      f"v_lshl_add_u32 {v(VXO)}, {v(t+1)}, 4, {v(t)}", f"v_lshl_add_u32 {v(VXO2)}, {v(t+1)}, 3, {v(t)}")
    gu(False); A("s_branch LOOP")
    ff_load = f"buffer_load_dwordx4 {v(FFV,4)}, {v(DBGA)}, {SWS}, 0 offen sc1"
    A("JOB4:", f"v_add_u32 {v(DBGA)}, {FF_OFF}, {v(DBGA)}", ff_load, *row_io("load", XRP, SX)[:1])
    gu(False); A("s_branch LOOP")
    A("JOB5:", "s_waitcnt vmcnt(32)")
    A(*spin("JOB5S", ff_load, v(FFV), "1", pre=[f"v_min3_u32 {v(FFV)}, {v(FFV)}, {v(FFV+1)}, {v(FFV+2)}", f"v_min_u32 {v(FFV)}, {v(FFV)}, {v(FFV+3)}"]))
    A(*row_io("load", XRP, SX)[1:])
    gu(False); A("s_branch LOOP")
    n = 1 << LR
    k0 = int(os.environ.get("TK0", 19))
    A("JOB6:", *row_io("load", XNP, SWS, "sc1"))
    A("s_lshr_b32 s72, s2, 3", f"s_and_b32 s72, s72, {n-1}", f"s_add_u32 s72, s72, {k0*40}", f"v_lshl_add_u32 {v(t)}, v0, {LR}, s72", f"v_lshlrev_b32 {v(t)}, 7, {v(t)}")
    for i in range((32 - k0) * 40 // (64 * n)):
        if i: A(f"v_add_u32 {v(t)}, {64*n*128}, {v(t)}")
        A(f"buffer_load_dword {v(DUMMY)}, {v(t)}, {SW}, 0 offen sc1")
    A("s_branch LOOP")

def ffn_part1():
    t = T0; B = Asm()
    B(f"v_lshrrev_b32 {v(t)}, 4, v0", f"v_bfe_u32 {v(t+1)}, v0, 2, 2", f"v_lshl_add_u32 {v(t)}, {v(t)}, 3, {v(t+1)}",
      f"v_and_b32 {v(t+1)}, 3, v0", f"v_lshlrev_b32 {v(t+1)}, 3, {v(t+1)}", f"v_lshl_add_u32 {v(t)}, {v(t)}, 5, {v(t+1)}", f"v_add_u32 {v(t)}, s75, {v(t)}")
    for i in range(5):
        for p in range(2): B(f"ds_read_b64_tr_b16 {v(WF+4*i+2*p,2)}, {v(t)} offset:{i*1024 + p*128}")
    B(f"v_and_b32 {v(t+3)}, 15, v0", f"v_lshlrev_b32 {v(t+1)}, 4, {v(t+3)}", "s_lshl_b32 s72, s28, 2", f"s_add_u32 s72, s72, {FEX}", f"v_add_u32 {v(t+1)}, s72, {v(t+1)}",
      "s_mul_i32 s72, s28, 320", f"s_add_u32 s72, s72, {SPARE}", "s_movk_i32 s73, 1280", "s_waitcnt lgkmcnt(0)")
    for i in range(5): B(f"{MF} {v(GA,4)}, {v(XS+4*i,4)}, {v(WF+4*i,4)}, {v(GA,4) if i else 0}")
    B(f"v_bfe_u32 {v(t)}, v0, 3, 2", f"v_lshlrev_b32 {v(t)}, 13, {v(t)}", f"v_bfe_u32 {v(t+2)}, v0, 2, 1", f"v_mad_u32_u24 {v(t)}, {v(t+2)}, s73, {v(t)}",
      f"v_and_b32 {v(t+2)}, 3, v0", f"v_lshl_add_u32 {v(t)}, {v(t+2)}, 3, {v(t)}", f"v_add_u32 {v(t)}, s72, {v(t)}", "s_nop 0", f"ds_write_b32 {v(t+1)}, {v(GA)}")
    for nt in range(10): B(f"ds_read_b64_tr_b16 {v(WF+2*nt,2)}, {v(t)} offset:{5120 + nt*32}")
    B("s_waitcnt lgkmcnt(0)")
    return B.L

def ffn_part2():
    t = T0; G = GA; B = Asm()
    B(f"v_and_b32 {v(t)}, 7, v0", f"v_lshlrev_b32 {v(t+1)}, 4, {v(t)}", f"v_add_u32 {v(t+1)}, {FEX}, {v(t+1)}",
      f"ds_read_b128 {v(G,4)}, {v(t+1)}", f"ds_read_b128 {v(G+4,4)}, {v(t+1)} offset:128",
      "s_lshl_b32 s72, s28, 5", f"s_add_u32 s72, s72, {FH}", f"v_lshl_add_u32 {v(t+1)}, {v(t)}, 1, s72", f"v_bfe_u32 {v(t)}, v0, 4, 1", f"v_lshl_add_u32 {v(t)}, {v(t)}, 3, s72",
      "s_waitcnt lgkmcnt(0)")
    for m in range(2):
        b = G + 4 * m
        B(f"v_add_f32 {v(b)}, {v(b)}, {v(b+1)}", f"v_add_f32 {v(b+2)}, {v(b+2)}, {v(b+3)}", f"v_add_f32 {v(b)}, {v(b)}, {v(b+2)}")
    B(f"v_cvt_pk_bf16_f32 {v(G)}, {v(G)}, {v(G+4)}", f"v_and_b32 {v(G+4)}, 0xffff0000, {v(G)}", f"v_lshlrev_b32 {v(G)}, 16, {v(G)}",
      f"v_mul_f32 {v(G+1)}, {NLOG2E}, {v(G)}", f"v_exp_f32 {v(G+1)}, {v(G+1)}", "s_nop 0", f"v_add_f32 {v(G+1)}, 1.0, {v(G+1)}",
      f"v_rcp_f32 {v(G+1)}, {v(G+1)}", "s_nop 0", f"v_mul_f32 {v(G)}, {v(G)}, {v(G+1)}",
      f"v_cvt_pk_bf16_f32 {v(G)}, {v(G)}, {v(G)}", f"v_lshlrev_b32 {v(G)}, 16, {v(G)}", f"v_mul_f32 {v(G)}, {v(G)}, {v(G+4)}",
      f"v_cvt_pk_bf16_f32 {v(G)}, {v(G)}, {v(G)}", f"ds_write_b16 {v(t+1)}, {v(G)}", "s_waitcnt lgkmcnt(0)", f"ds_read_b64 {v(G,2)}, {v(t)}",
      "v_cmp_gt_u32 vcc, 32, v0", "s_lshr_b32 s73, s2, 3", "s_cmp_lt_u32 s73, 27", f"s_mov_b32 s73, {WSLO}", f"s_cselect_b32 s73, {Y_OFF}, s73",
      "s_mul_i32 s72, s28, 640", "s_add_u32 s72, s72, s73", "s_and_b32 s73, s2, 15", "s_mul_i32 s73, s73, 2560", "s_add_u32 s72, s72, s73",
      f"v_lshl_add_u32 {v(t+3)}, {v(t+3)}, 2, s72", "s_waitcnt lgkmcnt(0)",
      f"v_cndmask_b32 {v(G)}, 0, {v(G)}, vcc", f"v_cndmask_b32 {v(G+1)}, 0, {v(G+1)}, vcc", "s_nop 1")
    outs = [XS + 4*i for i in range(5)] + [J + 44 + 4*i for i in range(5)]
    for nt in range(10): B(f"v_mfma_f32_16x16x16_bf16 {v(outs[nt],4)}, {v(G,2)}, {v(WF+2*nt,2)}, 0")
    B("s_mov_b64 exec, 0xffff")
    for nt in range(10):
        if nt >= 8: B("s_nop 1")
        B(f"buffer_atomic_add_f32 {v(outs[nt])}, {v(t+3)}, {SWS}, 0 offen offset:{64*nt}")
    B("s_mov_b64 exec, -1")
    return B.L

def weave(A, vm, loads, fill, per):
    fill = list(fill)
    def pop():
        x = fill.pop(0)
        if x.startswith("s_mov_b64 exec, 0x"):
            while True:
                put(A, vm, [x], "fa")
                if x == "s_mov_b64 exec, -1": return
                x = fill.pop(0)
        put(A, vm, [x], "fa")
        while x.startswith(("s_cmp", "s_mov_b32 s73")): x = fill.pop(0); put(A, vm, [x], "fa")
    for lines, tag in loads:
        for x in lines:
            put(A, vm, [x], tag)
            if x.startswith("buffer_"):
                for _ in range(per):
                    if fill: pop()
    while fill: pop()

OACC, OB, OT = 32, 112, 192
NB = 5
def oacc(i, nt): return OACC + 20 * i + 4 * nt
def aslot(k): return (128 + 20 * (k - 6)) if k >= 6 else 20 * k

def oproj_setup_early(A):
    lr = LR
    A("s_and_b32 s72, s2, 7", "s_lshr_b32 s73, s2, 3", f"s_lshr_b32 s78, s72, {lr-2}", f"s_lshl_b32 s78, s78, {lr}", f"s_and_b32 s79, s73, {(1<<lr)-1}", "s_add_u32 s78, s78, s79",
      f"s_and_b32 s72, s72, {(1<<(lr-2))-1}", f"s_lshl_b32 s72, s72, {5-lr}", f"s_lshr_b32 s79, s73, {lr}", "s_add_u32 s79, s79, s72",
      f"s_mul_i32 s72, s79, {128*5120}", f"s_mul_i32 s73, s28, {32*5120}", "s_add_u32 s72, s72, s73", f"s_add_u32 s72, s72, {WOF_OFF}")
    srd(A, 12, PWS, "s72", 32 * 5120)
    A("s_sub_u32 s72, s72, s33", f"s_sub_u32 s72, s72, {0x80000 - 60*1024}", f"s_add_u32 s42, {s(PWS)}, s72", f"s_addc_u32 s43, {s(PWS+1)}, 0",
      "s_add_u32 s36, s42, 16384", "s_addc_u32 s37, s43, 0")

def a_loads(k, slot):
    out = [f"s_mov_b32 s31, {k*5120}", f"s_mov_b32 s32, {k*5120+4096}"]
    for nt in range(5):
        out.append(f"buffer_load_dwordx4 {a(aslot(slot)+4*nt,4)}, {v(L16)}, {SW}, {'s32' if nt == 4 else 's31'} offen offset:{1024*(nt%4)} {WSC}")
    return out

def put(A, vm, lines, tag):
    for x in lines:
        if x.startswith(("buffer_", "global_")):
            A(*vm.room()); A(x); vm.issue(tag)
        else: A(x)

OLEAD = int(os.environ.get('OLEAD', 8))
NL = 7
TAILK = int(os.environ.get("TAILK", 2))
EARLY = int(os.environ.get("EARLY", 0))
def lds_frag(n):
    if n < 16: return VK, (n >> 2) * 16384 + (n & 3) * 1024
    if n < 28: return VV, ((n - 16) >> 2) * 16384 + (n & 3) * 1024
    return 21, (n - 28) * 1024

def late_loads():
    out = []
    for n in range(28, 35):
        if n in (28, 32): out += [f"s_add_u32 m0, s48, {(n-28)*1024}", f"s_mov_b32 s31, {(60+n)*1024}"]
        out.append(f"buffer_load_dwordx4 {v(L16)}, {SW}, s31 offen offset:{1024*(n & 3)} {WSC} lds")
    return out

def oproj(A, vm, stamps):
    t = T0
    VB, VROW, WX = 3, 7, 9
    RE, VY, VF_, VY2 = 12, 13, 14, 15
    G = OT + 20
    XR = [p + h for p in XRP for h in range(2)]; XNR = [p + h for p in XNP for h in range(2)]
    B = Asm()
    B("s_lshl_b32 s72, s78, 9", "s_lshl_b32 s73, s28, 7", "s_add_u32 s72, s72, s73", f"s_add_u32 s72, s72, {FLAG_OFF}",
      f"v_and_b32 {v(VF_)}, 7, v0", f"v_lshl_add_u32 {v(VF_)}, {v(VF_)}, 2, s72")
    for i in range(4):
        B(f"s_add_u32 s72, s28, {i}", "s_and_b32 s72, s72, 3", "s_lshl_b32 s72, s72, 10", f"v_add_u32 {v(VB+i)}, s72, {v(L16)}")
    B(f"v_add_u32 {v(VV)}, {VBASE}, {v(VV)}")
    B(f"v_and_b32 {v(t)}, 15, v0", f"v_lshrrev_b32 {v(t+1)}, 4, v0", "s_lshl_b32 s74, s78, 6", "s_lshl_b32 s72, s28, 4", "s_add_u32 s74, s74, s72",
      f"v_add_u32 {v(VROW)}, s74, {v(t)}",
      "s_mul_i32 s72, s79, 320", f"s_add_u32 s72, s72, {Y_OFF}", f"v_mul_u32_u24 {v(t+2)}, 2560, {v(t)}", f"v_add_u32 {v(t+2)}, s72, {v(t+2)}",
      f"v_lshl_add_u32 {v(VY)}, {v(t+1)}, 5, {v(t+2)}", f"v_lshl_add_u32 {v(VY2)}, {v(t+1)}, 4, {v(t+2)}")
    for i in range(1, 4):
        B(f"s_sub_u32 s72, s28, {i}", "s_and_b32 s72, s72, 3", "s_lshl_b32 s72, s72, 12", f"v_add_u32 {v(WX+i-1)}, s72, {v(L16)}")
    B(f"v_add_u32 {v(RE)}, s33, {v(L16)}",
      f"s_sub_u32 s75, {s(SEL)}, s74", f"v_mov_b32 {v(t+10)}, {DBG_C}", f"s_mov_b32 s100, {NLOG2E}", "s_mov_b32 s101, 0xffff0000")
    VOT, RA2 = 20, 21
    B(f"v_lshrrev_b32 {v(VOT)}, {LR}, v0", f"v_lshlrev_b32 {v(VOT)}, 17, {v(VOT)}", f"s_lshr_b32 s72, s2, {3+LR}", f"s_lshl_b32 s72, s72, {LR}",
      f"v_and_b32 {v(t)}, {(1<<LR)-1}, v0", f"v_add_u32 {v(t)}, s72, {v(t)}", f"v_lshl_add_u32 {v(VOT)}, {v(t)}, 7, {v(VOT)}")
    A("s_mov_b32 s48, s75")
    B(f"v_add_u32 {v(RA2)}, s48, {v(L16)}")
    order = [0, 1, 2, 3, 4, 5, 6, 7, 8, 9, 10, 11]
    order = [k for k in order if ("a", k) not in vm.q]
    weave(A, vm, [(a_loads(k, k), ("a", k)) for k in order[:2]], ffn_part2(), 8)
    A("s_lshl_b32 s72, s78, 12", "s_lshl_b32 s73, s28, 22", "s_add_u32 s72, s72, s73", f"s_add_u32 s72, s72, {OF_OFF}")
    srd(A, 20, PWS, "s72", 31 * 131072 + 4096)
    srd(A, 4, POUT, 0, 2048 * 1280)
    weave(A, vm, [(a_loads(k, k), ("a", k)) for k in order[2:3]], B.L, 12)
    fpoll = f"buffer_load_dword {v(t+8)}, {v(VF_)}, {SWS}, 0 offen sc1"
    put(A, vm, [fpoll], "flag")
    for k in order[3:]: put(A, vm, a_loads(k, k), ("a", k))
    put(A, vm, late_loads(), "l")
    A(*vm.wait(["flag"]))
    A("s_barrier", *w0_only("OCSIG", ["s_mov_b32 s72, 1", f"s_atomic_add s72, {s(PDBG,2)}, {DBG_C}"]))
    A(*spin("OFLAG", fpoll, v(t+8), "1"))
    stamp(A, "flag", stamps)
    def o_off(k):
        if 'r' in EXP: return [f"s_add_u32 s34, s35, {k*131072}", "s_and_b32 s34, s34, 0x3fffff"]
        return [f"s_mov_b32 s34, {k*131072}"]
    if 'r' in EXP: A(f"s_lshr_b32 s35, s2, {3+LR}", f"s_lshl_b32 s35, s35, {17+LR}")
    def b_load(k, i): return f"buffer_load_dwordx4 {v(OB+16*(k%NB)+4*i,4)}, {v(VB+i)}, {SO}, s34 offen {OSC}"
    for k in range(NB - 1):
        A(*o_off(k))
        put(A, vm, [b_load(k, i) for i in range(4)], ("b", k))
    def asrc(k):
        if k < 12: return lambda nt: a(aslot(k) + 4*nt, 4)
        if k < 12 + NL: return lambda nt: v(OT + 20*(k & 1) + 4*nt, 4)
        return lambda nt: a(aslot((k - 12 - NL) % 12) + 4*nt, 4)
    refill = []
    for i in range(20 - NL):
        for nt in range(5): refill.append((i, nt))
    va = gate_ops(XNR, G)
    state = []
    cpoll = f"buffer_load_dword {v(t+9)}, {v(t+10)}, {SDB}, 0 offen sc1"
    for k in range(32):
        st = Stream()
        for i in ((1, 2, 3, 0) if k == 31 else range(4)):
            for nt in range(5):
                c = v(oacc(i, nt), 4) if k else 0
                st.add(f"{MF} {v(oacc(i,nt),4)}, {asrc(k)(nt)}, {v(OB+16*(k%NB)+4*i,4)}, {c}")
        need = [("b", k)] + ([("a", k)] if k < 12 or k >= 12 + NL else [])
        A(*vm.wait(need))
        if 11 <= k < 11 + NL:
            st.sc[0] += vm.wait(["l"])
            for nt in range(5):
                r, o = lds_frag(5 * (k + 1 - 12) + nt)
                st.mem[1 + nt].append(f"ds_read_b128 {v(OT+20*((k+1)&1)+4*nt,4)}, {v(r)} offset:{o}")
        if k == 22: A("s_cmp_lt_u32 s75, 16", "s_cbranch_scc0 OC3", f"s_waitcnt vmcnt({len(vm.q) - ny})", *route_ops(G, VROW), "OC3:")
        ops = []
        def mem(g, x, tag): ops.append((g, x, tag))
        kb = k + NB - 1
        if kb < 32:
            for i, x in enumerate(o_off(kb)): st.sc[4 + i].append(x)
            for i in range(4): mem(6 + 2*i, b_load(kb, i), ("b", kb))
        n = 3 if k % 4 else 2
        g = 14
        while n and refill and (refill[0][0] if refill[0][0] < 12 else refill[0][0] + NL) < k:
            i, nt = refill.pop(0)
            st.sc[g - 1].append(f"s_mov_b32 s31, {(12+NL+i)*5120 + 1024*nt}")
            mem(g, f"buffer_load_dwordx4 {a(aslot(i % 12)+4*nt,4)}, {v(L16)}, {SW}, s31 offen {WSC}", ("a", 12 + NL + i)); g += 2; n -= 1
        span = 64 >> LR
        if "o" in TOUCH and (k + OLEAD) % span == 0 and k + OLEAD < 32:
            st.sc[2].append(f"s_mov_b32 s32, {(k + OLEAD) * 131072}")
            mem(3, f"buffer_load_dword {v(DUMMY)}, {v(VOT)}, {SO}, s32 offen sc1", "t")
        if k == 15: st.va[19] += ["s_cmp_lt_u32 s75, 16", "s_cbranch_scc0 OC1", cpoll, "OC1:"]; nc = len(vm.q) + len(ops)
        if k == 20:
            for i in range(20): st.va[2 * (i // 2) + (1 if i >= 10 else 0)].append(f"v_mov_b32 {v(G+i)}, 0")
            st.va[19] += ["s_cmp_lt_u32 s75, 16", "s_cbranch_scc0 OC2", f"s_waitcnt vmcnt({len(vm.q) + len(ops) - nc})"] + spin("OCS", cpoll, v(t+9), "s72") + \
                         [f"buffer_load_dwordx4 {v(G+4*nt,4)}, {v(VY if nt < 4 else VY2)}, {SWS}, 0 offen offset:{128*(nt>>1) + 16*(nt&1)} sc1" for nt in range(5)] + ["OC2:"]
            st.va[18].append("s_movk_i32 s72, 256")
        for g, x, tag in sorted(ops, key=lambda o: o[0]):
            st.sc[g] += vm.room(); st.mem[g].append(x); vm.issue(tag)
        if k == 20: ny = len(vm.q)
        if 23 <= k <= 30:
            for g in range(1, 20):
                if any(x.startswith("buffer") for x in st.mem[g]): continue
                for _ in range(2):
                    if va:
                        x = va.pop(0); st.va[g].append(x)
                        if x.startswith(TRANS): break
        if k == 31:
            assert not va
            for n in range(10): st.mem[9 + n].append(f"ds_write_b128 {v(RE)}, {v(oacc(1 + n // 5, n % 5),4)} offset:{lds_frag(n)[1]}")
        nx0 = regs_of(" ".join(asrc(k + 1)(nt) for nt in range(5))) if k < 31 else set()
        stamp(A, f"g{k}", stamps)
        state = st.emit(A, state, nxt0=nx0)
    assert not refill
    A(*va)
    stamp(A, "gend", stamps)
    for n in range(10, 15): A(f"ds_write_b128 {v(RE)}, {v(oacc(3, n % 5),4)} offset:{lds_frag(n)[1]}")
    XF = OB
    for i in range(10): A(f"v_lshlrev_b32 {v(XF+2*i)}, 16, {v(XR[i])}", f"v_and_b32 {v(XF+2*i+1)}, s101, {v(XR[i])}")
    A("s_waitcnt lgkmcnt(0)", "s_barrier")
    for nt in range(5):
        for i in range(1, 4): A(f"ds_read_b128 {v(oacc(i,nt),4)}, {v(WX+i-1)} offset:{lds_frag(5*(i-1) + nt)[1]}")
    for nt in range(5):
        A(f"s_waitcnt lgkmcnt({3*(4-nt)})")
        for r in range(4): A(f"v_add_f32 {v(oacc(0,nt)+r)}, {v(oacc(0,nt)+r)}, {v(oacc(1,nt)+r)}")
        for r in range(4): A(f"v_add_f32 {v(oacc(2,nt)+r)}, {v(oacc(2,nt)+r)}, {v(oacc(3,nt)+r)}")
        for r in range(4): A(f"v_add_f32 {v(oacc(0,nt)+r)}, {v(oacc(0,nt)+r)}, {v(oacc(2,nt)+r)}")
        for r in range(4): A(f"v_fmac_f32 {v(XF+4*nt+r)}, {v(oacc(0,nt)+r)}, {v(G+4*nt+r)}")
        for h in range(2): A(f"v_cvt_pk_bf16_f32 {v(XR[2*nt+h])}, {v(XF+4*nt+2*h)}, {v(XF+4*nt+2*h+1)}")
        if nt in (1, 3, 4): A(row_io("store", XRP, SK)[nt // 2])

def rb2(x):
    return [f"v_cvt_pk_bf16_f32 {v(x)}, {v(x)}, {v(x+1)}", f"v_and_b32 {v(x+1)}, s101, {v(x)}", f"v_lshlrev_b32 {v(x)}, 16, {v(x)}"]

def route_ops(G, VROW):
    t = T0; o = []
    r = t + 11
    o += [f"v_mov_b32 {v(r)}, {s(RBITS)}", f"v_mul_f32 {v(r)}, s100, {v(r)}", f"v_exp_f32 {v(r)}, {v(r)}", f"v_cmp_eq_u32 vcc, {s(SEL)}, {v(VROW)}", f"v_add_f32 {v(r)}, 1.0, {v(r)}",
          f"v_rcp_f32 {v(r)}, {v(r)}", "s_nop 0", f"v_cvt_pk_bf16_f32 {v(r)}, {v(r)}, {v(r)}", f"v_lshlrev_b32 {v(r)}, 16, {v(r)}"]
    for ror in (8, 4, 2, 1):
        for i in range(20): o.append(f"v_add_f32_dpp {v(G+i)}, {v(G+i)}, {v(G+i)} row_ror:{ror} row_mask:0xf bank_mask:0xf")
    for i in range(10): o += rb2(G + 2*i)
    for i in range(20): o.append(f"v_mul_f32 {v(G+i)}, {v(G+i)}, {v(r)}")
    for i in range(10): o += rb2(G + 2*i)
    for i in range(20): o.append(f"v_cndmask_b32 {v(G+i)}, 0, {v(G+i)}, vcc")
    return o

def gate_ops(XNR, G):
    t = T0; o = []
    for i in range(10):
        o += [f"v_lshlrev_b32 {v(t)}, 16, {v(XNR[i])}", f"v_and_b32 {v(t+1)}, s101, {v(XNR[i])}",
              f"v_add_f32 {v(G+2*i)}, {v(G+2*i)}, {v(t)}", f"v_add_f32 {v(G+2*i+1)}, {v(G+2*i+1)}, {v(t+1)}"]
    for i in range(10): o += rb2(G + 2*i)
    for h in range(4):
        for i in range(5): o.append(f"v_mul_f32 {v(t+i)}, s100, {v(G+5*h+i)}")
        for i in range(5): o.append(f"v_exp_f32 {v(t+i)}, {v(t+i)}")
        for i in range(5): o.append(f"v_add_f32 {v(t+i)}, 1.0, {v(t+i)}")
        for i in range(5): o.append(f"v_rcp_f32 {v(t+i)}, {v(t+i)}")
        for i in range(5): o.append(f"v_mul_f32 {v(G+5*h+i)}, {v(G+5*h+i)}, {v(t+i)}")
    for i in range(10): o += rb2(G + 2*i)
    return o

def gen(stamps=False):
    A = Asm()
    t = T0
    A("s_cmp_ge_u32 s2, 256", "s_cbranch_scc1 END")
    stamp(A, "start", stamps)
    A("s_load_dwordx16 s[36:51], s[0:1], 0", "s_load_dwordx8 s[52:59], s[0:1], 64", "s_load_dwordx2 s[60:61], s[0:1], 96")
    A(f"v_lshrrev_b32 {v(t)}, 6, v0", f"v_lshrrev_b32 {v(ROW)}, 5, v0", f"v_readfirstlane_b32 s28, {v(t)}", f"v_and_b32 {v(PP)}, 31, v0")
    A("s_and_b32 s29, s2, 7", "s_lshl_b32 s29, s29, 2", "s_lshr_b32 s30, s2, 3", "s_and_b32 s31, s30, 3", "s_add_u32 s29, s29, s31", "s_lshr_b32 s63, s30, 2",
      "v_and_b32 v0, 63, v0", "s_lshl_b32 s30, s63, 4", "s_lshl_b32 s31, s28, 2", "s_add_u32 s30, s30, s31", "s_lshl_b32 s33, s28, 12", "s_lshl_b32 s75, s28, 13")
    vm = VM()
    A(f"v_lshrrev_b32 {v(t)}, 3, v0", f"v_and_b32 {v(t+1)}, 7, v0", f"v_lshrrev_b32 {v(t+2)}, 4, v0", "s_lshl_b32 s31, s30, 4", f"v_add_u32 {v(t)}, s31, {v(t)}",
      f"v_mul_u32_u24 {v(t)}, 1280, {v(t)}", f"v_xor_b32 {v(t+3)}, {v(t+1)}, {v(t+2)}", f"v_lshl_add_u32 {v(VX)}, {v(t+3)}, 4, {v(t)}",
      f"v_xor_b32 {v(t+3)}, 4, {v(t+3)}", f"v_lshl_add_u32 {v(VX+1)}, {v(t+3)}, 4, {v(t)}", f"v_add_u32 {v(VX+1)}, {8*1280-1024}, {v(VX+1)}")
    A(f"v_and_b32 {v(t+1)}, 15, v0", "s_lshl_b32 s31, s28, 4", f"v_add_u32 {v(t+4)}, s31, {v(t+2)}",
      f"v_lshlrev_b32 {v(t+3)}, 2, {v(t+2)}", f"v_xor_b32 {v(t+3)}, {v(t+3)}, {v(t+1)}", f"v_lshlrev_b32 {v(t+3)}, 4, {v(t+3)}", f"v_lshl_add_u32 {v(VW)}, {v(t+4)}, 13, {v(t+3)}")
    A("s_waitcnt lgkmcnt(0)")
    srd(A, 16, PX, 0, 2048 * 1280)
    A("s_lshl_b32 s31, s29, 8"); srd(A, 12, PWQ, "s31", 639 * 8192 + 256)
    stamp(A, "karg", stamps)
    def x_dma(kt):
        out = []
        for pr in range(4):
            out += [f"s_add_u32 m0, s75, {(XA, XB)[kt & 1] + 2048*pr}", f"s_mov_b32 s62, {kt*128 + 20480*pr}",
                    f"buffer_load_dwordx4 {v(VX)}, {SX}, s62 offen {XNT} lds", f"buffer_load_dwordx4 {v(VX+1)}, {SX}, s62 offen offset:1024 {XNT} lds"]
        return out
    def wq_dma(kt):
        out = [f"s_add_u32 m0, s33, {VBASE + wslot(kt)*16384}"]
        for i in range(4):
            out += [f"s_mov_b32 s32, {kt*524288 + i*31744}", f"buffer_load_dwordx4 {v(VW)}, {SW}, s32 offen offset:{1024*i} {NT} lds"]
        return out
    def event(e):
        if e == "": return []
        if e[0] == "w": return [(x, ("w", int(e[1]))) for x in wq_dma(int(e[1]))]
        if e[0] == "x": return [(x, ("x", int(e[1]))) for x in x_dma(int(e[1]))]
        if e == "L":
            return [(x, "lx") for x in ["s_lshl_b32 s31, s63, 8", "s_lshl_b32 s32, s29, 3", "s_add_u32 s31, s31, s32", f"v_add_u32 {v(ROW)}, s31, {v(ROW)}",
                    f"v_lshlrev_b32 {v(LWA)}, 3, {v(PP)}", f"v_mul_u32_u24 {v(LXA)}, 1280, {v(ROW)}", f"v_add_u32 {v(LXA)}, {v(LXA)}, {v(LWA)}"] +
                    [f"buffer_load_dwordx2 {v(LX+2*i,2)}, {v(LXA)}, {SX}, 0 offen offset:{256*i}" for i in range(5)]]
        if e == "C":
            return [(x, "code") for x in ["s_getpc_b64 s[72:73]", "CODE0:", "s_lshr_b32 s31, s2, 3", "s_and_b32 s31, s31, 7", "s_lshl_b32 s32, s28, 7", "s_add_u32 s31, s31, s32",
                    f"v_and_b32 {v(t+8)}, 15, v0", f"v_lshl_add_u32 {v(t+8)}, {v(t+8)}, 3, s31", f"v_lshlrev_b32 {v(t+8)}, 7, {v(t+8)}",
                    f"v_min_u32 {v(t+8)}, (CODE1 - CODE0), {v(t+8)}", f"v_mov_b32 {v(t+9)}, 0", f"v_lshl_add_u64 {v(t+8,2)}, {v(t+8,2)}, 0, s[72:73]",
                    f"global_load_dword {v(DUMMY)}, {v(t+8,2)}, off"]]
    for e in PRE:
        for x, tag in event(e): put(A, vm, [x], tag)
    g_, i_, c_, r_ = t + 2, t + 1, t + 5, t + 6
    A(f"v_and_b32 {v(c_)}, 3, v0", f"v_bfe_u32 {v(r_)}, v0, 2, 2")
    for k in range(4): A(f"s_add_u32 s31, s28, {k}", "s_and_b32 s31, s31, 3", f"s_lshl_b32 {s(76+k)}, s31, 2")
    A(f"v_lshl_add_u32 {v(t+8)}, {v(g_)}, 3, {v(r_)}", f"v_lshlrev_b32 {v(t+8)}, 8, {v(t+8)}", f"v_lshl_add_u32 {v(t+8)}, {v(c_)}, 4, {v(t+8)}",
      f"v_add_u32 {v(t+8)}, {VBASE}, {v(t+8)}", f"v_lshlrev_b32 {v(t+7)}, 2, {v(r_)}")
    for k in range(4): A(f"v_xor_b32 {v(t+3)}, {s(76+k)}, {v(t+7)}", f"v_lshl_add_u32 {v(RW+k)}, {v(t+3)}, 4, {v(t+8)}")
    A(f"v_lshrrev_b32 {v(t+3)}, 1, {v(i_)}", f"v_xor_b32 {v(t+3)}, {v(t+3)}, {v(g_)}", f"v_lshlrev_b32 {v(t+8)}, 7, {v(i_)}", f"v_add_u32 {v(t+8)}, s75, {v(t+8)}",
      f"v_lshl_add_u32 {v(t+8)}, {v(t+3)}, 4, {v(t+8)}", f"v_add_u32 {v(RX)}, {XA}, {v(t+8)}", f"v_add_u32 {v(RX+2)}, {XB}, {v(t+8)}",
      f"v_xor_b32 {v(RX+1)}, 64, {v(RX)}", f"v_xor_b32 {v(RX+3)}, 64, {v(RX+2)}")
    for i in range(4): A(f"v_mov_b32 {v(ONES+i)}, 0x3f803f80")
    A(f"v_mov_b32 {v(t+8)}, {FKEY}", f"v_mov_b32 {v(t+9)}, 0", f"ds_write_b32 {v(t+8)}, {v(t+9)}")
    srd(A, 68, PWR, 0, 1280); srd(A, 24, PWS, 0, WSLO); srd(A, 64, PDBG, 0, 256)
    A("s_mov_b32 s101, 0xffff0000", "s_mov_b32 s100, 0x3acccccd")
    stamp(A, "setup", stamps)
    for e in MID:
        for x, tag in event(e): put(A, vm, [x], tag)
    B = Asm()
    B("s_lshl_b32 s31, s29, 19"); srd(B, 4, PK, "s31", "0x90000"); srd(B, 8, PV, "s31", "0x90000")
    B("s_mov_b64 s[38:39], s[4:5]", "s_mov_b64 s[40:41], s[8:9]", "s_mov_b64 s[42:43], s[4:5]", "s_mov_b64 s[36:37], s[8:9]", "s_movk_i32 s48, 4096")
    sc1 = B.L
    B = Asm()
    B("s_lshl_b32 s31, s30, 10", "s_lshl_b32 s73, s29, 19", "s_add_u32 s31, s31, s73", f"s_add_u32 s31, s31, {OF_OFF}")
    srd(B, 20, PWS, "s31", 3 * 131072 + 4096)
    sc2 = B.L
    sc3 = ["s_lshr_b32 s31, s29, 3", "s_add_u32 s74, s30, s31", "s_lshl_b32 s74, s74, 7", "s_and_b32 s31, s29, 7", "s_lshl_b32 s31, s31, 2", "s_add_u32 s74, s74, s31",
           f"s_add_u32 s74, s74, {FLAG_OFF}"]
    sc4 = ["s_lshl_b32 s31, s2, 2", "s_add_u32 s31, s31, s28", "s_lshl_b32 s31, s31, 8", f"s_cmp_lt_u32 s31, {ZERO_SIZE}", f"s_mov_b32 s47, {WSLO}", f"s_cselect_b32 s47, {Y_OFF}, s47",
           "s_add_u32 s47, s47, s31"]
    B = Asm()
    B(f"v_lshlrev_b32 {v(L16)}, 4, v0", f"v_mov_b32 {v(VXO)}, 0", f"v_mov_b32 {v(KEYR)}, 0")
    B(f"v_lshl_or_b32 {v(t+3)}, s28, 2, {v(g_)}", f"v_xor_b32 {v(t+3)}, {v(t+3)}, {v(i_)}", f"v_lshlrev_b32 {v(t+3)}, 4, {v(t+3)}", f"v_lshl_add_u32 {v(VK)}, {v(t+4)}, 8, {v(t+3)}")
    B(f"v_lshl_or_b32 {v(t+3)}, s28, 2, {v(g_)}", f"v_and_b32 {v(t+3)}, 7, {v(t+3)}", f"v_lshlrev_b32 {v(t+3)}, 1, {v(t+3)}", f"v_xor_b32 {v(t+3)}, {v(t+3)}, {v(i_)}",
      f"v_lshlrev_b32 {v(t+3)}, 4, {v(t+3)}", f"v_lshl_add_u32 {v(VV)}, {v(t+4)}, 8, {v(t+3)}")
    B(f"v_lshlrev_b32 {v(t+4)}, 8, {v(c_)}", f"v_lshl_add_u32 {v(t+4)}, {v(r_)}, 12, {v(t+4)}")
    for k in range(4): B(f"v_or_b32 {v(t+3)}, {s(76+k)}, {v(g_)}", f"v_xor_b32 {v(t+3)}, {v(t+3)}, {v(i_)}", f"v_lshl_add_u32 {v(RK+k)}, {v(t+3)}, 4, {v(t+4)}")
    B(f"v_lshl_add_u32 {v(t+4)}, {v(g_)}, 4, {v(r_)}", f"v_lshlrev_b32 {v(t+4)}, 8, {v(t+4)}", f"v_lshl_add_u32 {v(t+4)}, {v(c_)}, 3, {v(t+4)}",
      f"v_add_u32 {v(t+4)}, {VBASE}, {v(t+4)}", f"v_and_b32 {v(t+7)}, 1, {v(g_)}", f"v_lshl_or_b32 {v(t+7)}, {v(t+7)}, 2, {v(r_)}")
    for k in range(8): B(f"v_xor_b32 {v(t+3)}, {k}, {v(t+7)}", f"v_lshl_add_u32 {v(RV+k)}, {v(t+3)}, 5, {v(t+4)}")
    rload = [f"buffer_load_dwordx2 {v(LW+2*i,2)}, {v(LWA)}, {ST}, 0 offen offset:{256*i}" for i in range(5)]
    rest = ln_rest()
    k = rest.index("s_mov_b64 exec, s[44:45]")
    rest[k:k+3] = [["s_mov_b32 exec_lo, 1", "s_mov_b32 exec_hi, 1", rest[k+1], "s_mov_b64 exec, -1", "s_waitcnt lgkmcnt(0)"]]
    l2 = [x for x in rest if isinstance(x, str) and x.startswith("buffer")]
    rest = [x for x in rest if x not in l2]
    k = rest.index(f"v_lshlrev_b32 {v(LS+6)}, 16, {v(LW)}")
    lnr = [(x, "l1") for x in ln_stats()] + [(x, "lw") for x in rload] + [(sc1, None), (sc3, None), (sc4, None)] + [(x, None) for x in B.L] + \
          [(x, "l2") for x in rest[:k]] + [("@lw", None)] + [(x, "l2") for x in rest[k:]] + [(sc2, None)] + \
          [(f"v_accvgpr_write_b32 {a(32 + i)}, 0", None) for i in range(96)]
    def w_read(G, sx, p):
        kt, T = divmod(G, 8)
        return f"ds_read_b64_tr_b16 {a(8*(G%4)+4*sx+2*p,2)}, {v(RW+T//2)} offset:{wslot(kt)*16384 + sx*8192 + p*1024 + 8*(T&1)}"
    def x_read(kt, q, sx): return f"ds_read_b128 {a(xb(kt,q,sx),4)}, {v(RX+2*(kt&1)+sx)} offset:{2048*q}"
    A(*vm.wait([("w", 0), ("x", 0)])); A("s_waitcnt lgkmcnt(0)", "s_barrier")
    stamp(A, "q0", stamps)
    for sx in range(2):
        for p in range(2): A(w_read(0, sx, p))
    for q in range(4):
        for sx in range(2): A(x_read(0, q, sx))
    for sx in range(2):
        for p in range(2): A(w_read(1, sx, p))
    A("s_waitcnt lgkmcnt(4)")
    state = [(I(w_read(1, sx, p)).w, -8) for sx in range(2) for p in range(2)]
    apoll = f"buffer_load_dword {v(t+12)}, {v(t+13)}, {SDB}, 0 offen sc1"
    for kt in range(10):
        st = Stream(); pos = {}
        for T in range(8):
            af = 8 * ((kt * 8 + T) % 4)
            for q in range(4):
                for sx in range(2):
                    c = 0 if (kt == 0 and sx == 0) else v(acc(q, T), 4)
                    pos[T, 2*q + sx] = st.add(f"{MF} {v(acc(q,T),4)}, {a(af+4*sx,4)}, {a(xb(kt,q,sx),4)}, {c}")
            if T < 2:
                for sx in range(2):
                    c = 0 if (kt == 0 and sx == 0) else v(CSA + 4*T, 4)
                    pos[T, 8 + sx] = st.add(f"{MF} {v(CSA+4*T,4)}, {a(af+4*sx,4)}, {v(ONES,4)}, {c}")
        last = len(st.mf) - 1
        for T in range(8):
            G = kt * 8 + T + 2
            if G < 80:
                for k in range(4): st.mem[pos[T, 2 * k if QS else 1 + k]].append(w_read(G, k >> 1, k & 1))
        def place(ops, slots, tag):
            seen = set()
            for (m0, so, x), g in zip(ops, slots):
                assert not {g - 1, g, g + 1} & set(st.tagq), (kt, g)
                st.sc[max(g - 1, 0)].append(m0)
                if so not in seen: st.sc[g - 2 if g >= 2 and g - 2 not in st.tagq and QR else g].append(so)
                elif g == 0: st.sc[g].append("s_nop 0")
                if QR: seen.add(so)
                st.mem[g].append(x); st.tagq.setdefault(g, []).append(tag)
        def x_ops(k):
            return [(f"s_add_u32 m0, s75, {(XA, XB)[k & 1] + 2048*(i >> 1)}", f"s_mov_b32 s62, {k*128 + 20480*(i >> 1)}",
                     f"buffer_load_dwordx4 {v(VX + (i & 1))}, {SX}, s62 offen offset:{1024*(i & 1)} {XNT} lds") for i in range(8)]
        def w_ops(k):
            return [(f"s_add_u32 m0, s33, {VBASE + wslot(k)*16384}", f"s_mov_b32 s32, {k*524288 + i*31744}",
                     f"buffer_load_dwordx4 {v(VW)}, {SW}, s32 offen offset:{1024*i} {NT} lds") for i in range(4)]
        def v_ops(j): return [(v_m0(j), f"s_mov_b32 s35, {16384*j}", v_dma(i)) for i in range(4)]
        def k_ops(j): return [(k_m0(j), f"s_mov_b32 s34, {16384*j}", k_dma(i)) for i in range(4)]
        m = kt + 1
        def ring(mm):
            return (w_ops(mm + 2), ("w", mm + 2)) if mm <= 7 else (v_ops(mm - 8), ("v", mm - 8))
        early = [3, 7, 15, 23, 27, 31, 35, 39]
        if kt == 0: place(w_ops(2), [11, 19, 43, 47], ("w", 2))
        elif kt < 9:
            ops, tag = ring(kt); place(ops[2:], [11, 19], tag)
        else:
            ops, tag = ring(kt); place(ops[2:], [3, 7], tag)
        if kt + 2 < 10:
            st.force[2] = regs_of(a(xb(kt, 0, 0), 32))
            place(x_ops(kt + 2), early, ("x", kt + 2))
        if kt == 6: place(k_ops(0), [42, 46, 65, 67], ("k", 0))
        if kt == 8: place(k_ops(1), [3, 15, 27, 39], ("k", 1))
        if kt == 0: st.pre[4].append(["lx"])
        if kt < 9:
            xs_ = [45, 49, 55, 57, 59, 63, 65, 67] if kt == 0 else [43, 45, 47, 49, 55, 57, 59, 63]
            st.pre[xs_[0]].append([("x", kt + 1)])
            for k in range(8): st.mem[xs_[k]].append(x_read(kt + 1, k >> 1, k & 1))
        need = ([("w", m)] if m < 10 else [("k", 0)]) + (["l1"] if m == ASIG else [])
        if m == 8: assert not any(tag == "l2" for x, tag in lnr)
        gb = pos[5, 7] if m < 10 else 9
        if m < 10:
            ops, tag = ring(m); place(ops[:2], [53, 61], tag)
        else:
            st.force[gb] = regs_of(a(xb(kt, 0, 0), 32))
            place(k_ops(2), [13, 18, 23, 28], ("k", 2)); place(v_ops(2), [33, 38, 43, 48], ("v", 2)); place(k_ops(3), [53, 58, 62, 66], ("k", 3))
            st.va[last] += ["s_mov_b32 s34, 0x10000", "s_mov_b32 s35, 0xc000"]
            for k, g in enumerate((11, 15, 19, 21, 25, 27, 31, 35, 39, 41, 45, 47, 51, 55, 57, 60)): st.mem[g].append(k_read(0, k >> 2, k & 3))
        for g in range(pos[0, 5] if kt == 0 else 0, last + 1):
            if any(x.startswith("buffer") for x in st.mem[g]): continue
            n = len(st.mem[g])
            while lnr and n < 2:
                x, tag = lnr[0]
                if isinstance(x, list):
                    lnr.pop(0); st.va[g] += x; break
                if x == "@lw":
                    lnr.pop(0); st.va[g].append(["lw"]); continue
                if QR and x.startswith("s_nop") and g < last:
                    lnr.pop(0); st.sc[g + 1].append("s_nop 0"); break
                if QR and (x.startswith("buffer") or x.startswith(TRANS)) and n: break
                lnr.pop(0); st.va[g].append(x); n += 0 if x.startswith("s_nop") else 1
                if x.startswith("buffer"): st.tag[x] = tag; break
                if x.startswith(TRANS): break
        if kt == 5: assert not any(x in B.L for x, tag in lnr if isinstance(x, str))
        if m == 8: st.va[gb] += w0_only("APOLLW", ["@poll"] + spin("APOLL", apoll, v(t+12), "32"))
        st.va[gb] += stampl(f"q{kt}b", stamps)
        if need: st.va[gb].append(need)
        st.va[gb] += stampl(f"q{kt}c", stamps)
        st.va[gb].append("s_barrier")
        if m == ASIG:
            assert not any(tag == "l1" for x, tag in lnr)
            st.va[gb] += ["s_lshr_b32 s72, s63, 2", "s_mul_i32 s72, s72, 112", "s_lshl_b32 s73, s63, 2", "s_add_u32 s72, s72, s73", f"v_mov_b32 {v(t+13)}, s72"] + \
                         w0_only("ASIGW", ["s_mov_b32 s73, 1", f"s_atomic_add s73, {s(PDBG,2)}, s72"])
        if m == 7: st.va[gb] += w0_only("APOL0W", [apoll, "@mark"])
        if m == 8:
            st.va[gb] += w0_only("KEYW", [f"v_mov_b32 {v(KEYR)}, {FKEY}", f"ds_read_b32 {v(KEYR+1)}, {v(KEYR)}", "s_lshr_b32 s72, s2, 3", "s_lshl_b32 s72, s72, 5", "s_and_b32 s73, s2, 7",
                                          "s_add_u32 s72, s72, s73", "s_lshl_b32 s72, s72, 2", f"s_add_u32 s72, s72, {KEY_OFF}", f"v_mov_b32 {v(KEYR)}, s72", "s_waitcnt lgkmcnt(0)"])
        if m == 9:
            st.va[gb] += w0_only("KEYS", [f"buffer_store_dword {v(KEYR+1)}, {v(KEYR)}, {SWS}, 0 offen sc1"])
            for x, g in zip(l2, (56, 58, 60, 64, 66, 67)): st.mem[g].append(x); st.tag[x] = "l2"
        if m == 10:
            assert not lnr and not any(x in st.tag for g in range(gb, last + 1) for x in st.va[g] if isinstance(x, str))
        if m == 8:
            st.va[54] += [f"v_and_b32 {v(t+12)}, 15, v0", f"v_lshlrev_b32 {v(t+12)}, 4, {v(t+12)}"]
            st.sc[55] += ["s_lshl_b32 s72, s30, 8", f"s_add_u32 s72, s72, {STAT_OFF}"]
            for q, g in enumerate((56, 58, 65, 67)):
                x = f"buffer_load_dwordx2 {v(STT+2*q,2)}, {v(t+12)}, {SWS}, s72 offen offset:{256*q} sc1"
                st.mem[g].append(x); st.tag[x] = "st"
        st.resolve(vm)
        if kt: stamp(A, f"q{kt}", stamps)
        state = st.emit(A, state, nxt0=regs_of(a(0, 4)) | regs_of(a(xb(kt + 1, 0, 0), 4)))
    stamp(A, "q10", stamps)
    A(f"v_lshrrev_b32 {v(t+12)}, 4, v0", f"v_lshlrev_b32 {v(t+12)}, 4, {v(t+12)}", "s_lshl_b32 s72, s28, 7", f"s_add_u32 s72, s72, {FCS}",
      f"v_add_u32 {v(t+13)}, s72, {v(t+12)}", f"v_mov_b32 {v(t+14)}, {FVOTE}", f"v_mov_b32 {v(t+15)}, 0",
      f"ds_write_b128 {v(t+13)}, {v(CSA,4)}", f"ds_write_b128 {v(t+13)}, {v(CSA+4,4)} offset:64", f"ds_write_b32 {v(t+14)}, {v(t+15)}")
    for k in range(4): A(f"s_lshl_b32 s72, {s(76+k)}, 5", f"s_add_u32 s72, s72, {FCS}", f"v_add_u32 {v(ONES+k)}, s72, {v(t+12)}")
    A(*vm.wait(["st"])); A("s_waitcnt lgkmcnt(0)", "s_barrier")
    def cs_read(T): return f"ds_read_b128 {v(CSR+4*(T%3),4)}, {v(ONES+T//2)} offset:{64*(T&1)}"
    stamp(A, "cs", stamps)
    A(cs_read(0), cs_read(1))
    for T in range(8):
        if T + 2 < 8: A(cs_read(T + 2))
        A(f"s_waitcnt lgkmcnt({min(2, 7-T)})")
        c = CSR + 4 * (T % 3)
        for q in range(4):
            for h in range(2): A(f"v_pk_mul_f32 {v(t+12+2*h,2)}, {v(c+2*h,2)}, {v(STT+2*q,2)} op_sel:[0,1] op_sel_hi:[1,1]")
            for h in range(2): A(f"v_pk_fma_f32 {v(acc(q,T)+2*h,2)}, {v(acc(q,T)+2*h,2)}, {v(STT+2*q,2)}, {v(t+12+2*h,2)} op_sel_hi:[1,0,1]")
        for q in range(4):
            for h in range(2): A(f"v_cvt_pk_bf16_f32 {v(Q+16*q+2*T+h)}, {v(acc(q,T)+2*h)}, {v(acc(q,T)+2*h+1)}")
    TMP = J
    stamp(A, "cv", stamps)
    for q in range(4):
        for tt in range(4):
            A(f"{MF} {v(TMP+4*q,4)}, {a(kf(0,tt),4)}, {v(qf(q,tt),4)}, {v(TMP+4*q,4) if tt else 0}")
            for i in range(2): A(f"v_accvgpr_write_b32 {a(8*q + 2*tt + i)}, 0")
    clear_sums(A)
    for q in range(4):
        A(f"v_max3_f32 {v(TMP+4*q)}, {v(TMP+4*q)}, {v(TMP+4*q+1)}, {v(TMP+4*q+2)}", f"v_max_f32 {v(TMP+4*q)}, {v(TMP+4*q)}, {v(TMP+4*q+3)}")
    negm_from_max(A, [TMP + 4*q for q in range(4)])
    A(*vm.wait(["l2"])); A("s_barrier")
    A(*w0_only("BSIGW", ["s_and_b32 s72, s2, 1", "s_lshl_b32 s72, s72, 7", f"s_add_u32 s72, s72, {DBG_B}"] + signal("s72", CSA)))
    A("s_movk_i32 s49, 0xfe", "s_mov_b32 s63, 0")
    A("ATT:", "s_nop 1")
    for kt in range(4):
        for tt in range(4):
            A(f"{MF} {v(S+4*kt,4)}, {a(kf(kt,tt),4)}, {v(qf(0,tt),4)}, {v(S+4*kt,4) if tt else v(NM,4)}")
    A("s_mov_b32 s62, 8")
    stamp(A, "att", stamps)
    if stamps: A("s_memtime s[96:97]")
    st = main_loop()
    state = st.emit(None, [])
    A(".p2align 5", "LOOPW:", "s_waitcnt vmcnt(16)", "LOOP:")
    b0 = len(A.L)
    assert state == st.emit(A, state)
    A("s_sub_u32 s62, s62, 1", "s_cmp_eq_u32 s62, 0", "s_cbranch_scc1 LOOPX", "s_bitcmp1_b32 s49, s62", "s_cbranch_scc0 LOOPW", "s_branch SIDE", "LOOPX:")
    body = A.L[b0:]
    stamp(A, "loopx", stamps)
    if stamps: A("s_memtime s[98:99]")
    vm = VM(24)
    tail = []
    for dt in range(8):
        for h in range(2): tail.append(f"{MF} {a(of(dt,3),4)}, {a(vf(h,dt),4)}, {v(P+8+4*h,4)}, {a(of(dt,3),4)}")
    ls = [L + 2*q for q in range(4)]
    B = Asm()
    if 3 in CONV:
        tail = [f"{MF} {v(la(3),4)}, {v(LONE,4)}, {v(P+8+4*h,4)}, {v(la(3),4)}" for h in range(2)] + tail
        B("s_nop 0", "s_nop 0", "s_nop 0", "s_nop 0", "s_nop 0", "s_nop 0", "s_nop 0", "s_nop 0", "s_nop 0")
    for q in range(4): B(f"v_mov_b32 {v(ls[q])}, {v(la(q))}" if q in CONV else f"v_add_f32 {v(ls[q])}, {v(ls[q])}, {v(ls[q]+1)}")
    xgroup_multi(B, [ls[q] for q in range(4) if q not in CONV], [t + i for i in range(4)], "v_add_f32")
    B(f"v_add_f32 {v(t+1)}, {v(ls[0])}, {v(ls[1])}", f"v_add_f32 {v(t+2)}, {v(ls[2])}, {v(ls[3])}", f"v_add_f32 {v(t+1)}, {v(t+1)}, {v(t+2)}",
      f"s_mov_b32 s72, {LMAX}", f"v_cmp_nge_f32 vcc, s72, {v(t+1)}", f"v_mov_b32 {v(t+2)}, {FVOTE}", f"v_mov_b32 {v(t+3)}, 1")
    for q in range(4): B(f"v_rcp_f32 {v(ls[q])}, {v(ls[q])}")
    first = [(x, ("a", k)) for k in range(6, 6 + TAILK) for x in a_loads(k, k)]
    for i, m in enumerate(tail):
        A(m)
        while first:
            x, tag = first.pop(0); put(A, vm, [x], tag)
            if x.startswith("buffer"): break
        A(*B.L[3*i:3*i+3])
    assert not first
    assert len(B.L) <= 3 * len(tail)
    A("s_and_saveexec_b64 s[72:73], vcc", f"ds_write_b32 {v(t+2)}, {v(t+3)}", "s_mov_b64 exec, s[72:73]")
    early = [(x, ("a", k)) for k in range(6 + TAILK, 6 + TAILK + EARLY) for x in a_loads(k, k)]
    for e in range(4):
        A(f"s_mov_b32 s72, {e*131072}")
        for q in range(4):
            w = S + 12 * (q & 1)
            for b in range(2):
                for r in range(4): A(f"v_accvgpr_read_b32 {v(w+4*b+r)}, {a(of(2*e+b,q)+r)}")
            for i in range(4): A(f"v_pk_mul_f32 {v(w+2*i,2)}, {v(w+2*i,2)}, {v(ls[q],2)} op_sel_hi:[1,0]")
            for i in range(4): A(f"v_cvt_pk_bf16_f32 {v(w+8+i)}, {v(w+2*i)}, {v(w+2*i+1)}")
            put(A, vm, [f"buffer_store_dwordx4 {v(w+8,4)}, {v(L16)}, {SO}, s72 offen offset:{1024*q} sc1"], "o")
            while early:
                x, tag = early.pop(0); put(A, vm, [x], tag)
                if x.startswith("buffer"): break
        if e == 0: A("s_waitcnt lgkmcnt(0)", "s_barrier", f"ds_read_b32 {v(t+3)}, {v(t+2)}")
    stamp(A, "ost", stamps)
    A("s_waitcnt lgkmcnt(0)", f"v_readfirstlane_b32 s72, {v(t+3)}", f"v_mov_b32 {v(t+8)}, 1", f"v_mov_b32 {v(t+9)}, s74",
      "s_andn2_b32 s72, s72, s63", "s_cmp_lg_u32 s72, 0", "s_cbranch_scc1 REDO")
    stamp(A, "vote", stamps)
    assert not early
    weave(A, vm, [(a_loads(k, k), ("a", k)) for k in range(6)], ffn_part1(), 2)
    A("s_barrier")
    A(*vm.wait(["o"]))
    stamp(A, "drain", stamps)
    A("s_mov_b64 exec, 1"); put(A, vm, [f"buffer_store_dword {v(t+8)}, {v(t+9)}, {SWS}, 0 offen sc1"], "f"); A("s_mov_b64 exec, -1")
    oproj(A, vm, stamps)
    if stamps:
        A("s_memrealtime s[62:63]", "s_waitcnt lgkmcnt(0)", "s_sub_u32 s96, s98, s96")
        srd(A, 68, PWS, STAMP_OFF, 0x10000)
        A("s_lshl_b32 s72, s2, 2", "s_add_u32 s72, s72, s28", "s_lshl_b32 s72, s72, 6", f"v_mov_b32 {v(t)}, s72", "s_mov_b64 exec, 1")
        for i, r in enumerate([80 + 2*k for k in range(8)] + [62, 96]):
            A(f"v_mov_b32 {v(t+1)}, {s(r)}", f"buffer_store_dword {v(t+1)}, {v(t)}, {ST}, 0 offen offset:{4*i}", "s_nop 1")
    if stamps and os.environ.get("DBGOUT"):
        A("s_not_b32 s72, s80", "s_sub_u32 s73, s88, s86", "s_sub_u32 s31, s84, s80", "s_sub_u32 s32, s62, s88")
        for i, r in enumerate((72, 62, 73, 96, 31, 32)):
            A(f"v_mov_b32 {v(t+1)}, {s(r)}", f"v_mov_b32 {v(t)}, {44 + 4*i if i < 5 else 16}", f"buffer_atomic_umax {v(t+1)}, {v(t)}, {SDB}, 0 offen sc1", "s_nop 1")
    A("END:", "s_endpgm")
    B = Asm(); side_jobs(B)
    cur = None
    for x in B.L:
        if x in ("s_branch LOOP", "s_branch CHK") and cur: stamp(A, cur + "x", stamps)
        A(x)
        if x.endswith(":") and x[:-1] in [f"JOB{i}" for i in range(7)]:
            cur = x[:-1]; stamp(A, cur, stamps)
    A("REDO:", "s_mov_b32 s63, 1", "s_mov_b32 s49, 0", "s_mov_b32 s34, 0", "s_mov_b64 s[4:5], s[38:39]", "s_mov_b64 s[8:9], s[40:41]", "s_waitcnt vmcnt(0)")
    TMP = J + 20
    M = TMP + 16
    for q in range(4): A(f"v_mov_b32 {v(M+q)}, 0xff800000")
    A("MAXL:", "s_barrier", k_m0(0), "s_nop 0")
    for i in range(4): A(k_dma(i))
    A("s_add_u32 s34, s34, 16384", "s_waitcnt vmcnt(0)", "s_barrier")
    for kt in range(4):
        for tt in range(4): A(k_read(0, kt, tt))
        if kt == 1: A("s_waitcnt lgkmcnt(0)")
    A("s_waitcnt lgkmcnt(0)")
    for q in range(4):
        for kt in range(4):
            for tt in range(4): A(f"{MF} {v(TMP+4*kt,4)}, {a(kf(kt,tt),4)}, {v(qf(q,tt),4)}, {v(TMP+4*kt,4) if tt else 0}")
        A("s_nop 7")
        for i in range(8): A(f"v_max3_f32 {v(M+q)}, {v(M+q)}, {v(TMP+2*i)}, {v(TMP+2*i+1)}")
    A("s_cmp_lt_u32 s34, 0x80000", "s_cbranch_scc1 MAXL")
    negm_from_max(A, [M + q for q in range(4)])
    for i in range(128): A(f"v_accvgpr_write_b32 {a(i)}, 0")
    clear_sums(A)
    A("s_mov_b32 s34, 0", "s_mov_b32 s35, 0", "s_barrier")
    for j in range(4):
        if j > 0:
            A(v_m0(j - 1), "s_nop 0")
            for i in range(4): A(v_dma(i))
            A("s_add_u32 s35, s35, 16384")
        A(k_m0(j), "s_nop 0")
        for i in range(4): A(k_dma(i))
        A("s_add_u32 s34, s34, 16384")
    A("s_waitcnt vmcnt(24)", "s_barrier")
    for kt in range(4):
        for tt in range(4): A(k_read(0, kt, tt))
        if kt == 1: A("s_waitcnt lgkmcnt(0)")
    A("s_waitcnt lgkmcnt(0)", "CODE1:", "s_branch ATT")
    return A, body
```

```python
import re

def rng(p, a, n=1):
    return f"{p}{a}" if n == 1 else f"{p}[{a}:{a+n-1}]"
def v(a, n=1): return rng("v", a, n)
def a(x, n=1): return rng("a", x, n)
def s(x, n=1): return rng("s", x, n)

class Asm:
    def __init__(self):
        self.L = []
    def __call__(self, *lines):
        for t in lines:
            for x in t.split("\n"):
                x = x.strip()
                if x: self.L.append(x)
    def text(self):
        return "\n".join(self.L)

REG = re.compile(r"\b([vas])(\d+)\b|\b([vas])\[(\d+):(\d+)\]")
def regs_of(op):
    out = set()
    for m in REG.finditer(op):
        if m.group(1): out.add((m.group(1), int(m.group(2))))
        else:
            for i in range(int(m.group(4)), int(m.group(5)) + 1): out.add((m.group(3), i))
    if re.search(r"\bvcc\b", op): out.add(("s", "vcc"))
    if re.search(r"\bm0\b", op): out.add(("s", "m0"))
    if re.search(r"\bexec\b", op): out.add(("s", "exec"))
    return out

TRANS = ("v_exp_f32", "v_log_f32", "v_rcp_f32", "v_rsq_f32", "v_sqrt_f32", "v_sin_f32", "v_cos_f32")

class I:
    def __init__(self, line):
        self.line = line
        body = line.split(";")[0].strip()
        p = body.split(None, 1)
        self.op = p[0]
        rest = p[1] if len(p) > 1 else ""
        ops = [x.strip() for x in re.split(r",(?![^\[]*\])", rest)] if rest else []
        self.ops = ops
        op = self.op
        self.mfma = op.startswith("v_mfma")
        self.valu = op.startswith("v_") and not self.mfma
        self.ds = op.startswith("ds_")
        self.vmem = op.startswith(("buffer_", "global_"))
        self.salu = op.startswith("s_")
        self.trans = op.startswith(TRANS)
        self.dpp = "_dpp" in op or "row_" in body or "quad_perm" in body
        self.w = set(); self.r = set(); self.c = set(); self.ab = set(); self.sdata = set()
        self.ws = 1
        if op == "s_nop": self.ws = int(ops[0]) + 1
        if self.mfma:
            self.w = regs_of(ops[0]); self.ab = regs_of(ops[1]) | regs_of(ops[2]); self.c = regs_of(ops[3])
            self.r = self.ab | self.c
            self.passes = 8 if "32x32" in op else 4
        elif self.valu:
            if op.startswith("v_cmp"):
                self.w = regs_of(ops[0]); self.r = set().union(*[regs_of(x) for x in ops[1:]])
            elif op.startswith("v_permlane"):
                self.w = regs_of(ops[0]) | regs_of(ops[1]); self.r = set(self.w)
            else:
                self.w = regs_of(ops[0]); self.r = set().union(set(), *[regs_of(x) for x in ops[1:]])
                if op.startswith(("v_fmac", "v_dot2c", "v_writelane")) or self.dpp: self.r |= self.w
                if op.startswith(("v_add_co", "v_addc_co", "v_sub_co")): self.w |= regs_of(ops[1])
        elif self.ds:
            if op.startswith(("ds_read", "ds_bpermute", "ds_swizzle")):
                self.w = regs_of(ops[0]); self.r = set().union(set(), *[regs_of(x) for x in ops[1:]])
            else:
                self.r = set().union(set(), *[regs_of(x) for x in ops])
        elif self.vmem:
            lds = body.endswith(" lds") or " lds " in body or "_lds_" in op
            self.lds = lds
            if "load" in op and not lds:
                self.w = regs_of(ops[0]); self.r = set().union(set(), *[regs_of(x) for x in ops[1:]])
            else:
                self.r = set().union(set(), *[regs_of(x) for x in ops])
                if lds: self.r.add(("s", "m0"))
                if "store" in op and ("x4" in op or "x3" in op):
                    self.sdata = regs_of(ops[0]) if op.startswith("buffer") else regs_of(ops[1])
        elif self.salu:
            if ops and not op.startswith(("s_cmp", "s_waitcnt", "s_nop", "s_branch", "s_cbranch", "s_barrier", "s_endpgm", "s_setprio", "s_sleep")):
                self.w = regs_of(ops[0]); self.r = set().union(set(), *[regs_of(x) for x in ops[1:]])
                if "saveexec" in op: self.w.add(("s", "exec"))
            else:
                self.r = set().union(set(), *[regs_of(x) for x in ops])

def isv(x): return x[0] in "va"

def need(p, c):
    n = 0
    pw_v = {x for x in p.w if isv(x)}
    pw_s = {x for x in p.w if x[0] == "s"}
    if p.valu:
        if c.mfma and pw_v & c.r: n = max(n, 2)
        if c.valu and c.dpp and pw_v & c.r: n = max(n, 2)
        if c.op.startswith("v_permlane") and pw_v & c.r: n = max(n, 2)
        if c.op.startswith(("v_readlane", "v_readfirstlane")) and pw_v & c.r: n = max(n, 1)
        if p.trans and c.valu and pw_v & c.r: n = max(n, 1)
        if p.trans and (c.ds or c.vmem) and pw_v & c.r: n = max(n, 1)
        if c.vmem and pw_s & c.r: n = max(n, 5)
        if c.valu and pw_s & c.r: n = max(n, 4 if c.op.startswith(("v_readlane", "v_writelane")) else 2)
        if c.salu and pw_s & c.r: n = max(n, 1)
    if p.mfma:
        lat = 8 if p.passes == 4 else 12
        if c.mfma:
            if p.w & c.ab: n = max(n, lat)
            if p.w & c.c and not (p.w == c.c and p.passes == c.passes and p.op == c.op): n = max(n, lat - 2)
            if p.w & c.w and not (p.w & c.c): n = max(n, lat - 2)
        elif (c.valu or c.ds or c.vmem) and p.w & (c.r | c.w): n = max(n, lat)
        if c.valu and p.c & c.w: n = max(n, 3 if p.passes == 4 else 7)
    if p.salu and ("s", "m0") in p.w and c.vmem and getattr(c, "lds", False): n = max(n, 1)
    if p.salu and ("s", "exec") in p.w and c.valu and c.dpp: n = max(n, 0)
    if p.sdata and (c.valu or c.mfma) and p.sdata & c.w: n = max(n, 2)
    if p.sdata and (c.ds or c.vmem) and p.sdata & c.w: n = max(n, 1)
    return n

def check_hazards(lines, tag=""):
    ins = [I(x) for x in lines if not (x.endswith(":") or x.startswith((".", ";")))]
    bad = 0
    for j, c in enumerate(ins):
        d = 0
        for i in range(j - 1, max(-1, j - 14), -1):
            p = ins[i]
            n = need(p, c)
            if n > d:
                bad += 1
                print(f"HAZARD {tag}: need {n} have {d}: [{p.line}] -> [{c.line}]")
            d += p.ws
            if d >= 12: break
    return bad

def kernel_text(name, body, vgpr, accum, sgpr=102):
    return f""".text
.globl {name}
.p2align 8
.type {name},@function
{name}:
{body}
.section .rodata,"a"
.p2align 6
.amdhsa_kernel {name}
  .amdhsa_next_free_vgpr {vgpr}
  .amdhsa_next_free_sgpr {sgpr}
  .amdhsa_accum_offset {accum}
  .amdhsa_group_segment_fixed_size 0
  .amdhsa_kernarg_size 104
  .amdhsa_user_sgpr_count 2
  .amdhsa_user_sgpr_kernarg_segment_ptr 1
  .amdhsa_system_sgpr_workgroup_id_x 1
.end_amdhsa_kernel
"""

def srd(A, d, base, off_lo, size):
    A(f"s_add_u32 {s(d)}, {s(base)}, {off_lo}", f"s_addc_u32 {s(d+1)}, {s(base+1)}, 0",
      f"s_mov_b32 {s(d+2)}, {size}", f"s_mov_b32 {s(d+3)}, 0x20000")

def lsched(lines):
    groups = [x if isinstance(x, list) else [x] for x in lines]
    ins = [[I(y) for y in g] for g in groups]
    n = len(groups)
    W = [set().union(*[i.w for i in g]) for g in ins]; R = [set().union(*[i.r for i in g]) for g in ins]
    ordered = [any(i.vmem or i.ds or i.salu for i in g) for g in ins]
    pred = [[] for _ in range(n)]
    last_ord = None
    for j in range(n):
        for i in range(j):
            if W[i] & (R[j] | W[j]) or R[i] & W[j]: pred[j].append(i)
        if ordered[j]:
            if last_ord is not None: pred[j].append(last_ord)
            last_ord = j
    out = []; hist = []; done = {}; time = 0; pipe = 0; left = list(range(n))
    def ready(j):
        if any(p not in done for p in pred[j]): return False
        for p in pred[j]:
            if ins[p][-1].mfma and not ins[j][0].mfma and time < done[p] + 44: return False
        d = 0
        for p in reversed(hist[-14:]):
            if any(need(p, c) > d + k for k, c in enumerate(ins[j])): return False
            d += p.ws
        return True
    while left:
        rd = [j for j in left if ready(j)]
        mf = [j for j in rd if ins[j][0].mfma]
        ot = [j for j in rd if not ins[j][0].mfma]
        after_mf = bool(hist) and hist[-1].mfma
        if mf and (time >= pipe or not ot): j = mf[0]
        elif ot:
            mem = [j for j in ot if ins[j][-1].vmem]
            rest = [j for j in ot if not ins[j][-1].vmem]
            j = mem[0] if mem and (after_mf or not rest or not any(ins[k][0].mfma for k in left)) and (not rest or mem[0] < rest[0] + 24) else (rest or mem)[0]
        else:
            out.append("s_nop 0"); hist.append(I("s_nop 0")); time += 4; continue
        for y, i in zip(groups[j], ins[j]):
            if i.mfma:
                time = max(time, pipe); pipe = time + 16; time += 8
            else: time += 16 if i.vmem else 8 if i.trans else 4
            out.append(y); hist.append(i)
        done[j] = time; left.remove(j)
    return out, time
```

```python
import os
from core import *
from layout import *
from common import argmax_keys, xgroup_multi
import sched

MF = "v_mfma_f32_16x16x32_bf16"
NAME = "recurrent_scan__mha_block_cached__moe_arch_mod__prompt_kernel"
PX, PK, PV, PWQ, PWO, PWR, PG, PU, PD, POUT, PDBG, PWS = 36, 38, 40, 42, 44, 48, 50, 52, 54, 56, 58, 60
SK, SV, SW, SX, SO, SWS, SDB, ST = "s[4:7]", "s[8:11]", "s[12:15]", "s[16:19]", "s[20:23]", "s[24:27]", "s[64:67]", "s[68:71]"
VK, VV, VW = 1, 2, 3
RK, RV, RW = 4, 8, 16
VX, RX = 20, 22
ONES = 26
L16 = 30
Q, ACC = 32, 96
S, P, NM, L = 96, 128, 144, 160
J = 168
T0 = 240
CSA, CSR, STT = 224, 232, 244
KF, VF = 128, 192
VBASE, SPARE = 65536, 131072
XA, XB = SPARE, 32768
FEX, FH, FVOTE, FCS = SPARE + 7680, SPARE + 8192 + 7680, SPARE + 16384 + 7680, SPARE + 24576 + 7680
FKEY = 16384
LDS = 163840
NFFN, NPACK = 216, 256
SEL, RBITS = 46, 47
QR = int(os.environ.get('QR', 1))
ASIG = int(os.environ.get('ASIG', 4))
QS = int(os.environ.get('QS', 1))
QSCALE = 0x3e0293ee
LMAX = 0x5d800000
NLOG2E = 0xbfb8aa3b
DBG_F, DBG_C, DBG_B = 32, 36, 40
LR = int(os.environ.get("MAPLR", 3))
DUMMY = 239
VT = 31
STO = "s[36:39]"
TOUCH = os.environ.get("TOUCH", "a")
PRE = os.environ.get("PRE", "x0,w0,x1,L,C").split(",")
MID = os.environ.get("MID", "w1").split(",")
TPOL = os.environ.get("TPOL", "")

def qf(q, t): return Q + 16 * q + 4 * t
def acc(q, T): return ACC + 32 * q + 4 * T
def kf(kt, t): return KF + 16 * kt + 4 * t
def vf(h, dt): return VF + 32 * h + 4 * dt
def of(dt, q): return 16 * dt + 4 * q
def xb(kt, q, sx): return 192 + 32 * (kt & 1) + 8 * q + 4 * sx
def wslot(kt): return (kt + 2) % 4
KVPOL = os.environ.get("KVPOL", "sc1")
EXP = os.environ.get("EXP", "")
NT = os.environ.get("NT", "")
XNT = os.environ.get("XNT", "")
WSC = os.environ.get("WSC", "sc1")
OSC = os.environ.get("OSC", "sc1")
def k_read(slot, kt, t): return f"ds_read_b128 {a(kf(kt,t),4)}, {v(RK+t)} offset:{slot*16384 + kt*1024}"
def v_read(slot, h, dt, p): return f"ds_read_b64_tr_b16 {a(vf(h,dt)+2*p,2)}, {v(RV+dt)} offset:{slot*16384 + (2*h+p)*1024}"
def k_dma(i): return f"buffer_load_dwordx4 {v(VK)}, {SK}, s34 offen offset:{1024*i} {KVPOL} lds"
def v_dma(i): return f"buffer_load_dwordx4 {v(VV)}, {SV}, s35 offen offset:{1024*i} {KVPOL} lds"
def kv_touch(): return f"buffer_load_dword {v(DUMMY)}, {v(VT)}, {STO}, 0 offen {TPOL}"
def k_m0(slot): return f"s_add_u32 m0, s33, {slot*16384}"
def v_m0(slot): return f"s_add_u32 m0, s33, {VBASE + slot*16384}"

class VM:
    def __init__(self, older=0):
        self.q = [None] * older; self.done = 0
    def issue(self, tag): self.q.append(tag)
    def n_after(self, tags):
        return len(self.q) - 1 - max(i for i, t in enumerate(self.q) if t in tags)
    def wait(self, tags):
        n = self.n_after(tags)
        if len(self.q) - self.done <= n: return []
        self.done = len(self.q) - n
        return [f"s_waitcnt vmcnt({n})"]
    def room(self):
        if len(self.q) - self.done < 62: return []
        self.done = len(self.q) - 56
        return ["s_waitcnt vmcnt(56)"]

class Stream:
    def __init__(self):
        self.mf = []; self.sc = []; self.mem = []; self.va = []; self.force = {}
        self.pre = []; self.tag = {}; self.tagq = {}
    def add(self, m):
        self.mf.append(m); self.sc.append([]); self.mem.append([]); self.va.append([]); self.pre.append([])
        return len(self.mf) - 1
    def resolve(self, vm):
        for g in range(len(self.mf)):
            for need in self.pre[g]: self.sc[g] = vm.wait(need) + self.sc[g]
            tq = list(self.tagq.get(g, []))
            for x in self.mem[g]:
                if x.startswith("buffer"): vm.issue(self.tag[x] if x in self.tag else tq.pop(0))
            out = []
            for x in self.va[g]:
                if isinstance(x, list): out += vm.wait(x)
                elif x == "@mark": vm.mark = len(vm.q)
                elif x == "@poll": out.append(f"s_waitcnt vmcnt({len(vm.q) - vm.mark})")
                else:
                    out.append(x)
                    if x in self.tag: vm.issue(self.tag[x])
            self.va[g] = out
    def emit(self, A, state=None, lag=6, nxt0=None):
        pend = list(state) if state else []
        n = len(self.mf); out = []
        for i in range(n):
            if i == getattr(self, "entry", None): out.append("LOOPM:")
            out.append(self.mf[i])
            pre = list(self.sc[i])
            nxt = I(self.mf[i + 1]).ab if i + 1 < n else (I(self.mf[0]).ab if nxt0 is None else nxt0)
            nxt = nxt | self.force.get(i, set())
            hit = [k for k, (rg, t) in enumerate(pend) if rg & nxt]
            if hit:
                k = max(hit)
                while k + 1 < len(pend) and i - pend[k + 1][1] >= lag: k += 1
                left = len(pend) - 1 - k
                assert left <= 15
                pre.insert(0, f"s_waitcnt lgkmcnt({left})")
                pend = pend[k + 1:]
            out += pre
            for m in self.mem[i]:
                out.append(m)
                if m.startswith("ds_read"): pend.append((I(m).w, i))
            out += self.va[i]
            if i == getattr(self, "exit", None): self.exit_pend = list(pend)
        if A is not None: A(*out)
        return [(rg, t - n) for rg, t in pend]

def stamp(A, k, on):
    A(*stampl(k, on))

def stampl(k, on):
    return [f"{'s_memtime' if os.environ.get('CYC') else 's_memrealtime'} {s(80+2*on.index(k),2)}"] if on and k in on else []

def allred32(A, x, t, op):
    for r in (8, 4, 2, 1):
        A("s_nop 1", f"{op}_dpp {v(x)}, {v(x)}, {v(x)} row_ror:{r} row_mask:0xf bank_mask:0xf")
    A(f"v_mov_b32 {v(t)}, {v(x)}", "s_nop 1", f"v_permlane16_swap_b32 {v(x)}, {v(t)}", "s_nop 1", f"{op} {v(x)}, {v(x)}, {v(t)}")

def rbf(A, x):
    A(f"v_cvt_pk_bf16_f32 {v(x)}, {v(x)}, {v(x)}", f"v_lshlrev_b32 {v(x)}, 16, {v(x)}")

def w0_only(label, lines):
    return ["s_cmp_lg_u32 s28, 0", f"s_cbranch_scc1 {label}"] + lines + [f"{label}:"]

def signal(off, r=T0 + 14):
    return ["s_mov_b64 exec, 1", f"v_mov_b32 {v(r)}, 1", f"v_mov_b32 {v(r+1)}, {off}",
            f"buffer_atomic_add {v(r)}, {v(r+1)}, {SDB}, 0 offen sc1", "s_mov_b64 exec, -1"]

def spin(label, reload_, val, expect, mask=None, pre=()):
    m = [f"s_and_b64 vcc, vcc, {mask}"] if mask else []
    return [f"s_mov_b32 s32, {os.environ.get('SPINCAP', '0x100000')}", f"{label}:", *pre, f"v_cmp_gt_u32 vcc, {expect}, {val}", "s_sub_u32 s32, s32, 1", f"s_cbranch_scc1 {label}_OK"] + m + \
           [f"s_cbranch_vccz {label}_OK", "s_sleep 1", reload_, "s_waitcnt vmcnt(0)", f"s_branch {label}", f"{label}_OK:"]

ROW, PP, LXA, LWA, LSA = 32, 33, 34, 35, 36
LX, LW, LF, LS, LD, KEYR = 40, 50, 60, 80, 90, 94

def ln_unpack(d, x):
    o = []
    for i in range(10): o += [f"v_lshlrev_b32 {v(d+2*i)}, 16, {v(x+i)}", f"v_and_b32 {v(d+2*i+1)}, s101, {v(x+i)}"]
    return o

def ln_stats():
    t = 37
    B = Asm()
    B(*ln_unpack(LF, LX))
    for i in range(10): B(f"v_add_f32 {v(LS+i)}, {v(LF+2*i)}, {v(LF+2*i+1)}")
    for i in range(5): B(f"v_add_f32 {v(LS+i)}, {v(LS+i)}, {v(LS+5+i)}")
    B(f"v_add_f32 {v(LS)}, {v(LS)}, {v(LS+1)}", f"v_add_f32 {v(LS+2)}, {v(LS+2)}, {v(LS+3)}", f"v_add_f32 {v(LS)}, {v(LS)}, {v(LS+4)}", f"v_add_f32 {v(LS)}, {v(LS)}, {v(LS+2)}")
    allred32(B, LS, LS + 1, "v_add_f32")
    M, R = LS, LS + 2
    B(f"v_mul_f32 {v(M)}, s100, {v(M)}")
    for i in range(0, 20, 4):
        for k in range(4): B(f"v_sub_f32 {v(LD+k)}, {v(LF+i+k)}, {v(M)}")
        for k in range(4): B(f"{'v_fmac_f32' if i else 'v_mul_f32'} {v(R+k)}, {v(LD+k)}, {v(LD+k)}")
    B(f"v_add_f32 {v(R)}, {v(R)}, {v(R+1)}", f"v_add_f32 {v(R+2)}, {v(R+2)}, {v(R+3)}", f"v_add_f32 {v(R)}, {v(R)}, {v(R+2)}")
    allred32(B, R, R + 1, "v_add_f32")
    B(f"v_mul_f32 {v(R)}, s100, {v(R)}")
    rbf(B, M); rbf(B, R)
    B(f"v_add_f32 {v(R)}, 0x3727c5ac, {v(R)}"); rbf(B, R)
    B(f"v_sqrt_f32 {v(R)}, {v(R)}", "s_nop 0"); rbf(B, R)
    B(f"v_rcp_f32 {v(R)}, {v(R)}", f"v_lshlrev_b32 {v(LSA)}, 4, {v(ROW)}", f"v_add_u32 {v(LSA)}, {STAT_OFF}, {v(LSA)}")
    B(f"v_mul_f32 {v(LS+8)}, {QSCALE}, {v(R)}", f"v_mul_f32 {v(LS+9)}, {v(M)}, {v(LS+8)}", f"v_sub_f32 {v(LS+9)}, 0, {v(LS+9)}")
    B(f"buffer_store_dwordx2 {v(LS+8,2)}, {v(LSA)}, {SWS}, 0 offen sc1")
    return B.L

def ln_rest():
    t = 37
    M, R = LS, LS + 2
    B = Asm()
    for i in range(20): B(f"v_sub_f32 {v(LF+i)}, {v(LF+i)}, {v(M)}")
    for i in range(10): B(f"v_cvt_pk_bf16_f32 {v(LX+i)}, {v(LF+2*i)}, {v(LF+2*i+1)}")
    B(*ln_unpack(LF, LX))
    for i in range(20): B(f"v_mul_f32 {v(LF+i)}, {v(LF+i)}, {v(R)}")
    for i in range(10): B(f"v_cvt_pk_bf16_f32 {v(LX+i)}, {v(LF+2*i)}, {v(LF+2*i+1)}")
    un = ln_unpack(LF, LX)
    for i in range(5): B(f"buffer_store_dwordx2 {v(LX+2*i,2)}, {v(LXA)}, {SWS}, 0 offen offset:{256*i} sc1", *un[4*i:4*i+4])
    u = LS + 6
    for i in range(10):
        B(f"v_lshlrev_b32 {v(u)}, 16, {v(LW+i)}", f"v_and_b32 {v(u+1)}, s101, {v(LW+i)}")
        op = "v_mul_f32" if i < 2 else "v_fmac_f32"
        B(f"{op} {v(R+2*(i&1))}, {v(LF+2*i)}, {v(u)}", f"{op} {v(R+2*(i&1)+1)}, {v(LF+2*i+1)}, {v(u+1)}")
    B(f"v_add_f32 {v(R)}, {v(R)}, {v(R+1)}", f"v_add_f32 {v(R+2)}, {v(R+2)}, {v(R+3)}", f"v_add_f32 {v(R)}, {v(R)}, {v(R+2)}")
    allred32(B, R, R + 1, "v_add_f32")
    k, u = R, R + 1
    B(f"v_cvt_pk_bf16_f32 {v(k)}, {v(k)}, {v(k)}", f"v_ashrrev_i32 {v(u)}, 31, {v(k)}", f"v_and_b32 {v(u)}, 0x7fff, {v(u)}", f"v_or_b32 {v(u)}, 0x8000, {v(u)}",
      f"v_and_b32 {v(k)}, 0xffff, {v(k)}", f"v_xor_b32 {v(k)}, {v(k)}, {v(u)}", f"v_sub_u32 {v(u)}, 2047, {v(ROW)}", f"v_lshl_or_b32 {v(k)}, {v(k)}, 11, {v(u)}",
      f"v_mov_b32 {v(t)}, {FKEY}", "s_mov_b64 exec, s[44:45]", f"ds_max_u32 {v(t)}, {v(k)}", "s_mov_b64 exec, -1", f"v_mov_b32 {v(u)}, 0")
    B(f"v_lshl_add_u32 {v(t)}, v0, 2, s47", f"buffer_store_dword {v(u)}, {v(t)}, {SWS}, 0 offen sc1")
    return B.L

CONV = tuple(int(c) for c in os.environ.get("CONV", "01"))
LONE, LA = J + 40, J + 48
DLO = int(os.environ.get("DLO", 52))
GUS = int(os.environ.get("GUS", 1))
BAR = int(os.environ.get("BAR", 16))
assert len(CONV) <= 3
def la(q): return LA + 4 * CONV.index(q)

SNAKE = os.environ.get("SNAKE", "qp")
def qk_order(f): return f >> 2, (3 - (f & 3) if f & 4 and "q" in SNAKE else f & 3)
def pv_order(f): return f >> 1, ((f ^ (f >> 1)) & 1 if "p" in SNAKE else f & 1)

def main_loop():
    plans = {dlo: sched.schedule(CONV, lat=int(os.environ.get("LAT", 8)), bar=BAR, seed=int(os.environ.get("SEED", 2)), wds=float(os.environ.get("WDS", 0.9)), dlo=dlo)
             for dlo in {0, DLO}}
    print("loop overflow units", [p[2] for p in plans.values()], [[p[1]["d", i] for i in range(8)] for p in plans.values()])
    st = Stream()
    for tile in range(4):
        slots, pos, over = plans[0 if tile else DLO]
        base = len(st.mf)
        for kind, q, f in slots:
            qn, qp = (q + 1) % 4, (q - 1) % 4
            sb = S + 16 * ((q + 1) % 2); pb = P + 8 * ((q - 1) % 2)
            if kind == "qk":
                kt, t = qk_order(f)
                st.add(f"{MF} {v(sb+4*kt,4)}, {a(kf(kt,t),4)}, {v(qf(qn,t),4)}, {v(NM+4*qn,4) if f % 4 == 0 else v(sb+4*kt,4)}")
            elif kind == "pv":
                dt, h = pv_order(f)
                st.add(f"{MF} {a(of(dt,qp),4)}, {a(vf(h,dt),4)}, {v(pb+4*h,4)}, {a(of(dt,qp),4)}")
            else:
                st.add(f"{MF} {v(la(qp),4)}, {v(LONE,4)}, {v(pb+4*f,4)}, {v(la(qp),4)}")
        for n, g in sorted(pos.items(), key=lambda x: (x[1], x[0][0] != "e", x[0][1:])):
            g += base
            if n[0] in "eac":
                q, i = n[1:]; sc = S + 16 * (q % 2); pc = P + 8 * (q % 2); l = L + 2 * q + (i & 1)
                st.va[g].append({"e": f"v_exp_f32 {v(sc+i)}, {v(sc+i)}", "a": f"v_add_f32 {v(l)}, {v(l)}, {v(sc+i)}",
                                 "c": f"v_cvt_pk_bf16_f32 {v(pc + i//2)}, {v(sc+i-1)}, {v(sc+i)}"}[n[0]])
            elif n[0] == "v": st.mem[g].append(v_read(tile, pv_order(n[1])[1], pv_order(n[1])[0], n[2]))
            elif n[0] == "k": st.mem[g].append(k_read((tile + 1) % 4, *qk_order(n[1])))
            else: st.mem[g].insert(0, v_dma(n[1]) if n[1] < 4 else k_dma(n[1] - 4))
        if tile: st.sc[base + BAR - 1] += ["s_waitcnt vmcnt(16)"]
        st.sc[base + BAR] += ["s_barrier"]
        g = base + pos["d", 0] - 5
        for i, x in enumerate(["s_cmp_lt_u32 s35, 0x80000", "s_cselect_b32 s8, s40, s36", "s_cselect_b32 s9, s41, s37", "s_cselect_b32 s3, 0x4000, s48", v_m0((tile + 3) % 4)]):
            st.sc[g + i].append(x)
        g = base + pos["d", 4] - 6
        for i, x in enumerate(["s_add_u32 s35, s35, s3", "s_cmp_lt_u32 s34, 0x80000", "s_cselect_b32 s4, s38, s42", "s_cselect_b32 s5, s39, s43", "s_cselect_b32 s3, 0x4000, s48", k_m0(tile)]):
            st.sc[g + i].append(x)
        st.sc[base + pos["d", 7] + 1].append("s_add_u32 s34, s34, s3")
    w2 = slots.index(("qk", 2, 0))
    assert pos["d", 4] < w2 and all(g < w2 for n, g in pos.items() if n[0] == "v")
    st.exit = base + w2 - 1
    st.entry = slots.index(("qk", 1, 0))
    assert not any(x.startswith("buffer") for g in range(st.entry) for x in st.mem[g]) and all(x == "s_barrier" for g in range(st.entry) for x in st.sc[g])
    st.first_reads = [x for g in range(st.entry) for x in st.mem[g]]
    st.left_dma = [k_dma(i - 4) for i in range(5, 8) if pos["d", i] >= w2]
    return st

def qk(q):
    sb = S + 16 * (q % 2)
    return [f"{MF} {v(sb+4*kt,4)}, {a(kf(kt,tt),4)}, {v(qf(q,tt),4)}, {v(NM+4*q,4) if f % 4 == 0 else v(sb+4*kt,4)}" for f in range(16) for kt, tt in [qk_order(f)]]

def clear_sums(A):
    for i in range(8): A(f"v_mov_b32 {v(L+i)}, 0")
    for i in range(8): A(f"v_mov_b32 {v(P+8+i)}, 0")
    for q in CONV:
        for i in range(4): A(f"v_mov_b32 {v(la(q)+i)}, 0")
    if CONV:
        for i in range(4): A(f"v_mov_b32 {v(LONE+i)}, 0x3f803f80")

def negm_from_max(A, ms):
    xgroup_multi(A, ms, [T0 + i for i in range(4)], "v_max_f32")
    for q in range(4):
        for r in range(4): A(f"v_sub_f32 {v(NM+4*q+r)}, 0, {v(ms[q])}")

def div_rows(A, d, i, per, magic, stride, t):
    A(f"v_add_u32 {v(t)}, {64*i}, v0", f"v_mul_u32_u24 {v(t+1)}, {magic}, {v(t)}", f"v_lshrrev_b32 {v(t+1)}, 16, {v(t+1)}",
      f"v_mul_u32_u24 {v(t+2)}, {per}, {v(t+1)}", f"v_sub_u32 {v(t+2)}, {v(t)}, {v(t+2)}", f"v_lshlrev_b32 {v(t+2)}, 4, {v(t+2)}",
      f"v_mul_u32_u24 {v(t+1)}, {stride}, {v(t+1)}", f"v_add_u32 {v(d)}, {v(t+1)}, {v(t+2)}")

XRP, XNP = (22, 24, 26, 28, 18), (232, 234, 252, 254, 236)
VXO, VXO2 = 31, 16

def row_io(op, regs, srd_, pol=""):
    return [f"buffer_{op}_dwordx4 {v(regs[2*e],4)}, {v(VXO)}, {srd_}, 0 offen offset:{64*e} {pol}" for e in range(2)] + \
           [f"buffer_{op}_dwordx2 {v(regs[4],2)}, {v(VXO2)}, {srd_}, 0 offen offset:128 {pol}"]

XS, WF, GA = J, J + 20, J + 40
DBGV, DBGA, FFV = J + 46, J + 47, J + 60

def side_jobs(A):
    t = T0
    dbg_load = f"buffer_load_dword {v(DBGV)}, {v(DBGA)}, {SDB}, 0 offen sc1"
    A("SIDE:", "s_waitcnt vmcnt(16)")
    for it in (1, 2, 3, 4, 5, 6): A(f"s_cmp_eq_u32 s62, {7-it}", f"s_cbranch_scc1 JOB{it}")
    def two_counters(off): return [f"v_and_b32 {v(DBGA)}, 1, v0", f"v_lshlrev_b32 {v(DBGA)}, 7, {v(DBGA)}", f"v_add_u32 {v(DBGA)}, {off}, {v(DBGA)}", dbg_load]
    A("JOB0:", "s_lshl_b32 s75, s28, 13", f"s_add_u32 s75, s75, {SPARE}")
    div_rows(A, J + 44, 0, 10, 6554, 1280, t)
    srd(A, 68, PWO, 0, 4096 * 1280)
    A("s_lshr_b32 s73, s2, 1", "s_and_b32 s72, s2, 1", "s_lshl_b32 s72, s72, 2", "s_add_u32 s72, s72, s28",
      f"s_mul_i32 s76, s73, {32*1280}", "s_mul_i32 s77, s72, 160", "s_add_u32 s76, s76, s77",
      f"s_mul_i32 s77, s72, {128*5120}", "s_mul_i32 s73, s73, 5120", "s_add_u32 s77, s77, s73")
    for i in range(6):
        A(f"s_add_u32 m0, s75, {i*1024}", "s_nop 0" if i == 0 else f"s_add_u32 s76, s76, {6*1280}", f"buffer_load_dwordx4 {v(J+44)}, {ST}, s76 offen {NT} lds")
    A(*two_counters(DBG_B)); A("s_branch LOOP")
    A("JOB1:", f"v_lshrrev_b32 {v(t)}, 2, v0", f"v_and_b32 {v(t+8)}, 3, v0", f"v_lshlrev_b32 {v(t+8)}, 3, {v(t+8)}", f"v_add_u32 {v(t+3)}, s75, {v(t+8)}")
    for p in range(2):
        if p: A(f"v_add_u32 {v(t)}, 16, {v(t)}")
        A(f"v_mul_u32_u24 {v(t+1)}, 43, {v(t)}", f"v_lshrrev_b32 {v(t+1)}, 8, {v(t+1)}", f"v_mul_u32_u24 {v(t+2)}, 160, {v(t)}",
          f"v_lshl_add_u32 {v(t+2)}, {v(t+1)}, 6, {v(t+2)}", f"v_add_u32 {v(t+4+p)}, {v(t+2)}, {v(t+3)}", f"v_add_u32 {v(t+6+p)}, {v(t+4+p)}, {v(t+8)}")
    A("s_waitcnt vmcnt(32)")
    for nt in range(5):
        for p in range(2): A(f"ds_read_b64_tr_b16 {v(WF+4*nt+2*p,2)}, {v(t+6+p if nt < 4 else t+4+p)} offset:{64*(nt>>1) + 8*(nt&1)}")
    A("s_movk_i32 s72, 128"); A(*spin("JOB1S", dbg_load, v(DBGV), "s72"))
    A(f"v_lshrrev_b32 {v(DBGA)}, 1, v0", f"v_lshlrev_b32 {v(DBGA)}, 7, {v(DBGA)}", f"v_and_b32 {v(t)}, 1, v0", f"v_lshl_add_u32 {v(DBGA)}, {v(t)}, 4, {v(DBGA)}",
      f"s_mov_b32 s72, {KEY_OFF}", f"buffer_load_dwordx4 {v(XS,4)}, {v(DBGA)}, {SWS}, s72 offen sc1")
    srd(A, 12, PWS, WOF_OFF, WOF_SIZE)
    A("s_and_b32 s76, s2, 7", "s_mul_i32 s76, s76, 27", "s_lshr_b32 s72, s2, 3", "s_min_u32 s72, s72, 26", "s_add_u32 s76, s76, s72",
      "s_mul_i32 s72, s28, 160", f"v_lshrrev_b32 {v(t)}, 1, v0", f"v_add_u32 {v(t)}, s72, {v(t)}", f"v_mul_u32_u24 {v(t)}, 3456, {v(t)}",
      "s_lshl_b32 s72, s76, 4", f"v_add_u32 {v(t)}, s72, {v(t)}", f"v_and_b32 {v(t+1)}, 1, v0", f"v_cmp_eq_u32 vcc, 1, {v(t+1)}",
      f"v_mov_b32 {v(t+2)}, {s(PG)}", f"v_mov_b32 {v(t+3)}, {s(PU)}", f"v_cndmask_b32 {v(t+2)}, {v(t+2)}, {v(t+3)}, vcc",
      f"v_mov_b32 {v(t+1)}, {s(PG+1)}", f"v_mov_b32 {v(t+3)}, {s(PU+1)}", f"v_cndmask_b32 {v(t+3)}, {v(t+1)}, {v(t+3)}, vcc",
      f"v_add_co_u32 {v(J+44)}, vcc, {v(t+2)}, {v(t)}", "s_nop 1", f"v_addc_co_u32 {v(J+45)}, vcc, 0, {v(t+3)}, vcc",
      "s_waitcnt lgkmcnt(0)")
    for nt in range(5):
        A(f"buffer_store_dwordx4 {v(WF+4*nt,4)}, {v(L16)}, {SW}, s77 offen offset:{1024*(nt%4)} sc1")
        if nt == 3: A("s_add_u32 s77, s77, 4096")
    def gu(first):
        if not first: A("s_add_u32 s77, s77, 1", "s_cmp_eq_u32 s77, 5", "s_cselect_b32 s77, 0, s77")
        A("s_lshl_b32 s72, s77, 10", "s_add_u32 m0, s75, s72", f"s_mul_i32 s72, s77, {32*3456}", "s_mov_b32 s73, 0",
          f"v_lshl_add_u64 {v(t,2)}, {v(J+44,2)}, 0, s[72:73]", f"global_load_lds_dwordx4 {v(t,2)}, off {NT if first else ''}")
    A("s_lshr_b32 s77, s2, 3", "s_and_b32 s77, s77, 7", "s_cmp_ge_u32 s77, 5", "s_cselect_b32 s72, 5, 0", "s_sub_u32 s77, s77, s72")
    gu(True)
    A("s_branch LOOP")
    A("JOB2:", "s_waitcnt vmcnt(32)")
    argmax_keys(A, XS, 68, RBITS)
    A(f"s_and_b32 {s(SEL)}, {s(RBITS)}, 2047", f"s_sub_u32 {s(SEL)}, 2047, {s(SEL)}", f"s_lshr_b32 {s(RBITS)}, {s(RBITS)}, 11",
      f"s_bitcmp1_b32 {s(RBITS)}, 15", "s_mov_b32 s72, 0xffff", "s_cselect_b32 s72, 0x8000, s72", f"s_xor_b32 {s(RBITS)}, {s(RBITS)}, s72", f"s_lshl_b32 {s(RBITS)}, {s(RBITS)}, 16",
      f"s_mul_i32 s73, {s(SEL)}, 1280", "s_mul_i32 s72, s28, 320", "s_add_u32 s73, s73, s72", f"v_and_b32 {v(t)}, 48, v0")
    for i in range(5): A(f"buffer_load_dwordx4 {v(XS+4*i,4)}, {v(t)}, {SWS}, s73 offen offset:{64*i} sc1")
    A(*w0_only("JOB2W", ["s_lshr_b32 s72, s2, 3", "s_lshl_b32 s72, s72, 5", "s_and_b32 s73, s2, 7", "s_add_u32 s72, s72, s73", "s_lshl_b32 s72, s72, 2",
                         f"s_add_u32 s72, s72, {FF_OFF}", f"v_mov_b32 {v(t+14)}, 1", f"v_mov_b32 {v(t+15)}, s72", f"buffer_store_dword {v(t+14)}, {v(t+15)}, {SWS}, 0 offen sc1"]))
    gu(False); A("s_branch LOOP")
    A("JOB3:")
    srd(A, 68, PD, 0, 1728 * 1280)
    A("s_mul_i32 s72, s76, 10240", "s_mul_i32 s73, s28, 2560", "s_add_u32 s72, s72, s73", "s_add_u32 m0, s75, 5120")
    for i in range(3):
        A("s_mov_b64 exec, 0xffffffff" if i == 2 else "s_nop 0", f"buffer_load_dwordx4 {v(L16)}, {ST}, s72 offen offset:{1024*i} {NT} lds")
    A("s_mov_b64 exec, -1")
    oproj_setup_early(A)
    A(f"v_and_b32 {v(t)}, 15, v0", f"v_lshrrev_b32 {v(t+1)}, 4, v0", "s_lshl_b32 s73, s78, 6", "s_lshl_b32 s72, s28, 4", "s_add_u32 s73, s73, s72",
      f"v_add_u32 {v(t)}, s73, {v(t)}", "s_mul_i32 s72, s79, 160", f"v_mul_u32_u24 {v(t)}, 1280, {v(t)}", f"v_add_u32 {v(t)}, s72, {v(t)}",
      f"v_lshl_add_u32 {v(VXO)}, {v(t+1)}, 4, {v(t)}", f"v_lshl_add_u32 {v(VXO2)}, {v(t+1)}, 3, {v(t)}")
    gu(False); A("s_branch LOOP")
    ff_load = f"buffer_load_dwordx4 {v(FFV,4)}, {v(DBGA)}, {SWS}, 0 offen sc1"
    A("JOB4:", f"v_add_u32 {v(DBGA)}, {FF_OFF}, {v(DBGA)}", ff_load, *row_io("load", XRP, SX)[:1])
    gu(False); A("s_branch LOOP")
    A("JOB5:", "s_waitcnt vmcnt(32)")
    A(*spin("JOB5S", ff_load, v(FFV), "1", pre=[f"v_min3_u32 {v(FFV)}, {v(FFV)}, {v(FFV+1)}, {v(FFV+2)}", f"v_min_u32 {v(FFV)}, {v(FFV)}, {v(FFV+3)}"]))
    A(*row_io("load", XRP, SX)[1:])
    gu(False); A("s_branch LOOP")
    n = 1 << LR
    k0 = int(os.environ.get("TK0", 19))
    A("JOB6:", *row_io("load", XNP, SWS, "sc1"))
    A("s_lshr_b32 s72, s2, 3", f"s_and_b32 s72, s72, {n-1}", f"s_add_u32 s72, s72, {k0*40}", f"v_lshl_add_u32 {v(t)}, v0, {LR}, s72", f"v_lshlrev_b32 {v(t)}, 7, {v(t)}")
    for i in range((32 - k0) * 40 // (64 * n)):
        if i: A(f"v_add_u32 {v(t)}, {64*n*128}, {v(t)}")
        A(f"buffer_load_dword {v(DUMMY)}, {v(t)}, {SW}, 0 offen sc1")
    A("s_branch LOOP")

def ffn_part1():
    t = T0; B = Asm()
    B(f"v_lshrrev_b32 {v(t)}, 4, v0", f"v_bfe_u32 {v(t+1)}, v0, 2, 2", f"v_lshl_add_u32 {v(t)}, {v(t)}, 3, {v(t+1)}",
      f"v_and_b32 {v(t+1)}, 3, v0", f"v_lshlrev_b32 {v(t+1)}, 3, {v(t+1)}", f"v_lshl_add_u32 {v(t)}, {v(t)}, 5, {v(t+1)}", f"v_add_u32 {v(t)}, s75, {v(t)}")
    for i in range(5):
        for p in range(2): B(f"ds_read_b64_tr_b16 {v(WF+4*i+2*p,2)}, {v(t)} offset:{i*1024 + p*128}")
    B(f"v_and_b32 {v(t+3)}, 15, v0", f"v_lshlrev_b32 {v(t+1)}, 4, {v(t+3)}", "s_lshl_b32 s72, s28, 2", f"s_add_u32 s72, s72, {FEX}", f"v_add_u32 {v(t+1)}, s72, {v(t+1)}",
      "s_mul_i32 s72, s28, 320", f"s_add_u32 s72, s72, {SPARE}", "s_movk_i32 s73, 1280", "s_waitcnt lgkmcnt(0)")
    for i in range(5): B(f"{MF} {v(GA,4)}, {v(XS+4*i,4)}, {v(WF+4*i,4)}, {v(GA,4) if i else 0}")
    B(f"v_bfe_u32 {v(t)}, v0, 3, 2", f"v_lshlrev_b32 {v(t)}, 13, {v(t)}", f"v_bfe_u32 {v(t+2)}, v0, 2, 1", f"v_mad_u32_u24 {v(t)}, {v(t+2)}, s73, {v(t)}",
      f"v_and_b32 {v(t+2)}, 3, v0", f"v_lshl_add_u32 {v(t)}, {v(t+2)}, 3, {v(t)}", f"v_add_u32 {v(t)}, s72, {v(t)}", "s_nop 0", f"ds_write_b32 {v(t+1)}, {v(GA)}")
    for nt in range(10): B(f"ds_read_b64_tr_b16 {v(WF+2*nt,2)}, {v(t)} offset:{5120 + nt*32}")
    B("s_waitcnt lgkmcnt(0)")
    return B.L

def ffn_part2():
    t = T0; G = GA; B = Asm()
    B(f"v_and_b32 {v(t)}, 7, v0", f"v_lshlrev_b32 {v(t+1)}, 4, {v(t)}", f"v_add_u32 {v(t+1)}, {FEX}, {v(t+1)}",
      f"ds_read_b128 {v(G,4)}, {v(t+1)}", f"ds_read_b128 {v(G+4,4)}, {v(t+1)} offset:128",
      "s_lshl_b32 s72, s28, 5", f"s_add_u32 s72, s72, {FH}", f"v_lshl_add_u32 {v(t+1)}, {v(t)}, 1, s72", f"v_bfe_u32 {v(t)}, v0, 4, 1", f"v_lshl_add_u32 {v(t)}, {v(t)}, 3, s72",
      "s_waitcnt lgkmcnt(0)")
    for m in range(2):
        b = G + 4 * m
        B(f"v_add_f32 {v(b)}, {v(b)}, {v(b+1)}", f"v_add_f32 {v(b+2)}, {v(b+2)}, {v(b+3)}", f"v_add_f32 {v(b)}, {v(b)}, {v(b+2)}")
    B(f"v_cvt_pk_bf16_f32 {v(G)}, {v(G)}, {v(G+4)}", f"v_and_b32 {v(G+4)}, 0xffff0000, {v(G)}", f"v_lshlrev_b32 {v(G)}, 16, {v(G)}",
      f"v_mul_f32 {v(G+1)}, {NLOG2E}, {v(G)}", f"v_exp_f32 {v(G+1)}, {v(G+1)}", "s_nop 0", f"v_add_f32 {v(G+1)}, 1.0, {v(G+1)}",
      f"v_rcp_f32 {v(G+1)}, {v(G+1)}", "s_nop 0", f"v_mul_f32 {v(G)}, {v(G)}, {v(G+1)}",
      f"v_cvt_pk_bf16_f32 {v(G)}, {v(G)}, {v(G)}", f"v_lshlrev_b32 {v(G)}, 16, {v(G)}", f"v_mul_f32 {v(G)}, {v(G)}, {v(G+4)}",
      f"v_cvt_pk_bf16_f32 {v(G)}, {v(G)}, {v(G)}", f"ds_write_b16 {v(t+1)}, {v(G)}", "s_waitcnt lgkmcnt(0)", f"ds_read_b64 {v(G,2)}, {v(t)}",
      "v_cmp_gt_u32 vcc, 32, v0", "s_lshr_b32 s73, s2, 3", "s_cmp_lt_u32 s73, 27", f"s_mov_b32 s73, {WSLO}", f"s_cselect_b32 s73, {Y_OFF}, s73",
      "s_mul_i32 s72, s28, 640", "s_add_u32 s72, s72, s73", "s_and_b32 s73, s2, 15", "s_mul_i32 s73, s73, 2560", "s_add_u32 s72, s72, s73",
      f"v_lshl_add_u32 {v(t+3)}, {v(t+3)}, 2, s72", "s_waitcnt lgkmcnt(0)",
      f"v_cndmask_b32 {v(G)}, 0, {v(G)}, vcc", f"v_cndmask_b32 {v(G+1)}, 0, {v(G+1)}, vcc", "s_nop 1")
    outs = [XS + 4*i for i in range(5)] + [J + 44 + 4*i for i in range(5)]
    for nt in range(10): B(f"v_mfma_f32_16x16x16_bf16 {v(outs[nt],4)}, {v(G,2)}, {v(WF+2*nt,2)}, 0")
    B("s_mov_b64 exec, 0xffff")
    for nt in range(10):
        if nt >= 8: B("s_nop 1")
        B(f"buffer_atomic_add_f32 {v(outs[nt])}, {v(t+3)}, {SWS}, 0 offen offset:{64*nt}")
    B("s_mov_b64 exec, -1")
    return B.L

def weave(A, vm, loads, fill, per):
    fill = list(fill)
    def pop():
        x = fill.pop(0)
        if x.startswith("s_mov_b64 exec, 0x"):
            while True:
                put(A, vm, [x], "fa")
                if x == "s_mov_b64 exec, -1": return
                x = fill.pop(0)
        put(A, vm, [x], "fa")
        while x.startswith(("s_cmp", "s_mov_b32 s73")): x = fill.pop(0); put(A, vm, [x], "fa")
    for lines, tag in loads:
        for x in lines:
            put(A, vm, [x], tag)
            if x.startswith("buffer_"):
                for _ in range(per):
                    if fill: pop()
    while fill: pop()

OACC, OB, OT = 32, 112, 192
NB = 5
def oacc(i, nt): return OACC + 20 * i + 4 * nt
def aslot(k): return (128 + 20 * (k - 6)) if k >= 6 else 20 * k

def oproj_setup_early(A):
    lr = LR
    A("s_and_b32 s72, s2, 7", "s_lshr_b32 s73, s2, 3", f"s_lshr_b32 s78, s72, {lr-2}", f"s_lshl_b32 s78, s78, {lr}", f"s_and_b32 s79, s73, {(1<<lr)-1}", "s_add_u32 s78, s78, s79",
      f"s_and_b32 s72, s72, {(1<<(lr-2))-1}", f"s_lshl_b32 s72, s72, {5-lr}", f"s_lshr_b32 s79, s73, {lr}", "s_add_u32 s79, s79, s72",
      f"s_mul_i32 s72, s79, {128*5120}", f"s_mul_i32 s73, s28, {32*5120}", "s_add_u32 s72, s72, s73", f"s_add_u32 s72, s72, {WOF_OFF}")
    srd(A, 12, PWS, "s72", 32 * 5120)
    A("s_sub_u32 s72, s72, s33", f"s_sub_u32 s72, s72, {0x80000 - 60*1024}", f"s_add_u32 s42, {s(PWS)}, s72", f"s_addc_u32 s43, {s(PWS+1)}, 0",
      "s_add_u32 s36, s42, 16384", "s_addc_u32 s37, s43, 0")

def a_loads(k, slot):
    out = [f"s_mov_b32 s31, {k*5120}", f"s_mov_b32 s32, {k*5120+4096}"]
    for nt in range(5):
        out.append(f"buffer_load_dwordx4 {a(aslot(slot)+4*nt,4)}, {v(L16)}, {SW}, {'s32' if nt == 4 else 's31'} offen offset:{1024*(nt%4)} {WSC}")
    return out

def put(A, vm, lines, tag):
    for x in lines:
        if x.startswith(("buffer_", "global_")):
            A(*vm.room()); A(x); vm.issue(tag)
        else: A(x)

OLEAD = int(os.environ.get('OLEAD', 8))
NL = 7
TAILK = int(os.environ.get("TAILK", 2))
EARLY = int(os.environ.get("EARLY", 0))
def lds_frag(n):
    if n < 16: return VK, (n >> 2) * 16384 + (n & 3) * 1024
    if n < 28: return VV, ((n - 16) >> 2) * 16384 + (n & 3) * 1024
    return 21, (n - 28) * 1024

def late_loads():
    out = []
    for n in range(28, 35):
        if n in (28, 32): out += [f"s_add_u32 m0, s48, {(n-28)*1024}", f"s_mov_b32 s31, {(60+n)*1024}"]
        out.append(f"buffer_load_dwordx4 {v(L16)}, {SW}, s31 offen offset:{1024*(n & 3)} {WSC} lds")
    return out

def oproj(A, vm, stamps):
    t = T0
    VB, VROW, WX = 3, 7, 9
    RE, VY, VF_, VY2 = 12, 13, 14, 15
    G = OT + 20
    XR = [p + h for p in XRP for h in range(2)]; XNR = [p + h for p in XNP for h in range(2)]
    B = Asm()
    B("s_lshl_b32 s72, s78, 9", "s_lshl_b32 s73, s28, 7", "s_add_u32 s72, s72, s73", f"s_add_u32 s72, s72, {FLAG_OFF}",
      f"v_and_b32 {v(VF_)}, 7, v0", f"v_lshl_add_u32 {v(VF_)}, {v(VF_)}, 2, s72")
    for i in range(4):
        B(f"s_add_u32 s72, s28, {i}", "s_and_b32 s72, s72, 3", "s_lshl_b32 s72, s72, 10", f"v_add_u32 {v(VB+i)}, s72, {v(L16)}")
    B(f"v_add_u32 {v(VV)}, {VBASE}, {v(VV)}")
    B(f"v_and_b32 {v(t)}, 15, v0", f"v_lshrrev_b32 {v(t+1)}, 4, v0", "s_lshl_b32 s74, s78, 6", "s_lshl_b32 s72, s28, 4", "s_add_u32 s74, s74, s72",
      f"v_add_u32 {v(VROW)}, s74, {v(t)}",
      "s_mul_i32 s72, s79, 320", f"s_add_u32 s72, s72, {Y_OFF}", f"v_mul_u32_u24 {v(t+2)}, 2560, {v(t)}", f"v_add_u32 {v(t+2)}, s72, {v(t+2)}",
      f"v_lshl_add_u32 {v(VY)}, {v(t+1)}, 5, {v(t+2)}", f"v_lshl_add_u32 {v(VY2)}, {v(t+1)}, 4, {v(t+2)}")
    for i in range(1, 4):
        B(f"s_sub_u32 s72, s28, {i}", "s_and_b32 s72, s72, 3", "s_lshl_b32 s72, s72, 12", f"v_add_u32 {v(WX+i-1)}, s72, {v(L16)}")
    B(f"v_add_u32 {v(RE)}, s33, {v(L16)}",
      f"s_sub_u32 s75, {s(SEL)}, s74", f"v_mov_b32 {v(t+10)}, {DBG_C}", f"s_mov_b32 s100, {NLOG2E}", "s_mov_b32 s101, 0xffff0000")
    VOT, RA2 = 20, 21
    B(f"v_lshrrev_b32 {v(VOT)}, {LR}, v0", f"v_lshlrev_b32 {v(VOT)}, 17, {v(VOT)}", f"s_lshr_b32 s72, s2, {3+LR}", f"s_lshl_b32 s72, s72, {LR}",
      f"v_and_b32 {v(t)}, {(1<<LR)-1}, v0", f"v_add_u32 {v(t)}, s72, {v(t)}", f"v_lshl_add_u32 {v(VOT)}, {v(t)}, 7, {v(VOT)}")
    A("s_mov_b32 s48, s75")
    B(f"v_add_u32 {v(RA2)}, s48, {v(L16)}")
    order = [0, 1, 2, 3, 4, 5, 6, 7, 8, 9, 10, 11]
    order = [k for k in order if ("a", k) not in vm.q]
    nbefore = max(3, len(order) - int(os.environ.get("NAFTER", 3)))
    weave(A, vm, [(a_loads(k, k), ("a", k)) for k in order[:2]], ffn_part2(), 8)
    A("s_lshl_b32 s72, s78, 12", "s_lshl_b32 s73, s28, 22", "s_add_u32 s72, s72, s73", f"s_add_u32 s72, s72, {OF_OFF}")
    srd(A, 20, PWS, "s72", 31 * 131072 + 4096)
    srd(A, 4, POUT, 0, 2048 * 1280)
    weave(A, vm, [(a_loads(k, k), ("a", k)) for k in order[2:nbefore]], B.L, 12)
    fpoll = f"buffer_load_dword {v(t+8)}, {v(VF_)}, {SWS}, 0 offen sc1"
    put(A, vm, [fpoll], "flag")
    for k in order[nbefore:]: put(A, vm, a_loads(k, k), ("a", k))
    put(A, vm, late_loads(), "l")
    A(*vm.wait(["flag"]))
    A("s_barrier", *w0_only("OCSIG", ["s_mov_b32 s72, 1", f"s_atomic_add s72, {s(PDBG,2)}, {DBG_C}"]))
    A(*spin("OFLAG", fpoll, v(t+8), "1"))
    stamp(A, "flag", stamps)
    def o_off(k):
        if 'r' in EXP: return [f"s_add_u32 s34, s35, {k*131072}", "s_and_b32 s34, s34, 0x3fffff"]
        return [f"s_mov_b32 s34, {k*131072}"]
    if 'r' in EXP: A(f"s_lshr_b32 s35, s2, {3+LR}", f"s_lshl_b32 s35, s35, {17+LR}")
    def b_load(k, i): return f"buffer_load_dwordx4 {v(OB+16*(k%NB)+4*i,4)}, {v(VB+i)}, {SO}, s34 offen {OSC}"
    for k in range(NB - 1):
        A(*o_off(k))
        put(A, vm, [b_load(k, i) for i in range(4)], ("b", k))
    def asrc(k):
        if k < 12: return lambda nt: a(aslot(k) + 4*nt, 4)
        if k < 12 + NL: return lambda nt: v(OT + 20*(k & 1) + 4*nt, 4)
        return lambda nt: a(aslot((k - 12 - NL) % 12) + 4*nt, 4)
    refill = []
    for i in range(20 - NL):
        for nt in range(5): refill.append((i, nt))
    va = gate_ops(XNR, G)
    state = []
    cpoll = f"buffer_load_dword {v(t+9)}, {v(t+10)}, {SDB}, 0 offen sc1"
    for k in range(32):
        st = Stream()
        for i in ((1, 2, 3, 0) if k == 31 else range(4)):
            for nt in range(5):
                c = v(oacc(i, nt), 4) if k else 0
                st.add(f"{MF} {v(oacc(i,nt),4)}, {asrc(k)(nt)}, {v(OB+16*(k%NB)+4*i,4)}, {c}")
        need = [("b", k)] + ([("a", k)] if k < 12 or k >= 12 + NL else [])
        A(*vm.wait(need))
        if 11 <= k < 11 + NL:
            st.sc[0] += vm.wait(["l"])
            for nt in range(5):
                r, o = lds_frag(5 * (k + 1 - 12) + nt)
                st.mem[1 + nt].append(f"ds_read_b128 {v(OT+20*((k+1)&1)+4*nt,4)}, {v(r)} offset:{o}")
        if k == 22: A("s_cmp_lt_u32 s75, 16", "s_cbranch_scc0 OC3", f"s_waitcnt vmcnt({len(vm.q) - ny})", *route_ops(G, VROW), "OC3:")
        ops = []
        def mem(g, x, tag): ops.append((g, x, tag))
        kb = k + NB - 1
        if kb < 32:
            for i, x in enumerate(o_off(kb)): st.sc[4 + i].append(x)
            for i in range(4): mem(6 + 2*i, b_load(kb, i), ("b", kb))
        n = 3 if k % 4 else 2
        g = 14
        while n and refill and (refill[0][0] if refill[0][0] < 12 else refill[0][0] + NL) < k:
            i, nt = refill.pop(0)
            st.sc[g - 1].append(f"s_mov_b32 s31, {(12+NL+i)*5120 + 1024*nt}")
            mem(g, f"buffer_load_dwordx4 {a(aslot(i % 12)+4*nt,4)}, {v(L16)}, {SW}, s31 offen {WSC}", ("a", 12 + NL + i)); g += 2; n -= 1
        span = 64 >> LR
        if "o" in TOUCH and (k + OLEAD) % span == 0 and k + OLEAD < 32:
            st.sc[2].append(f"s_mov_b32 s32, {(k + OLEAD) * 131072}")
            mem(3, f"buffer_load_dword {v(DUMMY)}, {v(VOT)}, {SO}, s32 offen sc1", "t")
        if k == 15: st.va[19] += ["s_cmp_lt_u32 s75, 16", "s_cbranch_scc0 OC1", cpoll, "OC1:"]; nc = len(vm.q) + len(ops)
        if k == 20:
            for i in range(20): st.va[2 * (i // 2) + (1 if i >= 10 else 0)].append(f"v_mov_b32 {v(G+i)}, 0")
            st.va[19] += ["s_cmp_lt_u32 s75, 16", "s_cbranch_scc0 OC2", f"s_waitcnt vmcnt({len(vm.q) + len(ops) - nc})"] + spin("OCS", cpoll, v(t+9), "s72") + \
                         [f"buffer_load_dwordx4 {v(G+4*nt,4)}, {v(VY if nt < 4 else VY2)}, {SWS}, 0 offen offset:{128*(nt>>1) + 16*(nt&1)} sc1" for nt in range(5)] + ["OC2:"]
            st.va[18].append("s_movk_i32 s72, 256")
        for g, x, tag in sorted(ops, key=lambda o: o[0]):
            st.sc[g] += vm.room(); st.mem[g].append(x); vm.issue(tag)
        if k == 20: ny = len(vm.q)
        if 23 <= k <= 30:
            for g in range(1, 20):
                if any(x.startswith("buffer") for x in st.mem[g]): continue
                for _ in range(2):
                    if va:
                        x = va.pop(0); st.va[g].append(x)
                        if x.startswith(TRANS): break
        if k == 31:
            assert not va
            for n in range(10): st.mem[9 + n].append(f"ds_write_b128 {v(RE)}, {v(oacc(1 + n // 5, n % 5),4)} offset:{lds_frag(n)[1]}")
        nx0 = regs_of(" ".join(asrc(k + 1)(nt) for nt in range(5))) if k < 31 else set()
        stamp(A, f"g{k}", stamps)
        state = st.emit(A, state, nxt0=nx0)
    assert not refill
    A(*va)
    stamp(A, "gend", stamps)
    for n in range(10, 15): A(f"ds_write_b128 {v(RE)}, {v(oacc(3, n % 5),4)} offset:{lds_frag(n)[1]}")
    XF = OB
    for i in range(10): A(f"v_lshlrev_b32 {v(XF+2*i)}, 16, {v(XR[i])}", f"v_and_b32 {v(XF+2*i+1)}, s101, {v(XR[i])}")
    A("s_waitcnt lgkmcnt(0)", "s_barrier")
    for nt in range(5):
        for i in range(1, 4): A(f"ds_read_b128 {v(oacc(i,nt),4)}, {v(WX+i-1)} offset:{lds_frag(5*(i-1) + nt)[1]}")
    for nt in range(5):
        A(f"s_waitcnt lgkmcnt({3*(4-nt)})")
        for r in range(4): A(f"v_add_f32 {v(oacc(0,nt)+r)}, {v(oacc(0,nt)+r)}, {v(oacc(1,nt)+r)}")
        for r in range(4): A(f"v_add_f32 {v(oacc(2,nt)+r)}, {v(oacc(2,nt)+r)}, {v(oacc(3,nt)+r)}")
        for r in range(4): A(f"v_add_f32 {v(oacc(0,nt)+r)}, {v(oacc(0,nt)+r)}, {v(oacc(2,nt)+r)}")
        for r in range(4): A(f"v_fmac_f32 {v(XF+4*nt+r)}, {v(oacc(0,nt)+r)}, {v(G+4*nt+r)}")
        for h in range(2): A(f"v_cvt_pk_bf16_f32 {v(XR[2*nt+h])}, {v(XF+4*nt+2*h)}, {v(XF+4*nt+2*h+1)}")
        if nt in (1, 3, 4): A(row_io("store", XRP, SK)[nt // 2])

def rb2(x):
    return [f"v_cvt_pk_bf16_f32 {v(x)}, {v(x)}, {v(x+1)}", f"v_and_b32 {v(x+1)}, s101, {v(x)}", f"v_lshlrev_b32 {v(x)}, 16, {v(x)}"]

def route_ops(G, VROW):
    t = T0; o = []
    r = t + 11
    o += [f"v_mov_b32 {v(r)}, {s(RBITS)}", f"v_mul_f32 {v(r)}, s100, {v(r)}", f"v_exp_f32 {v(r)}, {v(r)}", f"v_cmp_eq_u32 vcc, {s(SEL)}, {v(VROW)}", f"v_add_f32 {v(r)}, 1.0, {v(r)}",
          f"v_rcp_f32 {v(r)}, {v(r)}", "s_nop 0", f"v_cvt_pk_bf16_f32 {v(r)}, {v(r)}, {v(r)}", f"v_lshlrev_b32 {v(r)}, 16, {v(r)}"]
    for ror in (8, 4, 2, 1):
        for i in range(20): o.append(f"v_add_f32_dpp {v(G+i)}, {v(G+i)}, {v(G+i)} row_ror:{ror} row_mask:0xf bank_mask:0xf")
    for i in range(10): o += rb2(G + 2*i)
    for i in range(20): o.append(f"v_mul_f32 {v(G+i)}, {v(G+i)}, {v(r)}")
    for i in range(10): o += rb2(G + 2*i)
    for i in range(20): o.append(f"v_cndmask_b32 {v(G+i)}, 0, {v(G+i)}, vcc")
    return o

def gate_ops(XNR, G):
    t = T0; o = []
    for i in range(10):
        o += [f"v_lshlrev_b32 {v(t)}, 16, {v(XNR[i])}", f"v_and_b32 {v(t+1)}, s101, {v(XNR[i])}",
              f"v_add_f32 {v(G+2*i)}, {v(G+2*i)}, {v(t)}", f"v_add_f32 {v(G+2*i+1)}, {v(G+2*i+1)}, {v(t+1)}"]
    for i in range(10): o += rb2(G + 2*i)
    for h in range(4):
        for i in range(5): o.append(f"v_mul_f32 {v(t+i)}, s100, {v(G+5*h+i)}")
        for i in range(5): o.append(f"v_exp_f32 {v(t+i)}, {v(t+i)}")
        for i in range(5): o.append(f"v_add_f32 {v(t+i)}, 1.0, {v(t+i)}")
        for i in range(5): o.append(f"v_rcp_f32 {v(t+i)}, {v(t+i)}")
        for i in range(5): o.append(f"v_mul_f32 {v(G+5*h+i)}, {v(G+5*h+i)}, {v(t+i)}")
    for i in range(10): o += rb2(G + 2*i)
    return o

def gen(stamps=False):
    A = Asm()
    t = T0
    A("s_cmp_ge_u32 s2, 256", "s_cbranch_scc1 END")
    stamp(A, "start", stamps)
    A("s_load_dwordx16 s[36:51], s[0:1], 0", "s_load_dwordx8 s[52:59], s[0:1], 64", "s_load_dwordx2 s[60:61], s[0:1], 96")
    A(f"v_lshrrev_b32 {v(t)}, 6, v0", f"v_lshrrev_b32 {v(ROW)}, 5, v0", f"v_readfirstlane_b32 s28, {v(t)}", f"v_and_b32 {v(PP)}, 31, v0")
    A("s_and_b32 s29, s2, 7", "s_lshl_b32 s29, s29, 2", "s_lshr_b32 s30, s2, 3", "s_and_b32 s31, s30, 3", "s_add_u32 s29, s29, s31", "s_lshr_b32 s63, s30, 2",
      "v_and_b32 v0, 63, v0", "s_lshl_b32 s30, s63, 4", "s_lshl_b32 s31, s28, 2", "s_add_u32 s30, s30, s31", "s_lshl_b32 s33, s28, 12", "s_lshl_b32 s75, s28, 13")
    vm = VM()
    A(f"v_lshrrev_b32 {v(t)}, 3, v0", f"v_and_b32 {v(t+1)}, 7, v0", f"v_lshrrev_b32 {v(t+2)}, 4, v0", "s_lshl_b32 s31, s30, 4", f"v_add_u32 {v(t)}, s31, {v(t)}",
      f"v_mul_u32_u24 {v(t)}, 1280, {v(t)}", f"v_xor_b32 {v(t+3)}, {v(t+1)}, {v(t+2)}", f"v_lshl_add_u32 {v(VX)}, {v(t+3)}, 4, {v(t)}",
      f"v_xor_b32 {v(t+3)}, 4, {v(t+3)}", f"v_lshl_add_u32 {v(VX+1)}, {v(t+3)}, 4, {v(t)}", f"v_add_u32 {v(VX+1)}, {8*1280-1024}, {v(VX+1)}")
    A(f"v_and_b32 {v(t+1)}, 15, v0", "s_lshl_b32 s31, s28, 4", f"v_add_u32 {v(t+4)}, s31, {v(t+2)}",
      f"v_lshlrev_b32 {v(t+3)}, 2, {v(t+2)}", f"v_xor_b32 {v(t+3)}, {v(t+3)}, {v(t+1)}", f"v_lshlrev_b32 {v(t+3)}, 4, {v(t+3)}", f"v_lshl_add_u32 {v(VW)}, {v(t+4)}, 13, {v(t+3)}")
    A("s_waitcnt lgkmcnt(0)")
    srd(A, 16, PX, 0, 2048 * 1280)
    A("s_lshl_b32 s31, s29, 8"); srd(A, 12, PWQ, "s31", 639 * 8192 + 256)
    stamp(A, "karg", stamps)
    def x_dma(kt):
        out = []
        for pr in range(4):
            out += [f"s_add_u32 m0, s75, {(XA, XB)[kt & 1] + 2048*pr}", f"s_mov_b32 s62, {kt*128 + 20480*pr}",
                    f"buffer_load_dwordx4 {v(VX)}, {SX}, s62 offen {XNT} lds", f"buffer_load_dwordx4 {v(VX+1)}, {SX}, s62 offen offset:1024 {XNT} lds"]
        return out
    def wq_dma(kt):
        out = [f"s_add_u32 m0, s33, {VBASE + wslot(kt)*16384}"]
        for i in range(4):
            out += [f"s_mov_b32 s32, {kt*524288 + i*31744}", f"buffer_load_dwordx4 {v(VW)}, {SW}, s32 offen offset:{1024*i} {NT} lds"]
        return out
    def event(e):
        if e == "": return []
        if e[0] == "w": return [(x, ("w", int(e[1]))) for x in wq_dma(int(e[1]))]
        if e[0] == "x": return [(x, ("x", int(e[1]))) for x in x_dma(int(e[1]))]
        if e == "L":
            return [(x, "lx") for x in ["s_lshl_b32 s31, s63, 8", "s_lshl_b32 s32, s29, 3", "s_add_u32 s31, s31, s32", f"v_add_u32 {v(ROW)}, s31, {v(ROW)}",
                    f"v_lshlrev_b32 {v(LWA)}, 3, {v(PP)}", f"v_mul_u32_u24 {v(LXA)}, 1280, {v(ROW)}", f"v_add_u32 {v(LXA)}, {v(LXA)}, {v(LWA)}"] +
                    [f"buffer_load_dwordx2 {v(LX+2*i,2)}, {v(LXA)}, {SX}, 0 offen offset:{256*i}" for i in range(5)]]
        if e == "C":
            return [(x, "code") for x in ["s_getpc_b64 s[72:73]", "CODE0:", "s_lshr_b32 s31, s2, 3", "s_and_b32 s31, s31, 7", "s_lshl_b32 s32, s28, 7", "s_add_u32 s31, s31, s32",
                    f"v_and_b32 {v(t+8)}, 15, v0", f"v_lshl_add_u32 {v(t+8)}, {v(t+8)}, 3, s31", f"v_lshlrev_b32 {v(t+8)}, 7, {v(t+8)}",
                    f"v_min_u32 {v(t+8)}, (CODE1 - CODE0), {v(t+8)}", f"v_mov_b32 {v(t+9)}, 0", f"v_lshl_add_u64 {v(t+8,2)}, {v(t+8,2)}, 0, s[72:73]",
                    f"global_load_dword {v(DUMMY)}, {v(t+8,2)}, off"]]
    for e in PRE:
        for x, tag in event(e): put(A, vm, [x], tag)
    g_, i_, c_, r_ = t + 2, t + 1, t + 5, t + 6
    A(f"v_and_b32 {v(c_)}, 3, v0", f"v_bfe_u32 {v(r_)}, v0, 2, 2")
    for k in range(4): A(f"s_add_u32 s31, s28, {k}", "s_and_b32 s31, s31, 3", f"s_lshl_b32 {s(76+k)}, s31, 2")
    A(f"v_lshl_add_u32 {v(t+8)}, {v(g_)}, 3, {v(r_)}", f"v_lshlrev_b32 {v(t+8)}, 8, {v(t+8)}", f"v_lshl_add_u32 {v(t+8)}, {v(c_)}, 4, {v(t+8)}",
      f"v_add_u32 {v(t+8)}, {VBASE}, {v(t+8)}", f"v_lshlrev_b32 {v(t+7)}, 2, {v(r_)}")
    for k in range(4): A(f"v_xor_b32 {v(t+3)}, {s(76+k)}, {v(t+7)}", f"v_lshl_add_u32 {v(RW+k)}, {v(t+3)}, 4, {v(t+8)}")
    A(f"v_lshrrev_b32 {v(t+3)}, 1, {v(i_)}", f"v_xor_b32 {v(t+3)}, {v(t+3)}, {v(g_)}", f"v_lshlrev_b32 {v(t+8)}, 7, {v(i_)}", f"v_add_u32 {v(t+8)}, s75, {v(t+8)}",
      f"v_lshl_add_u32 {v(t+8)}, {v(t+3)}, 4, {v(t+8)}", f"v_add_u32 {v(RX)}, {XA}, {v(t+8)}", f"v_add_u32 {v(RX+2)}, {XB}, {v(t+8)}",
      f"v_xor_b32 {v(RX+1)}, 64, {v(RX)}", f"v_xor_b32 {v(RX+3)}, 64, {v(RX+2)}")
    for i in range(4): A(f"v_mov_b32 {v(ONES+i)}, 0x3f803f80")
    A(f"v_mov_b32 {v(t+8)}, {FKEY}", f"v_mov_b32 {v(t+9)}, 0", f"ds_write_b32 {v(t+8)}, {v(t+9)}")
    srd(A, 68, PWR, 0, 1280); srd(A, 24, PWS, 0, WSLO); srd(A, 64, PDBG, 0, 256)
    A("s_mov_b32 s101, 0xffff0000", "s_mov_b32 s100, 0x3acccccd")
    stamp(A, "setup", stamps)
    for e in MID:
        for x, tag in event(e): put(A, vm, [x], tag)
    B = Asm()
    B("s_lshl_b32 s31, s29, 19"); srd(B, 4, PK, "s31", "0x90000"); srd(B, 8, PV, "s31", "0x90000")
    B("s_mov_b64 s[38:39], s[4:5]", "s_mov_b64 s[40:41], s[8:9]", "s_mov_b64 s[42:43], s[4:5]", "s_mov_b64 s[36:37], s[8:9]", "s_movk_i32 s48, 4096")
    sc1 = B.L
    B = Asm()
    B("s_lshl_b32 s31, s30, 10", "s_lshl_b32 s73, s29, 19", "s_add_u32 s31, s31, s73", f"s_add_u32 s31, s31, {OF_OFF}")
    srd(B, 20, PWS, "s31", 3 * 131072 + 4096)
    sc2 = B.L
    sc3 = ["s_lshr_b32 s31, s29, 3", "s_add_u32 s74, s30, s31", "s_lshl_b32 s74, s74, 7", "s_and_b32 s31, s29, 7", "s_lshl_b32 s31, s31, 2", "s_add_u32 s74, s74, s31",
           f"s_add_u32 s74, s74, {FLAG_OFF}"]
    sc4 = ["s_lshl_b32 s31, s2, 2", "s_add_u32 s31, s31, s28", "s_lshl_b32 s31, s31, 8", f"s_cmp_lt_u32 s31, {ZERO_SIZE}", f"s_mov_b32 s47, {WSLO}", f"s_cselect_b32 s47, {Y_OFF}, s47",
           "s_add_u32 s47, s47, s31"]
    B = Asm()
    B(f"v_lshlrev_b32 {v(L16)}, 4, v0", f"v_mov_b32 {v(VXO)}, 0", f"v_mov_b32 {v(KEYR)}, 0")
    B(f"v_lshl_or_b32 {v(t+3)}, s28, 2, {v(g_)}", f"v_xor_b32 {v(t+3)}, {v(t+3)}, {v(i_)}", f"v_lshlrev_b32 {v(t+3)}, 4, {v(t+3)}", f"v_lshl_add_u32 {v(VK)}, {v(t+4)}, 8, {v(t+3)}")
    B(f"v_lshl_or_b32 {v(t+3)}, s28, 2, {v(g_)}", f"v_and_b32 {v(t+3)}, 7, {v(t+3)}", f"v_lshlrev_b32 {v(t+3)}, 1, {v(t+3)}", f"v_xor_b32 {v(t+3)}, {v(t+3)}, {v(i_)}",
      f"v_lshlrev_b32 {v(t+3)}, 4, {v(t+3)}", f"v_lshl_add_u32 {v(VV)}, {v(t+4)}, 8, {v(t+3)}")
    B(f"v_lshlrev_b32 {v(t+4)}, 8, {v(c_)}", f"v_lshl_add_u32 {v(t+4)}, {v(r_)}, 12, {v(t+4)}")
    for k in range(4): B(f"v_or_b32 {v(t+3)}, {s(76+k)}, {v(g_)}", f"v_xor_b32 {v(t+3)}, {v(t+3)}, {v(i_)}", f"v_lshl_add_u32 {v(RK+k)}, {v(t+3)}, 4, {v(t+4)}")
    B(f"v_lshl_add_u32 {v(t+4)}, {v(g_)}, 4, {v(r_)}", f"v_lshlrev_b32 {v(t+4)}, 8, {v(t+4)}", f"v_lshl_add_u32 {v(t+4)}, {v(c_)}, 3, {v(t+4)}",
      f"v_add_u32 {v(t+4)}, {VBASE}, {v(t+4)}", f"v_and_b32 {v(t+7)}, 1, {v(g_)}", f"v_lshl_or_b32 {v(t+7)}, {v(t+7)}, 2, {v(r_)}")
    for k in range(8): B(f"v_xor_b32 {v(t+3)}, {k}, {v(t+7)}", f"v_lshl_add_u32 {v(RV+k)}, {v(t+3)}, 5, {v(t+4)}")
    rload = [f"buffer_load_dwordx2 {v(LW+2*i,2)}, {v(LWA)}, {ST}, 0 offen offset:{256*i}" for i in range(5)]
    rest = ln_rest()
    k = rest.index("s_mov_b64 exec, s[44:45]")
    rest[k:k+3] = [["s_mov_b32 exec_lo, 1", "s_mov_b32 exec_hi, 1", rest[k+1], "s_mov_b64 exec, -1", "s_waitcnt lgkmcnt(0)"]]
    l2 = [x for x in rest if isinstance(x, str) and x.startswith("buffer")]
    rest = [x for x in rest if x not in l2]
    k = rest.index(f"v_lshlrev_b32 {v(LS+6)}, 16, {v(LW)}")
    lnr = [(x, "l1") for x in ln_stats()] + [(x, "lw") for x in rload] + [(sc1, None), (sc3, None), (sc4, None)] + [(x, None) for x in B.L] + \
          [(x, "l2") for x in rest[:k]] + [("@lw", None)] + [(x, "l2") for x in rest[k:]] + [(sc2, None)] + \
          [(f"v_accvgpr_write_b32 {a(32 + i)}, 0", None) for i in range(96)]
    def w_read(G, sx, p):
        kt, T = divmod(G, 8)
        return f"ds_read_b64_tr_b16 {a(8*(G%4)+4*sx+2*p,2)}, {v(RW+T//2)} offset:{wslot(kt)*16384 + sx*8192 + p*1024 + 8*(T&1)}"
    def x_read(kt, q, sx): return f"ds_read_b128 {a(xb(kt,q,sx),4)}, {v(RX+2*(kt&1)+sx)} offset:{2048*q}"
    A(*vm.wait([("w", 0), ("x", 0)])); A("s_waitcnt lgkmcnt(0)", "s_barrier")
    stamp(A, "q0", stamps)
    for sx in range(2):
        for p in range(2): A(w_read(0, sx, p))
    for q in range(4):
        for sx in range(2): A(x_read(0, q, sx))
    for sx in range(2):
        for p in range(2): A(w_read(1, sx, p))
    A("s_waitcnt lgkmcnt(4)")
    state = [(I(w_read(1, sx, p)).w, -8) for sx in range(2) for p in range(2)]
    held = []
    apoll = f"buffer_load_dword {v(t+12)}, {v(t+13)}, {SDB}, 0 offen sc1"
    for kt in range(10):
        st = Stream(); pos = {}
        for T in range(8):
            af = 8 * ((kt * 8 + T) % 4)
            for q in range(4):
                for sx in range(2):
                    c = 0 if (kt == 0 and sx == 0) else v(acc(q, T), 4)
                    pos[T, 2*q + sx] = st.add(f"{MF} {v(acc(q,T),4)}, {a(af+4*sx,4)}, {a(xb(kt,q,sx),4)}, {c}")
            if T < 2:
                for sx in range(2):
                    c = 0 if (kt == 0 and sx == 0) else v(CSA + 4*T, 4)
                    pos[T, 8 + sx] = st.add(f"{MF} {v(CSA+4*T,4)}, {a(af+4*sx,4)}, {v(ONES,4)}, {c}")
        last = len(st.mf) - 1
        for T in range(8):
            G = kt * 8 + T + 2
            if G < 80:
                for k in range(4): st.mem[pos[T, 2 * k if QS else 1 + k]].append(w_read(G, k >> 1, k & 1))
        def place(ops, slots, tag):
            seen = set()
            for (m0, so, x), g in zip(ops, slots):
                assert not {g - 1, g, g + 1} & set(st.tagq), (kt, g)
                st.sc[max(g - 1, 0)].append(m0)
                if so not in seen: st.sc[g - 2 if g >= 2 and g - 2 not in st.tagq and QR else g].append(so)
                elif g == 0: st.sc[g].append("s_nop 0")
                if QR: seen.add(so)
                st.mem[g].append(x); st.tagq.setdefault(g, []).append(tag)
        def x_ops(k):
            return [(f"s_add_u32 m0, s75, {(XA, XB)[k & 1] + 2048*(i >> 1)}", f"s_mov_b32 s62, {k*128 + 20480*(i >> 1)}",
                     f"buffer_load_dwordx4 {v(VX + (i & 1))}, {SX}, s62 offen offset:{1024*(i & 1)} {XNT} lds") for i in range(8)]
        def w_ops(k):
            return [(f"s_add_u32 m0, s33, {VBASE + wslot(k)*16384}", f"s_mov_b32 s32, {k*524288 + i*31744}",
                     f"buffer_load_dwordx4 {v(VW)}, {SW}, s32 offen offset:{1024*i} {NT} lds") for i in range(4)]
        def v_ops(j): return [(v_m0(j), f"s_mov_b32 s35, {16384*j}", v_dma(i)) for i in range(4)]
        def k_ops(j): return [(k_m0(j), f"s_mov_b32 s34, {16384*j}", k_dma(i)) for i in range(4)]
        m = kt + 1
        def ring(mm):
            return (w_ops(mm + 2), ("w", mm + 2)) if mm <= 7 else (v_ops(mm - 8), ("v", mm - 8))
        early = [3, 7, 15, 23, 27, 31, 35, 39]
        if kt == 0: place(w_ops(2), [11, 19, 43, 47], ("w", 2))
        elif kt < 9:
            ops, tag = ring(kt); place(ops[2:], [11, 19], tag)
        else:
            ops, tag = ring(kt); place(ops[2:], [3, 7], tag)
        if kt + 2 < 10:
            st.force[2] = regs_of(a(xb(kt, 0, 0), 32))
            place(x_ops(kt + 2), early, ("x", kt + 2))
        if kt == 6: place(k_ops(0), [42, 46, 65, 67], ("k", 0))
        if kt == 8: place(k_ops(1), [3, 15, 27, 39], ("k", 1))
        if kt == 0: st.pre[4].append(["lx"])
        if kt < 9:
            xs_ = [45, 49, 55, 57, 59, 63, 65, 67] if kt == 0 else [43, 45, 47, 49, 55, 57, 59, 63]
            st.pre[xs_[0]].append([("x", kt + 1)])
            for k in range(8): st.mem[xs_[k]].append(x_read(kt + 1, k >> 1, k & 1))
        need = ([("w", m)] if m < 10 else [("k", 0)]) + (["l1"] if m == ASIG else [])
        if m == 8: assert not any(tag == "l2" for x, tag in lnr)
        gb = pos[5, 7] if m < 10 else 9
        if m < 10:
            ops, tag = ring(m); place(ops[:2], [53, 61], tag)
        else:
            st.force[gb] = regs_of(a(xb(kt, 0, 0), 32))
            place(k_ops(2), [13, 18, 23, 28], ("k", 2)); place(v_ops(2), [33, 38, 43, 48], ("v", 2)); place(k_ops(3), [53, 58, 62, 66], ("k", 3))
            st.va[last] += ["s_mov_b32 s34, 0x10000", "s_mov_b32 s35, 0xc000"]
            for k, g in enumerate((11, 15, 19, 21, 25, 27, 31, 35, 39, 41, 45, 47, 51, 55, 57, 60)): st.mem[g].append(k_read(0, k >> 2, k & 3))
        for g in range(pos[0, 5] if kt == 0 else 0, last + 1):
            if any(x.startswith("buffer") for x in st.mem[g]): continue
            n = len(st.mem[g])
            if held and g == 52:
                x, tag = held.pop(0); st.va[g].append(x); st.tag[x] = tag; continue
            while lnr and n < 2:
                x, tag = lnr[0]
                if isinstance(x, list):
                    lnr.pop(0); st.va[g] += x; break
                if x == "@lw":
                    lnr.pop(0); st.va[g].append(["lw"]); continue
                if QR and x.startswith("s_nop") and g < last:
                    lnr.pop(0); st.sc[g + 1].append("s_nop 0"); break
                if x.startswith("buffer_store"):
                    lnr.pop(0); held.append((x, tag)); continue
                if QR and (x.startswith("buffer") or x.startswith(TRANS)) and n: break
                lnr.pop(0); st.va[g].append(x); n += 0 if x.startswith("s_nop") else 1
                if x.startswith("buffer"): st.tag[x] = tag; break
                if x.startswith(TRANS): break
        if kt == 5: assert not any(x in B.L for x, tag in lnr if isinstance(x, str))
        if m == 8: st.va[gb] += w0_only("APOLLW", ["@poll"] + spin("APOLL", apoll, v(t+12), "32"))
        st.va[gb] += stampl(f"q{kt}b", stamps)
        if need: st.va[gb].append(need)
        st.va[gb] += stampl(f"q{kt}c", stamps)
        st.va[gb].append("s_barrier")
        if m == ASIG:
            assert not any(tag == "l1" for x, tag in lnr + held)
            st.va[gb] += ["s_lshr_b32 s72, s63, 2", "s_mul_i32 s72, s72, 112", "s_lshl_b32 s73, s63, 2", "s_add_u32 s72, s72, s73", f"v_mov_b32 {v(t+13)}, s72"] + \
                         w0_only("ASIGW", ["s_mov_b32 s73, 1", f"s_atomic_add s73, {s(PDBG,2)}, s72"])
        if m == 7: st.va[gb] += w0_only("APOL0W", [apoll, "@mark"])
        if m == 8:
            st.va[gb] += w0_only("KEYW", [f"v_mov_b32 {v(KEYR)}, {FKEY}", f"ds_read_b32 {v(KEYR+1)}, {v(KEYR)}", "s_lshr_b32 s72, s2, 3", "s_lshl_b32 s72, s72, 5", "s_and_b32 s73, s2, 7",
                                          "s_add_u32 s72, s72, s73", "s_lshl_b32 s72, s72, 2", f"s_add_u32 s72, s72, {KEY_OFF}", f"v_mov_b32 {v(KEYR)}, s72", "s_waitcnt lgkmcnt(0)"])
        if m == 9:
            st.va[gb] += w0_only("KEYS", [f"buffer_store_dword {v(KEYR+1)}, {v(KEYR)}, {SWS}, 0 offen sc1"])
            for x, g in zip(l2, (56, 58, 60, 64, 66, 67)): st.mem[g].append(x); st.tag[x] = "l2"
        if m == 10:
            assert not lnr and not any(x in st.tag for g in range(gb, last + 1) for x in st.va[g] if isinstance(x, str))
        if m == 8:
            st.va[54] += [f"v_and_b32 {v(t+12)}, 15, v0", f"v_lshlrev_b32 {v(t+12)}, 4, {v(t+12)}"]
            st.sc[55] += ["s_lshl_b32 s72, s30, 8", f"s_add_u32 s72, s72, {STAT_OFF}"]
            for q, g in enumerate((56, 58, 65, 67)):
                x = f"buffer_load_dwordx2 {v(STT+2*q,2)}, {v(t+12)}, {SWS}, s72 offen offset:{256*q} sc1"
                st.mem[g].append(x); st.tag[x] = "st"
        if kt == 9:
            CS = [224, 228, 232, 236, 240, 16, 20, 24]; CA = [28, 29, 254, 255]
            st.pre[0].append(["st"])
            st.va[24] += [f"v_lshrrev_b32 {v(t+12)}, 4, v0", f"v_lshlrev_b32 {v(t+12)}, 4, {v(t+12)}", "s_lshl_b32 s72, s28, 7", f"s_add_u32 s72, s72, {FCS}",
                          f"v_add_u32 {v(t+13)}, s72, {v(t+12)}", f"v_mov_b32 {v(t+14)}, {FVOTE}", f"v_mov_b32 {v(t+15)}, 0"]
            st.va[26] += [f"ds_write_b128 {v(t+13)}, {v(CSA,4)}", f"ds_write_b128 {v(t+13)}, {v(CSA+4,4)} offset:64", f"ds_write_b32 {v(t+14)}, {v(t+15)}"]
            st.va[34] += ["s_waitcnt lgkmcnt(0)", "s_barrier"]
            for k in range(4): st.va[36 + 2*k] += [f"s_lshl_b32 s72, {s(76+k)}, 5", f"s_add_u32 s72, s72, {FCS}", f"v_add_u32 {v(CA[k])}, s72, {v(t+12)}"]
            for T, g in enumerate((44, 46, 49, 50, 52, 59, 61, 63)): st.mem[g].append(f"ds_read_b128 {v(CS[T],4)}, {v(CA[T//2])} offset:{64*(T&1)}")
            muls = [(pos[T, 7] + 5, q, T, r) for T in range(7) for q in range(2) for r in range(4)]
            scaled = set()
            for g in range(len(st.mf)):
                if any(x.startswith("buffer") for x in st.mem[g]): continue
                n = len(st.mem[g]) + len(st.va[g])
                while muls and muls[0][0] <= g and n < 2:
                    _, q, T, r = muls.pop(0); scaled.add((q, T, r)); n += 1
                    st.va[g].append(f"v_mul_f32 {v(acc(q,T)+r)}, {v(STT+2*q)}, {v(acc(q,T)+r)}")
        st.resolve(vm)
        if kt: stamp(A, f"q{kt}", stamps)
        state = st.emit(A, state, nxt0=regs_of(a(0, 4)) | regs_of(a(xb(kt + 1, 0, 0), 4)))
    stamp(A, "q10", stamps)
    st = main_loop()
    def conv(q):
        o = []
        for T in range(8):
            for r in range(4):
                if (q, T, r) not in scaled: o.append(f"v_mul_f32 {v(acc(q,T)+r)}, {v(STT+2*q)}, {v(acc(q,T)+r)}")
            for r in range(4): o.append(f"v_fmac_f32 {v(acc(q,T)+r)}, {v(CS[T]+r)}, {v(STT+2*q+1)}")
            for h in range(2): o.append(f"v_cvt_pk_bf16_f32 {v(Q+16*q+2*T+h)}, {v(acc(q,T)+2*h)}, {v(acc(q,T)+2*h+1)}")
        return o
    def seed(q):
        x = (112, 116, 136, 140)[q]
        o = [f"{MF} {v(x,4)}, {a(kf(0,tt),4)}, {v(qf(q,tt),4)}, {v(x,4) if tt else 0}" for tt in range(4)]
        o += [f"v_max3_f32 {v(x)}, {v(x)}, {v(x+1)}, {v(x+2)}", f"v_max_f32 {v(x)}, {v(x)}, {v(x+3)}"]
        for sw in ("v_permlane16_swap_b32", "v_permlane32_swap_b32"): o += [f"v_mov_b32 {v(x+1)}, {v(x)}", f"{sw} {v(x)}, {v(x+1)}", f"v_max_f32 {v(x)}, {v(x)}, {v(x+1)}"]
        return o + [f"v_sub_f32 {v(NM+4*q+r)}, 0, {v(x)}" for r in range(4)]
    sm0 = []
    for i in range(16):
        sm0.append(f"v_exp_f32 {v(S+i)}, {v(S+i)}")
        if i & 1: sm0.append(f"v_cvt_pk_bf16_f32 {v(P+i//2)}, {v(S+i-1)}, {v(S+i)}")
    B = Asm(); clear_sums(B)
    clr = [x for x in B.L if not regs_of(x) & regs_of(v(P + 8, 8))]
    assert 0 in CONV
    n16 = vm.n_after([("v", 0), ("k", 1), "l2"])
    gate = [f"s_waitcnt vmcnt({n16})", "s_barrier"] + st.first_reads + \
           w0_only("BSIGW", ["s_and_b32 s72, s2, 1", "s_lshl_b32 s72, s72, 7", f"s_add_u32 s72, s72, {DBG_B}"] + signal("s72", t + 12))
    A("s_waitcnt lgkmcnt(0)")
    stamp(A, "cs", stamps)
    out, est = lsched(conv(0) + conv(1) + seed(0) + qk(0) + conv(2) + seed(1) + qk(1) + [f"v_accvgpr_write_b32 {a(i)}, 0" for i in range(32)] + sm0 + seed(2))
    A(*out); A(*gate)
    out, est2 = lsched(conv(3) + seed(3) + clr)
    A(*out)
    print("head estimate", est, est2)
    A("s_movk_i32 s49, 0xfe", "s_mov_b32 s63, 0", "s_mov_b32 s62, 8", "s_waitcnt lgkmcnt(0)")
    stamp(A, "att", stamps)
    if stamps: A("s_memtime s[96:97]")
    A("s_branch LOOPM")
    state = st.emit(None, [])
    A(".p2align 5", "LOOPW:", "s_waitcnt vmcnt(16)", "LOOP:")
    b0 = len(A.L)
    st.va[st.exit] += ["s_cmp_eq_u32 s62, 1", "s_cbranch_scc1 LOOPX"]
    assert state == st.emit(A, state)
    A("s_sub_u32 s62, s62, 1", "s_bitcmp1_b32 s49, s62", "s_cbranch_scc0 LOOPW", "s_branch SIDE", "LOOPX:")
    body = A.L[b0:]
    assert not st.exit_pend and set(CONV) == {0, 1}
    stamp(A, "loopx", stamps)
    if stamps: A("s_memtime s[98:99]")
    vm = VM(24)
    ls = [L + 2*q for q in range(4)]
    lr = [la(0), la(1), L + 5, L + 7]
    def pv(q):
        pb = P + 8 * (q % 2)
        o = [f"{MF} {a(of(dt,q),4)}, {a(vf(h,dt),4)}, {v(pb+4*h,4)}, {a(of(dt,q),4)}" for f in range(16) for dt, h in [pv_order(f)]]
        return o + ([f"{MF} {v(la(q),4)}, {v(LONE,4)}, {v(pb+4*h,4)}, {v(la(q),4)}" for h in range(2)] if q in CONV else [])
    def sm(q):
        sc = S + 16 * (q % 2); pc = P + 8 * (q % 2); o = []
        for i in range(16):
            o.append(f"v_exp_f32 {v(sc+i)}, {v(sc+i)}")
            if i: o.append(f"v_add_f32 {v(L+2*q+((i-1)&1))}, {v(L+2*q+((i-1)&1))}, {v(sc+i-1)}")
            if i and not i & 1: o.append(f"v_cvt_pk_bf16_f32 {v(pc+i//2-1)}, {v(sc+i-2)}, {v(sc+i-1)}")
        return o + [f"v_cvt_pk_bf16_f32 {v(pc+7)}, {v(sc+14)}, {v(sc+15)}", f"v_add_f32 {v(L+2*q+1)}, {v(L+2*q+1)}, {v(sc+15)}"]
    def lsum(q):
        o = []
        if q not in CONV:
            x, u = lr[q], t + q
            o.append(f"v_add_f32 {v(x)}, {v(x)}, {v(x-1)}")
            for sw in ("v_permlane16_swap_b32", "v_permlane32_swap_b32"): o += [f"v_mov_b32 {v(u)}, {v(x)}", f"{sw} {v(x)}, {v(u)}", f"v_add_f32 {v(x)}, {v(x)}, {v(u)}"]
        return o + [f"v_rcp_f32 {v(ls[q])}, {v(lr[q])}"]
    def norm(q):
        o = []
        for e in range(4):
            w, d = (WF + 8 * (e & 1), (WF + 16, T0 + 4)[e & 1])
            for b in range(2):
                for r in range(4): o.append(f"v_accvgpr_read_b32 {v(w+4*b+r)}, {a(of(2*e+b,q)+r)}")
            for i in range(8): o.append(f"v_mul_f32 {v(w+i)}, {v(ls[q])}, {v(w+i)}")
            for i in range(4): o.append(f"v_cvt_pk_bf16_f32 {v(d+i)}, {v(w+2*i)}, {v(w+2*i+1)}")
            o.append(f"buffer_store_dwordx4 {v(d,4)}, {v(L16)}, {SO}, {(0, 's72', 's73', 's3')[e]} offen offset:{1024*q} sc1")
        return o
    vote = [f"v_add_f32 {v(t+1)}, {v(lr[0])}, {v(lr[1])}", f"v_add_f32 {v(t)}, {v(lr[2])}, {v(lr[3])}", f"v_add_f32 {v(t+1)}, {v(t+1)}, {v(t)}",
            f"v_mov_b32 {v(t+2)}, {FVOTE}", f"v_mov_b32 {v(t+3)}, 1", f"v_cmp_nle_f32 vcc, {v(t+1)}, {v(t+8)}",
            ["s_and_saveexec_b64 s[34:35], vcc", f"ds_write_b32 {v(t+2)}, {v(t+3)}", "s_mov_b64 exec, s[34:35]", "s_waitcnt lgkmcnt(0)", "s_barrier", f"ds_read_b32 {v(t+3)}, {v(t+2)}"]]
    first = []
    for k in range(6, 6 + TAILK):
        x = a_loads(k, k); first += [x[:3]] + x[3:]
    A("s_mov_b32 s72, 0x20000", "s_mov_b32 s73, 0x40000", f"v_mov_b32 {v(t+8)}, {LMAX}")
    ops = st.left_dma + ["s_mov_b32 s3, 0x60000"] + qk(3) + sm(2) + lsum(0) + first + norm(0) + pv(1) + lsum(2) + pv(2) + sm(3) + lsum(1) + norm(1) + pv(3) + lsum(3) + vote + norm(2) + norm(3)
    out, est = lsched(ops)
    print("tail estimate", est)
    for x in out:
        tag = "o" if x.startswith("buffer_store") else ("a", 6 + (min(r for k_, r in I(x).w) - 128) // 20) if x.startswith("buffer") and not x.endswith("lds") else None
        put(A, vm, [x], tag)
    stamp(A, "ost", stamps)
    A("s_waitcnt lgkmcnt(0)", f"v_readfirstlane_b32 s72, {v(t+3)}", f"v_mov_b32 {v(t+8)}, 1", f"v_mov_b32 {v(t+9)}, s74",
      "s_andn2_b32 s72, s72, s63", "s_cmp_lg_u32 s72, 0", "s_cbranch_scc1 REDO")
    stamp(A, "vote", stamps)
    npre = int(os.environ.get("NPRE", 2))
    weave(A, vm, [(a_loads(k, k), ("a", k)) for k in range(npre)], ffn_part1(), 5)
    A(*vm.wait(["o"]))
    stamp(A, "drain", stamps)
    A("s_mov_b64 exec, 1"); put(A, vm, [f"buffer_store_dword {v(t+8)}, {v(t+9)}, {SWS}, 0 offen sc1"], "f"); A("s_mov_b64 exec, -1")
    for k in range(npre, max(npre, 4)): put(A, vm, a_loads(k, k), ("a", k))
    A("s_barrier")
    oproj(A, vm, stamps)
    if stamps:
        A("s_memrealtime s[62:63]", "s_waitcnt lgkmcnt(0)", "s_sub_u32 s96, s98, s96")
        srd(A, 68, PWS, STAMP_OFF, 0x10000)
        A("s_lshl_b32 s72, s2, 2", "s_add_u32 s72, s72, s28", "s_lshl_b32 s72, s72, 6", f"v_mov_b32 {v(t)}, s72", "s_mov_b64 exec, 1")
        for i, r in enumerate([80 + 2*k for k in range(8)] + [62, 96]):
            A(f"v_mov_b32 {v(t+1)}, {s(r)}", f"buffer_store_dword {v(t+1)}, {v(t)}, {ST}, 0 offen offset:{4*i}", "s_nop 1")
    if stamps and os.environ.get("DBGOUT"):
        A("s_not_b32 s72, s80", "s_sub_u32 s73, s88, s86", "s_sub_u32 s31, s84, s80", "s_sub_u32 s32, s62, s88")
        for i, r in enumerate((72, 62, 73, 96, 31, 32)):
            A(f"v_mov_b32 {v(t+1)}, {s(r)}", f"v_mov_b32 {v(t)}, {44 + 4*i if i < 5 else 16}", f"buffer_atomic_umax {v(t+1)}, {v(t)}, {SDB}, 0 offen sc1", "s_nop 1")
    A("END:", "s_endpgm")
    B = Asm(); side_jobs(B)
    cur = None
    for x in B.L:
        if x in ("s_branch LOOP", "s_branch CHK") and cur: stamp(A, cur + "x", stamps)
        A(x)
        if x.endswith(":") and x[:-1] in [f"JOB{i}" for i in range(7)]:
            cur = x[:-1]; stamp(A, cur, stamps)
    A("REDO:", "s_mov_b32 s63, 1", "s_mov_b32 s49, 0", "s_mov_b32 s34, 0", "s_mov_b64 s[4:5], s[38:39]", "s_mov_b64 s[8:9], s[40:41]", "s_waitcnt vmcnt(0)")
    TMP = J + 20
    M = TMP + 16
    for q in range(4): A(f"v_mov_b32 {v(M+q)}, 0xff800000")
    A("MAXL:", "s_barrier", k_m0(0), "s_nop 0")
    for i in range(4): A(k_dma(i))
    A("s_add_u32 s34, s34, 16384", "s_waitcnt vmcnt(0)", "s_barrier")
    for kt in range(4):
        for tt in range(4): A(k_read(0, kt, tt))
        if kt == 1: A("s_waitcnt lgkmcnt(0)")
    A("s_waitcnt lgkmcnt(0)")
    for q in range(4):
        for kt in range(4):
            for tt in range(4): A(f"{MF} {v(TMP+4*kt,4)}, {a(kf(kt,tt),4)}, {v(qf(q,tt),4)}, {v(TMP+4*kt,4) if tt else 0}")
        A("s_nop 7")
        for i in range(8): A(f"v_max3_f32 {v(M+q)}, {v(M+q)}, {v(TMP+2*i)}, {v(TMP+2*i+1)}")
    A("s_cmp_lt_u32 s34, 0x80000", "s_cbranch_scc1 MAXL")
    negm_from_max(A, [M + q for q in range(4)])
    for i in range(128): A(f"v_accvgpr_write_b32 {a(i)}, 0")
    clear_sums(A)
    A("s_mov_b32 s34, 0", "s_mov_b32 s35, 0", "s_barrier")
    for j in range(4):
        if j > 0:
            A(v_m0(j - 1), "s_nop 0")
            for i in range(4): A(v_dma(i))
            A("s_add_u32 s35, s35, 16384")
        A(k_m0(j), "s_nop 0")
        for i in range(4): A(k_dma(i))
        A("s_add_u32 s34, s34, 16384")
    A("s_waitcnt vmcnt(24)", "s_barrier")
    for kt in range(4):
        for tt in range(4): A(k_read(0, kt, tt))
        if kt == 1: A("s_waitcnt lgkmcnt(0)")
    A("s_waitcnt lgkmcnt(0)", *qk(0), "s_mov_b32 s62, 8", "CODE1:", "s_branch LOOPW")
    return A, body
```
